```python
import torch

def _softmax(x, axis=-1):
    return torch.softmax(x, dim=axis)
def _gelu(x):
    return torch.nn.functional.gelu(x, approximate="tanh")
def _silu(x):
    return torch.nn.functional.silu(x)
def _sigmoid(x):
    return torch.sigmoid(x)
def _layernorm(x, axis=-1, eps=1e-5):
    m = x.mean(dim=axis, keepdim=True)
    v = x.var(dim=axis, keepdim=True, unbiased=False)
    return (x - m) / torch.sqrt(v + eps)
def _scatter_add(tgt, idx, src, axis=0):
    return tgt.clone().index_add_(axis, idx, src)
def _segment_sum(src, seg, n):
    out = torch.zeros((n,) + src.shape[1:], dtype=src.dtype)
    return out.index_add_(0, seg, src)
def _pad(x, pw):
    flat = tuple(v for pair in reversed(pw) for v in pair)
    return torch.nn.functional.pad(x, flat)

kernel_name = 'concat_heads__grouped_kv_mqa__grouped_kv_mqa__prompt'

def setup_inputs():

    _w = (lambda a: (lambda t: t.to(torch.bfloat16) if t.is_floating_point() else t)(torch.as_tensor(a)))
    def _A_setup():
        B, S, D, H = 1, 2048, 576, 32
        Dh = D // H
        return {
            "x": _w((lambda *s: torch.randn(*s, dtype=torch.bfloat16) * 0.05)(B, S, D)),
            "wq": _w((lambda *s: torch.randn(*s, dtype=torch.bfloat16) * 0.8)(D, H * Dh)),
            "wk": _w((lambda *s: torch.randn(*s, dtype=torch.bfloat16) * 0.8)(D, Dh)),
            "wv": _w((lambda *s: torch.randn(*s, dtype=torch.bfloat16) * 0.05)(D, Dh)),
            "wo": _w((lambda *s: torch.randn(*s, dtype=torch.bfloat16) * 0.05)(H * Dh, D)),
        }
    _A_in = _A_setup()

    def _B_setup():
        B, S, D, H = 1, 2048, 576, 32
        Dh = D // H
        return {
            "x": _w((lambda *s: torch.randn(*s, dtype=torch.bfloat16) * 0.05)(B, S, D)),
            "wq": _w((lambda *s: torch.randn(*s, dtype=torch.bfloat16) * 0.8)(D, H * Dh)),
            "wk": _w((lambda *s: torch.randn(*s, dtype=torch.bfloat16) * 0.8)(D, Dh)),
            "wv": _w((lambda *s: torch.randn(*s, dtype=torch.bfloat16) * 0.05)(D, Dh)),
            "wo": _w((lambda *s: torch.randn(*s, dtype=torch.bfloat16) * 0.05)(H * Dh, D)),
        }
    _B_in = _B_setup()

    return {
        "A_x": _A_in["x"],
        "A_wq": _A_in["wq"],
        "A_wk": _A_in["wk"],
        "A_wv": _A_in["wv"],
        "A_wo": _A_in["wo"],
        "B_x": _B_in["x"],
        "B_wq": _B_in["wq"],
        "B_wk": _B_in["wk"],
        "B_wv": _B_in["wv"],
        "B_wo": _B_in["wo"],
    }

def reference(A_x, A_wq, A_wk, A_wv, A_wo, B_x, B_wq, B_wk, B_wv, B_wo):
    def _A_ref(x, wq, wk, wv, wo):
        B, S, D = x.shape
        H = 32
        Dh = D // H
        q = (lambda x, *d: x.permute(*d))((x @ wq).reshape(B, S, H, Dh), 0, 2, 1, 3)
        k = x @ wk
        v = x @ wv
        scores = torch.einsum("bhqd,bkd->bhqk", q, k) * (Dh ** -0.5)
        p = _softmax(scores, axis=-1)
        o = torch.einsum("bhqk,bkd->bhqd", p, v)
        return (lambda x, *d: x.permute(*d))(o, 0, 2, 1, 3).reshape(B, S, H * Dh) @ wo

    def _B_ref(x, wq, wk, wv, wo):
        B, S, D = x.shape
        H = 32
        Dh = D // H
        q = (lambda x, *d: x.permute(*d))((x @ wq).reshape(B, S, H, Dh), 0, 2, 1, 3)
        k = x @ wk
        v = x @ wv
        scores = torch.einsum("bhqd,bkd->bhqk", q, k) * (Dh ** -0.5)
        p = _softmax(scores, axis=-1)
        o = torch.einsum("bhqk,bkd->bhqd", p, v)
        return (lambda x, *d: x.permute(*d))(o, 0, 2, 1, 3).reshape(B, S, H * Dh) @ wo

    a = _A_ref(A_x, A_wq, A_wk, A_wv, A_wo)
    b = _B_ref(B_x, B_wq, B_wk, B_wv, B_wo)
    return torch.concatenate([a, b], axis=-1)
```

```python
import re
class Asm:
    def __init__(self):
        self.lines = []
    def __call__(self, s, *more):
        for x in (s,) + more:
            if isinstance(x, (list, tuple)):
                for y in x: self(y)
            else:
                for ln in x.split("\n"):
                    ln = ln.strip()
                    if ln: self.lines.append(ln)
    def label(self, l): self.lines.append(l + ":")
    def text(self):
        out = []
        for l in self.lines:
            if l.endswith(":") or l.startswith("."): out.append(l)
            else: out.append("    " + l)
        return "\n".join(out) + "\n"
def v(a, n=1): return f"v{a}" if n == 1 else f"v[{a}:{a+n-1}]"
def s(a, n=1): return f"s{a}" if n == 1 else f"s[{a}:{a+n-1}]"

TRANS = ("v_exp_f32", "v_log_f32", "v_rcp_f32", "v_rsq_f32", "v_sqrt_f32", "v_sin_f32", "v_cos_f32")
def regs(tok):
    tok = tok.strip().lstrip("-").replace("abs(", "").replace("|", "").rstrip(")")
    m = re.fullmatch(r"([vs])(\d+)", tok)
    if m: return [(m.group(1), int(m.group(2)))]
    m = re.fullmatch(r"([vs])\[(\d+):(\d+)\]", tok)
    if m: return [(m.group(1), i) for i in range(int(m.group(2)), int(m.group(3)) + 1)]
    if tok == "vcc": return [("s", 106), ("s", 107)]
    if tok == "exec": return [("s", 126), ("s", 127)]
    if tok == "m0": return [("s", 124)]
    return []
def passes(op):
    if "32x32x4bf16_1k" in op: return 16
    if "32x32" in op: return 8
    if "16x16" in op: return 4
    raise Exception(op)
class Ins:
    def __init__(self, line):
        self.line = line
        line = line.split(";")[0].strip()
        p = line.split(None, 1)
        self.op = p[0]
        ops = [x.strip() for x in p[1].split(",")] if len(p) > 1 else []
        ops = [o.split()[0] if o else o for o in ops]
        self.ops = ops
        op = self.op
        self.kind = ("mfma" if op.startswith(("v_mfma", "v_smfmac")) else "valu" if op.startswith("v_") else
                     "ds" if op.startswith("ds_") else "vmem" if op.startswith(("buffer_", "global_")) else "salu")
        self.w = []; self.r = []; self.srcc = []; self.ab = []
        R = [regs(o) for o in ops]
        if self.kind == "mfma":
            self.w = R[0]; self.ab = R[1] + R[2]
            if op.startswith("v_smfmac"): self.srcc = R[0]; self.ab += R[3]
            else: self.srcc = R[3]
            self.r = self.ab + self.srcc; self.passes = passes(op)
        elif self.kind == "valu":
            if op.startswith("v_cmp"): self.w = R[0]; self.r = sum(R[1:], [])
            elif op.startswith("v_permlane"): self.w = R[0] + R[1]; self.r = R[0] + R[1]
            elif op.startswith(("v_fmac", "v_writelane")) or op.endswith("_dpp"): self.w = R[0]; self.r = sum(R, [])
            elif "_co_" in op: self.w = R[0] + R[1]; self.r = sum(R[2:], [])
            else: self.w = R[0] if R else []; self.r = sum(R[1:], [])
        elif self.kind == "ds":
            if op.startswith(("ds_read", "ds_bpermute", "ds_swizzle", "ds_permute")): self.w = R[0]; self.r = sum(R[1:], [])
            else: self.r = sum(R, [])
        elif self.kind == "vmem":
            if " lds" in line: self.r = sum(R, []) + regs("m0"); self.dma = True
            elif "load" in op: self.w = R[0]; self.r = sum(R[1:], [])
            elif "atomic" in op and " sc0" in line: self.w = R[0]; self.r = sum(R, [])
            else: self.r = sum(R, [])
            self.data = R[0] if ("store" in op) else []
        else:
            if op in ("s_nop", "s_waitcnt", "s_barrier", "s_setprio", "s_sleep", "s_endpgm") or op.startswith(("s_branch", "s_cbranch")): pass
            elif op.startswith("s_cmp"): self.r = sum(R, [])
            else:
                self.w = R[0] if R else []; self.r = sum(R[1:], [])
                if "saveexec" in op: self.w += regs("exec")
        self.ws = int(ops[0]) + 1 if op == "s_nop" else 1
def need(p, c):
    pw = set(p.w); n = 0
    cr = set(c.r); cw = set(c.w)
    if p.kind == "mfma":
        T = {4: (6, 8), 8: (10, 12), 16: (18, 20)}[p.passes]
        if c.kind == "mfma":
            if pw & set(c.ab): n = max(n, T[1])
            if pw & set(c.srcc):
                if not (list(c.srcc) == list(p.w) and c.passes == p.passes): n = max(n, T[0])
            elif pw & cw: n = max(n, 0)
        elif c.kind in ("valu", "ds", "vmem"):
            if pw & (cr | cw): n = max(n, T[1])
        if c.kind == "valu" and set(p.srcc) & cw: n = max(n, {4: 3, 8: 7, 16: 15}[p.passes])
    if p.kind == "valu":
        vw = {x for x in pw if x[0] == "v"}; sw = {x for x in pw if x[0] == "s"}
        if c.kind == "mfma" and vw & cr: n = max(n, 2)
        if c.kind == "mfma" and set(regs("exec")) & sw: n = max(n, 4)
        if c.kind == "valu":
            if p.op.startswith(TRANS) and not c.op.startswith(TRANS) and vw & cr: n = max(n, 1)
            if c.op.startswith(("v_readlane", "v_readfirstlane")) and vw & cr: n = max(n, 1)
            if c.op.startswith("v_permlane") and vw & cr: n = max(n, 2)
            if "dpp" in c.line.lower() or "row_" in c.line or "quad_perm" in c.line:
                if vw & cr: n = max(n, 2)
            if sw & cr: n = max(n, 4 if c.op.startswith(("v_readlane", "v_writelane")) else 2)
        if c.kind == "vmem" and sw & cr: n = max(n, 5)
        if c.kind == "salu" and sw & cr: n = max(n, 1)
    if p.kind == "salu" and ("s", 124) in pw and c.kind == "vmem" and ("s", 124) in cr: n = max(n, 1)
    if p.kind == "vmem" and getattr(p, "data", None) and len(p.data) >= 3 and set(p.data) & cw: n = max(n, 2)
    return n
def check(lines):
    ins = []; labels = {}
    for l in lines:
        if l.endswith(":"): labels[l[:-1]] = len(ins); continue
        if l.startswith((".", ";")): continue
        ins.append(Ins(l))
    succ = []
    for i, x in enumerate(ins):
        sc = []
        if x.op == "s_endpgm": pass
        elif x.op == "s_branch": sc = [labels[x.ops[0]]]
        elif x.op.startswith("s_cbranch"): sc = [labels[x.ops[0]], i + 1]
        else: sc = [i + 1]
        succ.append([j for j in sc if j < len(ins)])
    errs = set()
    for i, p in enumerate(ins):
        if p.kind in ("ds",): continue
        if p.kind == "salu" and ("s", 124) not in p.w: continue
        maxd = 21 if p.kind == "mfma" else 6
        stack = [(j, 0) for j in succ[i]]; seen = {}
        while stack:
            j, d = stack.pop()
            if d >= maxd or seen.get(j, 99) <= d: continue
            seen[j] = d
            n = need(p, ins[j])
            if n > d: errs.add((i, j, n, d))
            for k in succ[j]: stack.append((k, d + ins[j].ws))
    for i, j, n, d in sorted(errs):
        print(f"HAZARD: need {n} have {d}:\n    {ins[i].line}\n    {ins[j].line}")
    return len(errs)
```

```python
import sys, os, struct, math
from asmlib import Asm, v, s, check

NAME = "concat_heads__grouped_kv_mqa__grouped_kv_mqa__prompt"
VH = 304
STEPB = 1024 + 4*VH
BLK = 512 + 4*STEPB
KVB = 16*BLK
KVSTRIDE = 0x40000
OOFF = 0x100000
OBYTES = 2*2048*576*2
LDS_TOTAL = 163840
XB = 0; WKVB = 73728; WRB = WKVB + 27648; WB = WRB + 18432; QX = LDS_TOTAL - 64*296; QS = 296
assert WB + 32768 <= LDS_TOTAL and QX >= WB + 16384
WOM = 49152; WOX = WOM + 73728
assert WOX + 36864 <= LDS_TOTAL
SCALE = 18 ** -0.5 * math.log2(math.e)
def fbits(x): return struct.unpack("<I", struct.pack("<f", x))[0]
RX, RW, RKW, RKV, RO, ROUT, RDBG = 4, 8, 12, 16, 20, 24, 28
SB, SQB, SHG, SW = 32, 33, 34, 35
ST = 36
SEX = 48
SIT = 50; SFLAG = 51; SJJ = 52; SGRP = 53
PWO = 54
LANE = 1

def srd(a, r, ptr, size):
    a(f"s_mov_b32 {s(r)}, {s(ptr)}", f"s_mov_b32 {s(r+1)}, {s(ptr+1)}", f"s_mov_b32 {s(r+2)}, {size}", f"s_mov_b32 {s(r+3)}, 0x20000")

def setup(a, endlabel):
    a(f"s_cmp_ge_u32 s2, 256", f"s_cbranch_scc1 {endlabel}")
    a(f"s_and_b32 {s(SB)}, s2, 1", f"s_mul_i32 s3, {s(SB)}, 40", "s_add_u32 s56, s0, s3", "s_addc_u32 s57, s1, 0")
    a("s_load_dwordx2 s[58:59], s[56:57], 0", "s_load_dwordx2 s[60:61], s[56:57], 8", "s_load_dwordx2 s[62:63], s[56:57], 16",
      "s_load_dwordx2 s[64:65], s[56:57], 24", f"s_load_dwordx2 {s(PWO,2)}, s[56:57], 32",
      "s_load_dwordx2 s[66:67], s[0:1], 80", "s_load_dwordx2 s[68:69], s[0:1], 88", "s_load_dwordx2 s[70:71], s[0:1], 96")
    a(f"v_lshrrev_b32 v2, 6, v0", f"v_and_b32 {v(LANE)}, 63, v0")
    a(f"s_bfe_u32 s3, s2, 0x20001", f"s_lshl_b32 s3, s3, 3", f"s_lshr_b32 {s(SQB)}, s2, 5", f"s_add_u32 {s(SQB)}, {s(SQB)}, s3", f"s_bfe_u32 {s(SHG)}, s2, 0x20003")
    a(f"v_readfirstlane_b32 {s(SW)}, v2")
    a(f"s_and_b32 s3, {s(SQB)}, 1", f"s_lshl_b32 s3, s3, 2", f"s_add_u32 {s(SJJ)}, s3, {s(SHG)}")
    a(f"s_lshr_b32 s3, {s(SQB)}, 1", f"s_lshl_b32 {s(SGRP)}, {s(SB)}, 4", f"s_add_u32 {s(SGRP)}, {s(SGRP)}, s3")
    a("s_waitcnt lgkmcnt(0)")
    srd(a, RX, 58, 2048*1152); srd(a, RW, 60, 576*1152)
    a(f"s_bitcmp1_b32 {s(SHG)}, 0", "s_cselect_b64 s[62:63], s[64:65], s[62:63]")
    srd(a, RKW, 62, 576*36)
    a(f"s_lshl_b32 s3, {s(SB)}, 18", "s_add_u32 s72, s70, s3", "s_addc_u32 s73, s71, 0")
    srd(a, RKV, 72, KVB)
    a(f"s_add_u32 s72, s70, {OOFF}", "s_addc_u32 s73, s71, 0")
    srd(a, RO, 72, OBYTES); srd(a, ROUT, 66, OBYTES); srd(a, RDBG, 68, 256)

def dma(a, vaddr, r, soff, ldsaddr_s=None, ldsaddr=None, flags=""):
    if ldsaddr_s is not None: a(f"s_mov_b32 m0, {s(ldsaddr_s)}")
    else: a(f"s_mov_b32 m0, {ldsaddr}")
    a("s_nop 0", f"buffer_load_dwordx4 {v(vaddr)}, {s(r,4)}, {soff} offen{flags} lds")

ACC, ACC2, XF, WF, X16, W16, WST = 16, 32, 48, 64, 80, 88, 100
AX, AW, AWW, AX16, AWR, AXK, AWK, APT = 172, 176, 177, 178, 180, 182, 183, 184

def swz_row(a, dst, row, sel, tmp):
    a(f"v_bfe_u32 {v(tmp)}, {v(row)}, 1, 3", f"v_xor_b32 {v(tmp)}, {v(tmp)}, {v(sel)}", f"v_lshlrev_b32 {v(tmp)}, 4, {v(tmp)}",
      f"v_lshl_add_u32 {v(dst)}, {v(row)}, 7, {v(tmp)}")

def issue_loads(a, do_kv, do_q):
    L = v(LANE)
    a(f"v_lshrrev_b32 v2, 3, {L}", f"v_and_b32 v3, 7, {L}", f"s_lshl_b32 {s(ST)}, {s(SW)}, 2", f"v_lshrrev_b32 v4, 1, v2",
      f"v_add_u32 v4, {s(ST)}, v4", "v_and_b32 v4, 7, v4", "v_xor_b32 v3, v3, v4", "v_lshlrev_b32 v3, 4, v3",
      f"s_movk_i32 {s(ST+1)}, 1152", f"v_mad_u32_u24 v2, v2, {s(ST+1)}, v3")
    a(f"s_lshl_b32 {s(ST)}, {s(SQB)}, 3", f"s_add_u32 {s(ST)}, {s(ST)}, {s(SW)}", f"s_mul_i32 {s(ST)}, {s(ST)}, {8*1152}")
    a(f"s_lshr_b32 {s(ST+1)}, {s(SW)}, 2", f"s_mul_i32 {s(ST+1)}, {s(ST+1)}, 36864", f"s_and_b32 {s(ST+2)}, {s(SW)}, 3", f"s_lshl_b32 {s(ST+2)}, {s(ST+2)}, 10",
      f"s_add_u32 {s(ST+1)}, {s(ST+1)}, {s(ST+2)}")
    if XB: a(f"s_add_u32 {s(ST+1)}, {s(ST+1)}, {XB}")
    for m in range(9):
        dma(a, 2, RX, s(ST), ldsaddr_s=ST+1)
        if m < 8: a(f"s_add_u32 {s(ST)}, {s(ST)}, 128", f"s_add_u32 {s(ST+1)}, {s(ST+1)}, 4096")
    if do_kv:
        a(f"s_and_b32 {s(ST)}, {s(SW)}, 1", f"s_mul_i32 {s(ST)}, {s(ST)}, 72", f"s_lshr_b32 {s(ST+2)}, {s(SW)}, 1", f"s_mul_i32 {s(ST+2)}, {s(ST+2)}, {16*36}",
          f"s_mul_i32 {s(ST+1)}, {s(SW)}, {216*16}", f"s_add_u32 {s(ST+1)}, {s(ST+1)}, {WKVB}", f"s_movk_i32 {s(ST+3)}, 0x5556")
        for n in range(4):
            a(f"v_add_u32 v3, {64*n}, {L}" if n else f"v_mov_b32 v3, {L}")
            a(f"v_mul_u32_u24 v4, {s(ST+3)}, v3", "v_lshrrev_b32 v4, 16, v4")
            a("v_mad_i32_i24 v3, v4, -3, v3")
            a(f"v_add_u32 v4, {s(ST)}, v4", "v_lshrrev_b32 v5, 4, v4", "v_mad_u32_u24 v4, v5, 48, v4")
            a("v_mul_u32_u24 v4, 36, v4", "v_lshl_add_u32 v3, v3, 4, v4")
            if n == 3: a("s_mov_b32 exec_lo, 0xffffff", "s_mov_b32 exec_hi, 0")
            dma(a, 3, RKW, s(ST+2), ldsaddr_s=ST+1)
            if n == 3: a("s_mov_b64 exec, -1")
            else: a(f"s_add_u32 {s(ST+1)}, {s(ST+1)}, 1024")
    if do_q:
        a(f"v_lshrrev_b32 v3, 1, {L}", f"v_lshrrev_b32 v4, 4, {L}", f"v_add_u32 v4, {s(SW)}, v4", "v_and_b32 v4, 1, v4", "v_lshlrev_b32 v4, 2, v4", "v_xor_b32 v3, v3, v4",
          f"v_and_b32 v4, 1, {L}", "v_lshlrev_b32 v4, 4, v4", f"s_movk_i32 {s(ST+3)}, 1152", f"v_mad_u32_u24 v3, v3, {s(ST+3)}, v4")
        a(f"s_mul_i32 {s(ST+4)}, {s(SHG)}, 288", f"s_mul_i32 {s(ST)}, {s(SW)}, {72*1152}", f"s_add_u32 {s(ST)}, {s(ST)}, {s(ST+4)}", f"s_add_u32 {s(ST)}, {s(ST)}, 256",
          f"s_mul_i32 {s(ST+1)}, {s(SW)}, {72*32}", f"s_add_u32 {s(ST+1)}, {s(ST+1)}, {WRB}")
        for n in range(3):
            if n == 2: a("s_mov_b32 exec_lo, 0xffff", "s_mov_b32 exec_hi, 0")
            dma(a, 3, RW, s(ST), ldsaddr_s=ST+1)
            if n == 2: a("s_mov_b64 exec, -1")
            else: a(f"s_add_u32 {s(ST)}, {s(ST)}, {32*1152}", f"s_add_u32 {s(ST+1)}, {s(ST+1)}, 1024")
        a("v_lshrrev_b32 v3, 4, v0", "v_and_b32 v4, 15, v0", "v_lshlrev_b32 v5, 4, v4", f"v_mad_u32_u24 v5, v3, {s(ST+3)}, v5")
        for m in range(18):
            a(f"buffer_load_dwordx4 {v(WST+4*m,4)}, v5, {s(RW,4)}, {s(ST+4)} offen")
            if m < 17: a(f"s_add_u32 {s(ST+4)}, {s(ST+4)}, {32*1152}")
        a("v_and_b32 v6, 3, v3", "v_lshlrev_b32 v6, 2, v6", "v_xor_b32 v4, v4, v6", "v_lshlrev_b32 v4, 4, v4", "v_lshl_add_u32 v4, v3, 8, v4", f"v_add_u32 {v(AWW)}, {WB}, v4")

def lane_fields(a):
    L = v(LANE)
    a(f"v_lshrrev_b32 v6, 5, {L}", f"v_bfe_u32 v7, {L}, 4, 1", f"v_bfe_u32 v8, {L}, 2, 2", f"v_and_b32 v9, 3, {L}", f"v_and_b32 v10, 31, {L}")

def addr_main(a):
    a(f"s_lshr_b32 {s(ST)}, {s(SW)}, 2", f"s_mul_i32 {s(ST)}, {s(ST)}, 36864", f"s_and_b32 {s(ST+1)}, {s(SW)}, 3")
    for r in range(4):
        a(f"v_add_u32 v11, {2*r}, v6")
        swz_row(a, AX+r, 10, 11, 12)
        a(f"v_add_u32 {v(AX+r)}, {s(ST)}, {v(AX+r)}")
    a(f"v_xor_b32 v11, {s(ST+1)}, v8", "v_lshlrev_b32 v11, 6, v11", "v_lshl_add_u32 v11, v7, 5, v11", "v_lshl_add_u32 v11, v9, 3, v11",
      "v_lshl_add_u32 v12, v6, 3, v8", "v_lshl_add_u32 v11, v12, 8, v11", f"v_add_u32 {v(AW)}, {WB}, v11")

def addr_rem(a):
    L = v(LANE)
    a(f"v_and_b32 v11, 15, {L}", f"s_and_b32 {s(ST)}, {s(SW)}, 1", f"s_lshl_b32 {s(ST)}, {s(ST)}, 4", f"v_add_u32 v11, {s(ST)}, v11",
      f"v_lshrrev_b32 v13, 4, {L}", f"s_lshr_b32 {s(ST)}, {s(SW)}, 1", f"s_mul_i32 {s(ST)}, {s(ST)}, 36864")
    for s2 in range(2):
        a(f"v_add_u32 v14, {4*s2}, v13")
        swz_row(a, AX16+s2, 11, 14, 12)
        a(f"v_add_u32 {v(AX16+s2)}, {s(ST)}, {v(AX16+s2)}")
    for a4 in range(2):
        a(f"v_xor_b32 v12, {a4}, v7", "v_lshl_add_u32 v12, v12, 2, v8", "v_lshl_add_u32 v12, v13, 3, v12", "v_lshlrev_b32 v12, 5, v12",
          "v_lshl_add_u32 v12, v9, 3, v12", f"v_add_u32 {v(AWR+a4)}, {WRB}, v12")

def addr_kv(a):
    a(f"s_sub_u32 {s(ST+2)}, {s(SW)}, 4", f"s_lshl_b32 {s(ST)}, {s(ST+2)}, 1", f"v_add_u32 v11, {s(ST)}, v6")
    swz_row(a, AXK, 10, 11, 12)
    a(f"s_lshr_b32 {s(ST)}, {s(SHG)}, 1", f"s_mul_i32 {s(ST)}, {s(ST)}, 36864", f"v_add_u32 {v(AXK)}, {s(ST)}, {v(AXK)}")
    a("v_lshlrev_b32 v11, 3, v9", "v_and_b32 v12, 1, v9", "v_lshlrev_b32 v12, 4, v12", "v_lshrrev_b32 v13, 1, v9", "v_lshl_add_u32 v12, v13, 3, v12")
    a(f"s_bitcmp1_b32 {s(SHG)}, 0", "s_cselect_b64 vcc, -1, 0", "v_cndmask_b32 v11, v12, v11, vcc")
    a("v_cmp_eq_u32 vcc, 1, v7", "s_nop 1", "v_cndmask_b32 v11, v11, 32, vcc")
    a("v_lshl_add_u32 v12, v6, 3, v8", "v_mad_u32_u24 v11, v12, 48, v11", f"s_mul_i32 {s(ST)}, {s(ST+2)}, {144*48}", f"s_add_u32 {s(ST)}, {s(ST)}, {WKVB}",
      f"v_add_u32 {v(AWK)}, {s(ST)}, v11", f"v_lshlrev_b32 v11, 4, {v(LANE)}", f"v_add_u32 {v(APT)}, {s(ST)}, v11")

def kv_compute(a, uid):
    def reads(n):
        st = n & 3
        a(f"ds_read_b128 {v(XF+4*st,4)}, {v(AXK)} offset:{XB + n*4096}",
          f"ds_read_b64_tr_b16 {v(WF+4*st,2)}, {v(AWK)} offset:{n*768}", f"ds_read_b64_tr_b16 {v(WF+4*st+2,2)}, {v(AWK)} offset:{n*768+192}")
    for typ in ("K", "V"):
        if typ == "K": a(f"s_bitcmp1_b32 {s(SHG)}, 0", f"s_cbranch_scc1 L_kvV{uid}")
        else: a.label(f"L_kvV{uid}")
        for n in range(4): reads(n)
        for n in range(9):
            st = n & 3
            rem = min(8, n+3) - n
            a(f"s_waitcnt lgkmcnt({3*rem})")
            A, B = (WF+4*st, XF+4*st) if typ == "K" else (XF+4*st, WF+4*st)
            a(f"v_mfma_f32_32x32x16_bf16 {v(ACC2,16)}, {v(A,4)}, {v(B,4)}, {'0' if n == 0 else v(ACC2,16)}")
            if n + 4 < 9: reads(n+4)
        if typ == "K": a(f"s_branch L_kvD{uid}")
    a.label(f"L_kvD{uid}")
    a("s_nop 7", "s_nop 3")
    for qd in range(4): a(f"ds_write_b128 {v(APT)}, {v(ACC2+4*qd,4)} offset:{qd*1024}")

def kv_finalize(a, uid, flags):
    L = v(LANE)
    a(f"s_cmp_ge_u32 {s(SW)}, 6", f"s_cbranch_scc1 L_kvF{uid}")
    a(f"s_sub_u32 {s(ST+2)}, {s(SW)}, 4", f"s_lshl_b32 {s(ST)}, {s(ST+2)}, 11", f"s_add_u32 {s(ST)}, {s(ST)}, {WKVB}", f"v_lshlrev_b32 v11, 4, {L}", f"v_add_u32 v11, {s(ST)}, v11")
    for p in range(4):
        a(f"ds_read_b128 {v(XF+8*p,4)}, v11 offset:{p*6912}", f"ds_read_b128 {v(XF+8*p+4,4)}, v11 offset:{p*6912+1024}")
    a(f"s_lshr_b32 {s(ST)}, {s(SHG)}, 1", f"s_lshl_b32 {s(ST+1)}, {s(SQB)}, 1", f"s_add_u32 {s(ST)}, {s(ST)}, {s(ST+1)}",
      f"s_lshr_b32 {s(ST+1)}, {s(ST)}, 2", f"s_mul_i32 {s(ST+1)}, {s(ST+1)}, {BLK}", f"s_and_b32 {s(ST)}, {s(ST)}, 3",
      f"s_mul_i32 {s(ST+3)}, {s(ST)}, {STEPB}", f"s_add_u32 {s(ST+3)}, {s(ST+3)}, {s(ST+1)}", f"s_add_u32 {s(ST+3)}, {s(ST+3)}, 512")
    a("s_waitcnt lgkmcnt(0)")
    for r in range(8):
        a(f"v_add_f32 {v(XF+r)}, {v(XF+r)}, {v(XF+8+r)}", f"v_add_f32 {v(XF+16+r)}, {v(XF+16+r)}, {v(XF+24+r)}")
    for r in range(8): a(f"v_add_f32 {v(XF+r)}, {v(XF+r)}, {v(XF+16+r)}")
    a(f"s_bitcmp1_b32 {s(SHG)}, 0", f"s_cbranch_scc1 L_kvFV{uid}")
    a(f"s_mov_b32 {s(ST+4)}, {fbits(SCALE)}")
    for r in range(8): a(f"v_mul_f32 {v(XF+r)}, {s(ST+4)}, {v(XF+r)}")
    for r in range(4): a(f"v_cvt_pk_bf16_f32 {v(XF+8+r)}, {v(XF+2*r)}, {v(XF+2*r+1)}")
    a("v_and_b32 v11, 0x13, v10", "v_bfe_u32 v12, v10, 2, 1", "v_lshl_or_b32 v11, v12, 3, v11", "v_bfe_u32 v12, v10, 3, 1", "v_lshl_or_b32 v11, v12, 2, v11")
    a(f"s_cmp_eq_u32 {s(SW)}, 4", f"s_cbranch_scc0 L_kvK2{uid}")
    a("v_lshl_add_u32 v11, v6, 5, v11", "v_lshlrev_b32 v11, 4, v11", f"buffer_store_dwordx4 {v(XF+8,4)}, v11, {s(RKV,4)}, {s(ST+3)} offen{flags}", f"s_branch L_kvF{uid}")
    a.label(f"L_kvK2{uid}")
    a("v_lshlrev_b32 v11, 4, v11", f"s_lshl_b32 {s(ST)}, {s(ST)}, 2", f"s_add_u32 {s(ST+1)}, {s(ST+1)}, {s(ST)}", "s_mov_b32 exec_hi, 0",
      f"buffer_store_dword {v(XF+8)}, v11, {s(RKV,4)}, {s(ST+1)} offen{flags}", "s_mov_b64 exec, -1", f"s_branch L_kvF{uid}")
    a.label(f"L_kvFV{uid}")
    for r in range(4): a(f"v_cvt_pk_bf16_f32 {v(XF+8+r)}, {v(XF+2*r)}, {v(XF+2*r+1)}")
    a("v_cmp_eq_u32 vcc, 18, v10", "v_mov_b32 v12, 0x3f803f80", f"s_movk_i32 {s(ST)}, {VH}")
    for r in range(4): a(f"v_cndmask_b32 {v(XF+8+r)}, {v(XF+8+r)}, v12, vcc")
    a("v_lshlrev_b32 v11, 4, v10", f"v_mad_u32_u24 v11, v6, {s(ST)}, v11", f"s_mul_i32 {s(ST+2)}, {s(ST+2)}, {2*VH}", f"s_add_u32 {s(ST+3)}, {s(ST+3)}, {s(ST+2)}",
      "s_mov_b32 exec_lo, 0x7ffff", "s_mov_b32 exec_hi, 0x7ffff",
      f"buffer_store_dwordx4 {v(XF+8,4)}, v11, {s(RKV,4)}, {s(ST+3)} offen offset:1024{flags}", "s_mov_b64 exec, -1")
    a.label(f"L_kvF{uid}")

def w_write(a, j):
    a(f"s_waitcnt vmcnt({16-2*j})")
    for hlf in range(2):
        a(f"ds_write_b128 {v(AWW)}, {v(WST+8*j+4*hlf,4)} offset:{(j&1)*16384 + hlf*8192}")

def q_chunk(a, j, rem):
    sl = (j & 1) * 16384
    for st in range(4):
        a(f"ds_read_b128 {v(XF+4*st,4)}, {v(AX+st)} offset:{XB + j*4096}",
          f"ds_read_b64_tr_b16 {v(WF+4*st,2)}, {v(AW)} offset:{sl + st*4096}", f"ds_read_b64_tr_b16 {v(WF+4*st+2,2)}, {v(AW)} offset:{sl + st*4096 + 1024}")
    def mf(st):
        a(f"v_mfma_f32_32x32x16_bf16 {v(ACC,16)}, {v(WF+4*st,4)}, {v(XF+4*st,4)}, {'0' if (j == 0 and st == 0) else v(ACC,16)}")
    def rr(s2):
        a(f"ds_read_b128 {v(X16+4*s2,4)}, {v(AX16+s2)} offset:{XB + j*4096}",
          f"ds_read_b64_tr_b16 {v(W16+4*s2,2)}, {v(AWR)} offset:{j*2048 + s2*1024}", f"ds_read_b64_tr_b16 {v(W16+4*s2+2,2)}, {v(AWR+1)} offset:{j*2048 + s2*1024}")
    def mr(s2):
        a(f"v_mfma_f32_16x16x32_bf16 {v(ACC2,4)}, {v(W16+4*s2,4)}, {v(X16+4*s2,4)}, {'0' if (j == 0 and s2 == 0) else v(ACC2,4)}")
    if not rem:
        for st in range(4):
            a(f"s_waitcnt lgkmcnt({9-3*st})"); mf(st)
    else:
        a("s_waitcnt lgkmcnt(9)"); mf(0); rr(0)
        a("s_waitcnt lgkmcnt(9)"); mf(1); rr(1)
        a("s_waitcnt lgkmcnt(9)"); mf(2)
        a("s_waitcnt lgkmcnt(6)"); mf(3)
        a("s_waitcnt lgkmcnt(3)"); mr(0)
        a("s_waitcnt lgkmcnt(0)"); mr(1)

def q_publish(a, rem):
    a(f"s_lshr_b32 {s(ST)}, {s(SW)}, 2", f"s_mul_i32 {s(ST)}, {s(ST)}, {32*QS}", f"s_and_b32 {s(ST+1)}, {s(SW)}, 3", f"s_lshl_b32 {s(ST+1)}, {s(ST+1)}, 6",
      f"s_add_u32 {s(ST)}, {s(ST)}, {s(ST+1)}", f"s_add_u32 {s(ST)}, {s(ST)}, {QX}", f"s_movk_i32 {s(ST+2)}, {QS}",
      f"v_lshl_add_u32 v11, v6, 3, {s(ST)}", f"v_mad_u32_u24 v11, v10, {s(ST+2)}, v11")
    if rem:
        a(f"s_mul_i32 {s(ST)}, {s(SW)}, {16*QS}", f"s_add_u32 {s(ST)}, {s(ST)}, {QX + 256}", f"v_lshrrev_b32 v12, 4, {v(LANE)}", f"v_lshl_add_u32 v12, v12, 3, {s(ST)}",
          f"v_and_b32 v13, 15, {v(LANE)}", f"v_mad_u32_u24 v12, v13, {s(ST+2)}, v12")
    else: a("s_nop 3")
    for r in range(8): a(f"v_cvt_pk_bf16_f32 {v(XF+r)}, {v(ACC+2*r)}, {v(ACC+2*r+1)}")
    for q in range(4): a(f"ds_write_b64 v11, {v(XF+2*q,2)} offset:{16*q}")
    if rem:
        for r in range(2): a(f"v_cvt_pk_bf16_f32 {v(XF+8+r)}, {v(ACC2+2*r)}, {v(ACC2+2*r+1)}")
        a(f"ds_write_b64 v12, {v(XF+8,2)}")

def prologue(a, do_kv, do_q, kvflags=""):
    issue_loads(a, do_kv, do_q)
    lane_fields(a)
    if do_q: addr_main(a)
    a(f"s_cmp_ge_u32 {s(SW)}, 4", "s_cbranch_scc1 L_role1")
    for role in (0, 1):
        if role == 1: a.label("L_role1")
        if role == 0 and do_q: addr_rem(a)
        if role == 1 and do_kv: addr_kv(a)
        if do_q: w_write(a, 0)
        else: a("s_waitcnt vmcnt(0)")
        a("s_waitcnt lgkmcnt(0)", "s_barrier")
        if not do_q:
            if role == 1: kv_compute(a, "p"); a("s_waitcnt lgkmcnt(0)")
            a("s_barrier")
            if role == 1: kv_finalize(a, "p", kvflags)
        else:
            for j in range(9):
                if role == 1 and do_kv and j == 0: kv_compute(a, "p")
                if role == 1 and do_kv and j == 1: kv_finalize(a, "p", kvflags)
                if role == 1 and do_kv and j == 0: a("s_waitcnt lgkmcnt(0)")
                q_chunk(a, j, role == 0)
                if j < 8:
                    w_write(a, j+1)
                    a("s_waitcnt lgkmcnt(0)", "s_barrier")
            q_publish(a, role == 0)
        if role == 0: a("s_branch L_pro_done")
    a.label("L_pro_done")

IDX, AK1, AK2, AV = 2, 3, 4, 5
S = [16, 32, 48, 64]; O = [80, 96, 112, 128]; Q1 = [144, 148, 152, 156]; Q2 = [160, 164]
K1 = [168, 172]; K2 = 176; V = [[180, 184], [188, 192]]; MX = 196

def kv_dma_setup(a):
    a(f"v_lshlrev_b32 v15, 4, {v(LANE)}", f"s_lshr_b32 {s(ST)}, {s(SW)}, 2", f"s_mul_i32 {s(ST)}, {s(ST)}, {8*BLK}", f"s_and_b32 {s(ST+1)}, {s(SW)}, 3",
      f"s_lshl_b32 {s(ST+1)}, {s(ST+1)}, 10", f"s_add_u32 {s(ST)}, {s(ST)}, {s(ST+1)}")
def kv_dma(a, n, flags=""):
    for i in range(n):
        dma(a, 15, RKV, s(ST), ldsaddr_s=ST, flags=flags)
        a(f"s_add_u32 {s(ST)}, {s(ST)}, 4096")

def attn_addr(a):
    L = v(LANE)
    a(f"s_lshr_b32 {s(ST+2)}, {s(SW)}, 2", f"s_mul_i32 {s(ST+2)}, {s(ST+2)}, {8*BLK}")
    a(f"v_lshl_add_u32 {v(AK1)}, {L}, 4, {s(ST+2)}", f"v_lshl_add_u32 {v(AK2)}, v10, 4, {s(ST+2)}")
    a("v_and_b32 v11, 0x13, v10", "v_bfe_u32 v12, v10, 2, 1", "v_lshl_or_b32 v11, v12, 3, v11", "v_bfe_u32 v12, v10, 3, 1", "v_lshl_or_b32 v11, v12, 2, v11")
    a("v_mov_b32 v12, 0x4000", "v_cmp_lt_u32 vcc, 16, v10", "s_nop 1", "v_cndmask_b32 v11, v11, v12, vcc")
    a("v_cmp_eq_u32 vcc, 20, v10", "s_nop 1", "v_cndmask_b32 v11, v11, 17, vcc")
    a("v_and_b32 v12, 0x1b, v10", "v_cmp_eq_u32 vcc, 17, v12", "s_nop 1", "v_cndmask_b32 v11, v11, 18, vcc")
    a(f"s_movk_i32 {s(ST+3)}, {VH}", f"v_lshl_add_u32 v11, v11, 4, {s(ST+2)}", f"v_mad_u32_u24 {v(AV)}, v6, {s(ST+3)}, v11", f"v_mov_b32 {v(IDX)}, 0xdddddddd")

def q_fetch(a):
    a(f"s_and_b32 {s(ST+3)}, {s(SW)}, 3", f"s_mul_i32 {s(ST+3)}, {s(ST+3)}, 72", f"s_add_u32 {s(ST+3)}, {s(ST+3)}, {QX}", f"s_movk_i32 {s(ST+4)}, {QS}",
      f"v_mov_b32 v12, {s(ST+3)}", f"v_mad_u32_u24 v12, v10, {s(ST+4)}, v12", "v_lshl_add_u32 v13, v6, 4, v12", f"v_add_u32 v14, {32*QS}, v13", "v_mad_u32_u24 v12, v6, 36, v12")
    for t in range(4):
        base = 13 + (t >> 1); o = 9*(t & 1)
        a(f"ds_read2_b32 {v(Q1[t],2)}, {v(base)} offset0:{o} offset1:{o+1}", f"ds_read2_b32 {v(Q1[t]+2,2)}, {v(base)} offset0:{o+2} offset1:{o+3}")
    for p in range(2):
        a(f"ds_read_b32 {v(Q2[p])}, v12 offset:{32 + p*32*QS}", f"ds_read_b32 {v(Q2[p]+3)}, v12 offset:{32 + p*32*QS}")
        a(f"v_mov_b32 {v(Q2[p]+1)}, 0", f"v_mov_b32 {v(Q2[p]+2)}, 0")

def E(t, x, y, sub):
    out = []
    for i in range(x, y):
        if sub: out.append(f"v_sub_f32 {v(S[t]+i)}, {v(S[t]+i)}, {v(MX+t)}")
        out.append(f"v_exp_f32 {v(S[t]+i)}, {v(S[t]+i)}")
    return out
pvhi = lambda t, vb: [f"v_smfmac_f32_32x32x32_bf16 {v(O[t],16)}, {v(V[vb][1],4)}, {v(S[t]+8,8)}, {v(IDX)}"]
pvlo = lambda t, vb: [f"v_smfmac_f32_32x32x32_bf16 {v(O[t],16)}, {v(V[vb][0],4)}, {v(S[t],8)}, {v(IDX)}"]
qk1 = lambda t, kb: [f"v_mfma_f32_32x32x16_bf16 {v(S[t],16)}, {v(K1[kb],4)}, {v(Q1[t],4)}, 0"]
q2b = lambda t, sg: [f"v_mfma_f32_32x32x4bf16_1k {v(S[t],32)}, {v(K2 + (sg & 2),2)}, {v(Q2[t>>1] + 2*(sg & 1),2)}, {v(S[t],32)}"]

def attn_step(sg, sub, prio=None):
    b = sg & 1; nb = b ^ 1
    off = 512 + (sg+1)*STEPB if sg < 3 else BLK + 512
    k1 = [f"ds_read_b128 {v(K1[nb],4)}, {v(AK1)} offset:{off}"]
    v0 = [f"ds_read_b128 {v(V[nb][0],4)}, {v(AV)} offset:{off+1024}"]
    v1 = [f"ds_read_b128 {v(V[nb][1],4)}, {v(AV)} offset:{off+1024+2*VH}"]
    k2 = []
    if sg == 0: k2 = [f"ds_read_b64 {v(K2+2,2)}, {v(AK2)} offset:8"]
    if sg == 2: k2 = [f"ds_read_b64 {v(K2,2)}, {v(AK2)} offset:{BLK}"]
    w = ["s_waitcnt lgkmcnt(0)"]
    P = (lambda k: [f"s_setprio {prio[k]}"] if prio and k in prio else [])
    L = P((sg, 0))
    L += E(0,0,2,sub) + pvhi(3, nb) + E(0,2,4,sub) + k1 + E(0,4,5,sub) + qk1(3, b) + E(0,5,8,sub) + v0 + E(0,8,10,sub) + pvlo(0, b) + E(0,10,12,sub) + v1 + E(0,12,14,sub) + q2b(2, sg) + E(0,14,16,sub) + k2
    L += P((sg, 1))
    L += E(1,0,6,sub) + pvhi(0, b) + E(1,6,9,sub) + w + qk1(0, nb) + E(1,9,12,sub) + pvlo(1, b) + E(1,12,16,sub)
    L += P((sg, 2))
    L += E(2,0,2,sub) + pvhi(1, b) + E(2,2,5,sub) + qk1(1, nb) + E(2,5,10,sub) + pvlo(2, b) + E(2,10,14,sub) + q2b(0, (sg+1) & 3) + E(2,14,16,sub)
    L += P((sg, 3))
    L += E(3,0,6,sub) + pvhi(2, b) + E(3,6,9,sub) + qk1(2, nb) + E(3,9,12,sub) + pvlo(3, b) + E(3,12,16,sub)
    return L

def attn_first_frags(a):
    a(f"ds_read_b128 {v(K1[0],4)}, {v(AK1)} offset:512", f"ds_read_b64 {v(K2,2)}, {v(AK2)}",
      f"ds_read_b128 {v(V[0][0],4)}, {v(AV)} offset:{512+1024}", f"ds_read_b128 {v(V[0][1],4)}, {v(AV)} offset:{512+1024+2*VH}")

def attn_loop(a, uid, sub, prio=None):
    a("s_waitcnt lgkmcnt(0)")
    a(qk1(0, 0), qk1(1, 0), qk1(2, 0), "s_nop 7", "s_nop 0", q2b(0, 0), f"s_mov_b32 {s(SIT)}, 0", "s_nop 15", "s_nop 2")
    a(".p2align 6")
    a.label(f"L_att{uid}")
    for sg in range(4): a(attn_step(sg, sub, prio))
    a(f"v_add_u32 {v(AK1)}, {BLK}, {v(AK1)}", f"v_add_u32 {v(AK2)}, {BLK}, {v(AK2)}", f"v_add_u32 {v(AV)}, {BLK}, {v(AV)}")
    a(f"s_add_u32 {s(SIT)}, {s(SIT)}, 1", f"s_cmp_eq_u32 {s(SIT)}, 1", f"s_cbranch_scc1 L_attb{uid}", f"s_cmp_lt_u32 {s(SIT)}, 8", f"s_cbranch_scc1 L_att{uid}", f"s_branch L_atte{uid}")
    a.label(f"L_attb{uid}")
    a("s_waitcnt vmcnt(0)", "s_barrier", f"s_branch L_att{uid}")
    a.label(f"L_atte{uid}")
    a(pvhi(3, 1))

def zero_acc(a):
    for r in range(64): a(f"v_mov_b32 {v(O[0]+r)}, 0")
    for r in range(8): a(f"v_mov_b32 {v(S[3]+8+r)}, 0")
    for r in range(4): a(f"v_mov_b32 {v(V[1][1]+r)}, 0")

def max_pass(a):
    a("s_waitcnt vmcnt(0)", "s_barrier")
    for t in range(4): a(f"v_mov_b32 {v(MX+t)}, 0xff800000")
    a(f"s_mov_b32 {s(SIT)}, 0")
    a.label("L_mx")
    a(f"ds_read_b128 {v(K2,4)}, {v(AK2)}")
    for sg in range(4):
        a(f"ds_read_b128 {v(K1[0],4)}, {v(AK1)} offset:{512 + sg*STEPB}", "s_waitcnt lgkmcnt(0)")
        for t in range(4): a(qk1(t, 0))
        a("s_nop 9", q2b(0, sg), q2b(2, sg), "s_nop 15", "s_nop 3")
        for t in range(4):
            for r in range(8): a(f"v_max3_f32 {v(MX+t)}, {v(S[t]+2*r)}, {v(S[t]+2*r+1)}, {v(MX+t)}")
    a(f"v_add_u32 {v(AK1)}, {BLK}, {v(AK1)}", f"v_add_u32 {v(AK2)}, {BLK}, {v(AK2)}")
    a(f"s_add_u32 {s(SIT)}, {s(SIT)}, 1", f"s_cmp_lt_u32 {s(SIT)}, 8", "s_cbranch_scc1 L_mx")
    a(f"v_subrev_u32 {v(AK1)}, {8*BLK}, {v(AK1)}", f"v_subrev_u32 {v(AK2)}, {8*BLK}, {v(AK2)}")
    a(f"v_lshlrev_b32 v11, 4, v0", f"v_add_u32 v11, {KVB + 2048}, v11", f"ds_write_b128 v11, {v(MX,4)}", "s_waitcnt lgkmcnt(0)", "s_barrier")
    a(f"v_xor_b32 v12, 32, v0", "v_xor_b32 v13, 0x100, v0", "v_xor_b32 v14, 0x120, v0")
    for i in range(3): a(f"v_lshlrev_b32 {v(12+i)}, 4, {v(12+i)}", f"v_add_u32 {v(12+i)}, {KVB + 2048}, {v(12+i)}", f"ds_read_b128 {v(S[0]+4*i,4)}, {v(12+i)}")
    a("s_waitcnt lgkmcnt(0)")
    for t in range(4): a(f"v_max3_f32 {v(MX+t)}, {v(MX+t)}, {v(S[0]+t)}, {v(S[0]+4+t)}", f"v_max_f32 {v(MX+t)}, {v(MX+t)}, {v(S[0]+8+t)}")

FLAGA = KVB + 10240
def attn_epilogue(a, uid, check_range, oflags, after_barrier=None):
    L = v(LANE)
    a("s_nop 7")
    if check_range:
        a(f"s_mov_b32 {s(ST)}, 0x21800000", f"s_mov_b32 {s(ST+1)}, 0x5d800000", f"s_mov_b32 {s(ST+2)}, 0x7e800000", "s_nop 0")
        a(f"v_min3_f32 v11, {v(O[0]+9)}, {v(O[1]+9)}, {v(O[2]+9)}", f"v_max3_f32 v12, {v(O[0]+9)}, {v(O[1]+9)}, {v(O[2]+9)}",
          f"v_min_f32 v11, v11, {v(O[3]+9)}", f"v_max_f32 v12, v12, {v(O[3]+9)}")
        a(f"v_add_f32 v13, abs({v(O[0])}), abs({v(O[1])})", f"v_add_f32 v14, abs({v(O[2])}), abs({v(O[3])})")
        for r in range(1, 10):
            for t in range(0, 4, 2):
                a(f"v_add_f32 v13, abs({v(O[t]+r)}), v13", f"v_add_f32 v14, abs({v(O[t+1]+r)}), v14")
        a("v_add_f32 v13, v13, v14", f"v_cmp_nle_f32 vcc, {s(ST)}, v11", f"v_cmp_nge_f32 {s(ST+4,2)}, {s(ST+1)}, v12", f"v_cmp_nge_f32 {s(ST+6,2)}, {s(ST+2)}, v13", "s_nop 0",
          f"s_or_b64 vcc, vcc, {s(ST+4,2)}", f"s_or_b64 vcc, vcc, {s(ST+6,2)}", "s_cmp_lg_u64 vcc, 0", f"s_cselect_b32 {s(ST)}, 1, 0", f"v_mov_b32 v11, {s(ST)}",
          f"s_lshl_b32 {s(ST+1)}, {s(SW)}, 2", f"s_add_u32 {s(ST+1)}, {s(ST+1)}, {FLAGA}", f"v_mov_b32 v12, {s(ST+1)}", "ds_write_b32 v12, v11")
    else: a("s_nop 3")
    a(f"s_mul_i32 {s(ST)}, {s(SW)}, 6144", f"v_lshl_add_u32 v13, {L}, 4, {s(ST)}", f"s_xor_b32 {s(ST+1)}, {s(SW)}, 4", f"s_mul_i32 {s(ST+1)}, {s(ST+1)}, 6144", f"v_lshl_add_u32 v14, {L}, 4, {s(ST+1)}")
    a("s_waitcnt lgkmcnt(0)", "s_barrier")
    if check_range:
        a(f"v_mov_b32 v12, {FLAGA}", f"ds_read_b128 {v(S[2],4)}, v12", f"ds_read_b128 {v(S[2]+4,4)}, v12 offset:16", "s_waitcnt lgkmcnt(0)",
          f"v_or3_b32 v11, {v(S[2])}, {v(S[2]+1)}, {v(S[2]+2)}", f"v_or3_b32 v11, v11, {v(S[2]+3)}, {v(S[2]+4)}", f"v_or3_b32 v11, v11, {v(S[2]+5)}, {v(S[2]+6)}", f"v_or_b32 v11, v11, {v(S[2]+7)}",
          "s_nop 0", f"v_readfirstlane_b32 {s(ST)}, v11", "s_nop 1", f"s_cmp_lg_u32 {s(ST)}, 0", "s_cbranch_scc1 L_fallback")
    if after_barrier: after_barrier(a)
    a(f"s_and_b32 {s(ST)}, {s(SQB)}, 1", f"s_lshl_b32 {s(ST)}, {s(ST)}, 1", f"s_lshr_b32 {s(ST+1)}, {s(SW)}, 2", f"s_add_u32 {s(ST)}, {s(ST)}, {s(ST+1)}",
      f"s_lshl_b32 {s(ST+1)}, {s(SGRP)}, 2", f"s_add_u32 {s(ST)}, {s(ST)}, {s(ST+1)}", f"s_mul_i32 {s(ST)}, {s(ST)}, 36", f"s_mul_i32 {s(ST+1)}, {s(SHG)}, 9", f"s_add_u32 {s(ST)}, {s(ST)}, {s(ST+1)}",
      f"s_lshl_b32 {s(ST)}, {s(ST)}, 10", f"s_and_b32 {s(ST+1)}, {s(SW)}, 3", f"s_lshl_b32 {s(ST+2)}, {s(ST+1)}, 2", f"s_add_u32 {s(ST+2)}, {s(ST+2)}, {s(ST)}", f"s_add_u32 {s(ST+2)}, {s(ST+2)}, 8192",
      f"s_lshl_b32 {s(ST+1)}, {s(ST+1)}, 11", f"s_add_u32 {s(ST)}, {s(ST)}, {s(ST+1)}", f"v_lshlrev_b32 v15, 4, {L}")
    a(f"s_cmp_ge_u32 {s(SW)}, 4", f"s_cbranch_scc1 L_ep1{uid}")
    for kh in (0, 1):
        if kh: a.label(f"L_ep1{uid}")
        for hh in range(2):
            for q in range(3): a(f"ds_write_b128 v13, {v(O[2*(1-kh)+hh]+4*q,4)} offset:{hh*3072 + q*1024}")
        a("s_waitcnt lgkmcnt(0)", "s_barrier")
        for hh in range(2):
            for q in range(3): a(f"ds_read_b128 {v(S[hh]+4*q,4)}, v14 offset:{hh*3072 + q*1024}")
        for hh in range(2):
            T = O[2*kh+hh]
            a(f"s_waitcnt lgkmcnt({3-3*hh})")
            for r in (9, 0, 1, 2, 3, 4, 5, 6, 7, 8):
                a(f"v_add_f32 {v(T+r)}, {v(T+r)}, {v(S[hh]+r)}")
                if r == 0: a(f"v_rcp_f32 {v(T+9)}, {v(T+9)}")
            for r in range(9): a(f"v_mul_f32 {v(T+r)}, {v(T+r)}, {v(T+9)}")
            for r in range(4): a(f"v_cvt_pk_bf16_f32 {v(S[2]+4*hh+r)}, {v(T+2*r)}, {v(T+2*r+1)}")
            a(f"buffer_store_dwordx4 {v(S[2]+4*hh,4)}, v15, {s(RO,4)}, {s(ST)} offen offset:{1024*hh}{oflags}")
        a(f"v_cvt_pk_bf16_f32 {v(S[2]+8)}, {v(O[2*kh]+8)}, {v(O[2*kh+1]+8)}", f"buffer_store_dword {v(S[2]+8)}, v15, {s(RO,4)}, {s(ST+2)} offen{oflags}")
        if kh == 0: a(f"s_branch L_ep2{uid}")
    a.label(f"L_ep2{uid}")

def attention(a, kvflags, oflags, wait_kv=None, after_barrier=None, prio=None):
    kv_dma_setup(a); attn_addr(a)
    if wait_kv: wait_kv(a)
    a("s_waitcnt lgkmcnt(0)", "s_barrier")
    kv_dma(a, 3, kvflags)
    q_fetch(a)
    zero_acc(a)
    a("s_waitcnt vmcnt(0) lgkmcnt(0)", "s_barrier")
    attn_first_frags(a)
    kv_dma(a, 16, kvflags)
    if prio:
        a(f"s_cmp_ge_u32 {s(SW)}, 4", "s_cbranch_scc1 L_attB")
        attn_loop(a, "A", False, prio[0]); a("s_setprio 0", "s_branch L_attD")
        a.label("L_attB"); a("s_setprio 1")
        attn_loop(a, "B", False, prio[1]); a("s_setprio 0")
        a.label("L_attD")
    else:
        attn_loop(a, "A", False)
    attn_epilogue(a, "f", True, oflags, after_barrier)

def fallback(a, kvflags, oflags, after_barrier, back):
    a.label("L_fallback")
    a(f"v_subrev_u32 {v(AK1)}, {8*BLK}, {v(AK1)}", f"v_subrev_u32 {v(AK2)}, {8*BLK}, {v(AK2)}", f"v_subrev_u32 {v(AV)}, {8*BLK}, {v(AV)}")
    max_pass(a)
    zero_acc(a)
    attn_first_frags(a)
    attn_loop(a, "S", True)
    attn_epilogue(a, "s", False, oflags, after_barrier)
    a(f"s_branch {back}")

BF, AF, D0, DX = 16, 88, 136, 168
A0, A1, AXT = 2, 3, 4
def wo_dma(a):
    L = v(LANE)
    srd(a, RW, PWO, 576*1152)
    a(f"v_lshrrev_b32 v2, 3, {L}", f"v_and_b32 v3, 7, {L}", f"v_bfe_u32 v4, {L}, 4, 1", "v_lshlrev_b32 v4, 2, v4", "v_xor_b32 v3, v3, v4", "v_lshlrev_b32 v3, 4, v3",
      f"s_movk_i32 {s(ST+4)}, 1152", f"s_movk_i32 {s(ST+5)}, {18*1152}", f"v_mad_u32_u24 v4, v2, {s(ST+5)}, v3", f"v_mad_u32_u24 v3, v2, {s(ST+4)}, v3")
    a(f"s_lshr_b32 {s(ST+2)}, {s(SW)}, 1", f"s_and_b32 {s(ST+3)}, {s(SW)}, 1", f"s_mul_i32 {s(ST+6)}, {s(ST+2)}, {144*1152}", f"s_lshl_b32 {s(ST)}, {s(SJJ)}, 7", f"s_add_u32 {s(ST+7)}, {s(ST+6)}, {s(ST)}",
      f"s_mul_i32 {s(ST)}, {s(ST+3)}, {8*1152}", f"s_add_u32 {s(ST)}, {s(ST)}, {s(ST+7)}",
      f"s_mul_i32 {s(ST+1)}, {s(ST+2)}, {9*2048}", f"s_lshl_b32 {s(ST+8)}, {s(ST+3)}, 10", f"s_add_u32 {s(ST+1)}, {s(ST+1)}, {s(ST+8)}", f"s_add_u32 {s(ST+1)}, {s(ST+1)}, {WOM}")
    for ff in range(8):
        dma(a, 3, RW, s(ST), ldsaddr_s=ST+1)
        a(f"s_add_u32 {s(ST)}, {s(ST)}, {18*1152}", f"s_add_u32 {s(ST+1)}, {s(ST+1)}, 2048")
    a(f"s_mul_i32 {s(ST)}, {s(ST+3)}, 1152", f"s_add_u32 {s(ST)}, {s(ST)}, {s(ST+7)}", f"s_add_u32 {s(ST)}, {s(ST)}, {16*1152}")
    dma(a, 4, RW, s(ST), ldsaddr_s=ST+1)
    a(f"v_lshrrev_b32 v2, 2, {L}", f"v_and_b32 v3, 3, {L}", "v_lshlrev_b32 v3, 4, v3", "v_and_b32 v4, 7, v2", f"v_mad_u32_u24 v4, v4, {s(ST+5)}, v3", f"v_lshrrev_b32 v5, 5, {L}",
      f"v_mad_u32_u24 v4, v5, {s(ST+4)}, v4", f"v_mad_u32_u24 v3, v2, {s(ST+4)}, v3")
    a(f"s_lshr_b32 {s(ST)}, {s(SJJ)}, 2", f"s_lshl_b32 {s(ST)}, {s(ST)}, 6", f"s_add_u32 {s(ST+6)}, {s(ST+6)}, {s(ST)}", f"s_add_u32 {s(ST+6)}, {s(ST+6)}, 1024",
      f"s_mul_i32 {s(ST)}, {s(ST+3)}, {18*1152}", f"s_add_u32 {s(ST)}, {s(ST)}, {s(ST+6)}",
      f"s_mul_i32 {s(ST+7)}, {s(ST+2)}, {9*1024}", f"s_add_u32 {s(ST+7)}, {s(ST+7)}, {WOX}", f"s_add_u32 {s(ST+1)}, {s(ST+7)}, {s(ST+8)}")
    for n in range(4):
        dma(a, 3, RW, s(ST), ldsaddr_s=ST+1)
        if n < 3: a(f"s_add_u32 {s(ST)}, {s(ST)}, {36*1152}", f"s_add_u32 {s(ST+1)}, {s(ST+1)}, 2048")
    a(f"s_cmp_eq_u32 {s(ST+3)}, 0", f"s_cbranch_scc0 L_wox{a.uid}", f"s_add_u32 {s(ST)}, {s(ST+6)}, {16*1152}", f"s_add_u32 {s(ST+1)}, {s(ST+7)}, 8192")
    dma(a, 4, RW, s(ST), ldsaddr_s=ST+1)
    a.label(f"L_wox{a.uid}"); a.uid += 1

def oproj(a, oflags, wait_o=None):
    L = v(LANE)
    a(f"s_lshr_b32 {s(ST+2)}, {s(SW)}, 1", f"s_and_b32 {s(ST+3)}, {s(SW)}, 1")
    a(f"s_lshl_b32 {s(ST)}, {s(SGRP)}, 2", f"s_add_u32 {s(ST)}, {s(ST)}, {s(ST+2)}", f"s_mul_i32 {s(ST)}, {s(ST)}, 36", f"s_mul_i32 {s(ST+1)}, {s(ST+3)}, 18", f"s_add_u32 {s(ST)}, {s(ST)}, {s(ST+1)}",
      f"s_lshl_b32 {s(ST)}, {s(ST)}, 10", f"v_lshlrev_b32 v15, 4, {L}")
    if wait_o: wait_o(a)
    for fi in range(18):
        a(f"buffer_load_dwordx4 {v(BF+4*fi,4)}, v15, {s(RO,4)}, {s(ST)} offen offset:{1024*(fi&3)}{oflags}")
        if fi & 3 == 3: a(f"s_add_u32 {s(ST)}, {s(ST)}, 4096")
    lane_fields(a)
    a("v_and_b32 v11, 1, v9", "v_lshlrev_b32 v11, 5, v11", "v_lshl_add_u32 v11, v7, 4, v11", "v_lshrrev_b32 v12, 1, v9", "v_lshl_add_u32 v11, v12, 3, v11", "v_lshl_add_u32 v12, v6, 3, v8")
    a(f"s_mul_i32 {s(ST)}, {s(ST+3)}, {18*1024}", f"s_add_u32 {s(ST+1)}, {s(ST)}, {WOX}", f"v_lshl_add_u32 v13, v12, 6, v11", f"v_add_u32 {v(AXT)}, {s(ST+1)}, v13",
      f"s_lshl_b32 {s(ST)}, {s(ST)}, 1", f"s_add_u32 {s(ST)}, {s(ST)}, {WOM}", "v_lshl_add_u32 v13, v12, 7, v11", f"v_add_u32 v13, {s(ST)}, v13",
      "v_lshrrev_b32 v12, 1, v8", f"v_lshl_add_u32 {v(A0)}, v12, 6, v13", "v_xor_b32 v12, 1, v12", f"v_lshl_add_u32 {v(A1)}, v12, 6, v13")
    a(f"s_lshl_b32 {s(ST)}, {s(SW)}, 12", f"v_add_u32 v13, {s(ST)}, v15", f"s_xor_b32 {s(ST)}, {s(ST)}, 4096", f"v_add_u32 v14, {s(ST)}, v15")
    a(f"s_and_b32 {s(ST)}, {s(SGRP)}, 15", f"s_lshl_b32 {s(ST)}, {s(ST)}, 2", f"s_add_u32 {s(ST)}, {s(ST)}, {s(ST+2)}", f"s_mul_i32 {s(ST)}, {s(ST)}, {32*2304}", f"s_mul_i32 {s(ST+1)}, {s(SB)}, 1152",
      f"s_add_u32 {s(ST+4)}, {s(ST)}, {s(ST+1)}", f"s_movk_i32 {s(ST+1)}, 2304", "v_lshlrev_b32 v12, 5, v6", f"v_mad_u32_u24 v12, v10, {s(ST+1)}, v12",
      f"s_lshr_b32 {s(ST)}, {s(SJJ)}, 2", f"s_lshl_b32 {s(ST)}, {s(ST)}, 6", f"s_add_u32 {s(ST+5)}, {s(ST+4)}, {s(ST)}", f"s_add_u32 {s(ST+5)}, {s(ST+5)}, 1024",
      f"s_lshl_b32 {s(ST)}, {s(SJJ)}, 7", f"s_add_u32 {s(ST+4)}, {s(ST+4)}, {s(ST)}", f"s_lshl_b32 {s(ST)}, {s(ST+3)}, 6", f"s_add_u32 {s(ST+4)}, {s(ST+4)}, {s(ST)}")
    a("s_waitcnt vmcnt(18)", "s_barrier")
    a(f"s_and_b32 {s(ST)}, {s(SJJ)}, 3", f"s_cmp_eq_u32 {s(ST)}, {s(ST+2)}", "s_cbranch_scc1 L_opx")
    for ext in (0, 1):
        if ext: a.label("L_opx")
        nt = 3 if ext else 2; depth = 2 if ext else 3
        def reads(fi):
            bb = AF + 12*(fi % depth if ext else fi % depth)
            for c in range(2):
                a(f"ds_read_b64_tr_b16 {v(bb+4*c,2)}, {v(A0+c)} offset:{fi*2048}", f"ds_read_b64_tr_b16 {v(bb+4*c+2,2)}, {v(A0+c)} offset:{fi*2048+512}")
            if ext: a(f"ds_read_b64_tr_b16 {v(bb+8,2)}, {v(AXT)} offset:{fi*1024}", f"ds_read_b64_tr_b16 {v(bb+10,2)}, {v(AXT)} offset:{fi*1024+256}")
        for fi in range(depth): reads(fi)
        for fi in range(18):
            bb = AF + 12*(fi % depth)
            later = min(17, fi+depth-1) - fi
            a(f"s_waitcnt vmcnt({17-fi}) lgkmcnt({2*nt*later})")
            for c in range(nt):
                D = D0 + 16*c
                a(f"v_mfma_f32_32x32x16_bf16 {v(D,16)}, {v(bb+4*c,4)}, {v(BF+4*fi,4)}, {'0' if fi == 0 else v(D,16)}")
            if fi + depth < 18: reads(fi+depth)
        a("s_nop 7", "s_nop 3")
        a(f"s_cmp_eq_u32 {s(ST+3)}, 0", f"s_cbranch_scc0 L_op1{ext}")
        for kh in (0, 1):
            if kh: a.label(f"L_op1{ext}")
            for q in range(4): a(f"ds_write_b128 v13, {v(D0+16*(1-kh)+4*q,4)} offset:{q*1024}")
            if ext and kh == 1:
                for q in range(4): a(f"ds_write_b128 v15, {v(DX+4*q,4)} offset:{32768 + q*1024}")
            a("s_waitcnt lgkmcnt(0)", "s_barrier")
            jobs = [(D0+16*kh, "v14", 0, ST+4)] + ([(DX, "v15", 32768, ST+5)] if (ext and kh == 0) else [])
            for n, (D, ad, of, so) in enumerate(jobs):
                for q in range(4): a(f"ds_read_b128 {v(BF+16*n+4*q,4)}, {ad} offset:{of + q*1024}")
            for n, (D, ad, of, so) in enumerate(jobs):
                for q in range(4):
                    a(f"s_waitcnt lgkmcnt({4*(len(jobs)-1-n) + 3 - q})")
                    for r in range(4): a(f"v_add_f32 {v(D+4*q+r)}, {v(D+4*q+r)}, {v(BF+16*n+4*q+r)}")
                    for r in range(2): a(f"v_cvt_pk_bf16_f32 {v(AF+8*n+2*q+r)}, {v(D+4*q+2*r)}, {v(D+4*q+2*r+1)}")
                    if q & 1: a(f"buffer_store_dwordx4 {v(AF+8*n+2*q-2,4)}, v12, {s(ROUT,4)}, {s(so)} offen offset:{16*(q>>1)}")
            a("s_endpgm")

def kernel(name, body, nvgpr=200):
    a = Asm(); a.uid = 0
    a.label(name)
    setup(a, f"L_end_{name}")
    body(a)
    a.label(f"L_end_{name}")
    a("s_endpgm")
    lines = []
    import re
    for l in a.lines:
        lines.append(re.sub(r"\bL_(\w+)", lambda m: f"L_{name[:3]}_{m.group(1)}", l))
    a.lines = lines
    n = check(a.lines)
    if n: print(f"{name}: {n} hazards"); sys.exit(1)
    head = f".globl {name}\n.p2align 8\n.type {name},@function\n"
    kd = f""".amdhsa_kernel {name}
  .amdhsa_next_free_vgpr {nvgpr}
  .amdhsa_next_free_sgpr 96
  .amdhsa_accum_offset {(nvgpr+3)//4*4}
  .amdhsa_group_segment_fixed_size 0
  .amdhsa_kernarg_size 104
  .amdhsa_user_sgpr_count 2
  .amdhsa_user_sgpr_kernarg_segment_ptr 1
  .amdhsa_system_sgpr_workgroup_id_x 1
.end_amdhsa_kernel
"""
    return head + a.text(), kd

def build(mode, prio=None):
    ks = []
    if mode == "three":
        def kA(a): prologue(a, True, False); a("s_endpgm")
        def kB(a):
            prologue(a, False, True); attention(a, "", "", prio=prio); a.label("L_fin"); a("s_endpgm"); fallback(a, "", "", None, "L_fin")
        def kC(a): wo_dma(a); oproj(a, "")
        ks = [("kva_kernel", kA), ("att_kernel", kB), ("opr_kernel", kC)]
    hdr = open(os.path.join(os.path.dirname(os.path.abspath(__file__)), "header.txt")).read()
    out = hdr
    for n, _ in ks: out += f"; @launch kernel={n} grid=(256,1,1) block=(512,1,1) lds={LDS_TOTAL}\n"
    out += '.amdgcn_target "amdgcn-amd-amdhsa--gfx950"\n.text\n'
    kds = ""
    for n, f in ks:
        t, kd = kernel(n, f)
        out += t; kds += ".p2align 6\n" + kd
    out += '.section .rodata,"a"\n' + kds
    return out

if __name__ == "__main__":
    mode = sys.argv[1] if len(sys.argv) > 1 else "three"
    dst = sys.argv[2] if len(sys.argv) > 2 else f"cdna_kernels/{NAME}.s"
    open(dst, "w").write(build(mode))
    print("wrote", dst)
```

```python
import sys, os, struct, math
from asmlib import Asm, v, s, check

NAME = "concat_heads__grouped_kv_mqa__grouped_kv_mqa__prompt"
VH = 304
STEPB = 1024 + 4*VH
BLK = 512 + 4*STEPB
KVB = 16*BLK
KVSTRIDE = 0x40000
OOFF = 0x100000
OBYTES = 2*2048*576*2
LDS_TOTAL = 163840
XKB = 0; WKVB = 36864; RB = WKVB + 27648; SLOT = 22528; QX = RB + 2*SLOT; QS = 296
assert RB + 4*SLOT <= LDS_TOTAL
FOFF = 0x80000
FKV, FO, FEP = 0, 0x8000, 0x10000
TAGC = 0x9E3779B1
SPIN = 1 << 20
WOM = 49152; WOX = WOM + 73728
assert WOX + 36864 <= LDS_TOTAL
SCALE = 18 ** -0.5 * math.log2(math.e)
def fbits(x): return struct.unpack("<I", struct.pack("<f", x))[0]
RX, RW, RKW, RKV, RO, ROUT, RDBG = 4, 8, 12, 16, 20, 24, 28
SB, SQB, SHG, SW = 32, 33, 34, 35
ST = 36
SEX = 48
SIT = 50; SFLAG = 51; SJJ = 52; SGRP = 53
PWO = 54
STAG = 74; SJ = 75; SWB, SXB, SLB = 58, 59, 60
JUNK = 200
LANE = 1

DIAG = False
STAMP0 = 76
def stamp(a, i):
    if DIAG: a(f"s_memrealtime {s(STAMP0 + 2*i, 2)}")
def stamp_out(a, kidx):
    if not DIAG: return
    a("s_memrealtime s[94:95]", "s_waitcnt lgkmcnt(0)", "s_mov_b64 exec, -1")
    a(f"s_add_u32 s72, s70, {0x800000 + kidx*0x40000}", "s_addc_u32 s73, s71, 0")
    srd(a, RDBG, 72, 0x40000)
    a("s_lshl_b32 s3, s2, 3", f"s_add_u32 s3, s3, {s(SW)}", "s_lshl_b32 s3, s3, 6", "v_mov_b32 v250, 0")
    for i in range(10):
        a(f"v_mov_b32 v251, {s(STAMP0 + 2*i)}", f"buffer_store_dword v251, v250, {s(RDBG,4)}, s3 offen offset:{4*i}")

def srd(a, r, ptr, size):
    a(f"s_mov_b32 {s(r)}, {s(ptr)}", f"s_mov_b32 {s(r+1)}, {s(ptr+1)}", f"s_mov_b32 {s(r+2)}, {size}", f"s_mov_b32 {s(r+3)}, 0x20000")

def setup(a, endlabel):
    a(f"s_cmp_ge_u32 s2, 256", f"s_cbranch_scc1 {endlabel}")
    if DIAG:
        for i in range(1, 10): a(f"s_mov_b32 {s(STAMP0+2*i)}, 0")
    stamp(a, 0)
    a(f"s_and_b32 {s(SB)}, s2, 1", f"s_mul_i32 s3, {s(SB)}, 40", "s_add_u32 s56, s0, s3", "s_addc_u32 s57, s1, 0")
    a("s_load_dwordx2 s[58:59], s[56:57], 0", "s_load_dwordx2 s[60:61], s[56:57], 8", "s_load_dwordx2 s[62:63], s[56:57], 16",
      "s_load_dwordx2 s[64:65], s[56:57], 24", f"s_load_dwordx2 {s(PWO,2)}, s[56:57], 32",
      "s_load_dwordx2 s[66:67], s[0:1], 80", "s_load_dwordx2 s[68:69], s[0:1], 88", "s_load_dwordx2 s[70:71], s[0:1], 96")
    a(f"v_lshrrev_b32 v2, 6, v0", f"v_and_b32 {v(LANE)}, 63, v0")
    a(f"s_bfe_u32 s3, s2, 0x20001", f"s_lshl_b32 s3, s3, 3", f"s_lshr_b32 {s(SQB)}, s2, 5", f"s_add_u32 {s(SQB)}, {s(SQB)}, s3", f"s_bfe_u32 {s(SHG)}, s2, 0x20003")
    a(f"v_readfirstlane_b32 {s(SW)}, v2")
    a(f"s_and_b32 s3, {s(SQB)}, 1", f"s_lshl_b32 s3, s3, 2", f"s_add_u32 {s(SJJ)}, s3, {s(SHG)}")
    a(f"s_lshr_b32 s3, {s(SQB)}, 1", f"s_lshl_b32 {s(SGRP)}, {s(SB)}, 4", f"s_add_u32 {s(SGRP)}, {s(SGRP)}, s3")
    a("s_waitcnt lgkmcnt(0)")
    srd(a, RX, 58, 2048*1152); srd(a, RW, 60, 576*1152)
    a(f"s_bitcmp1_b32 {s(SHG)}, 0", "s_cselect_b64 s[62:63], s[64:65], s[62:63]")
    srd(a, RKW, 62, 576*36)
    a(f"s_lshl_b32 s3, {s(SB)}, 18", "s_add_u32 s72, s70, s3", "s_addc_u32 s73, s71, 0")
    srd(a, RKV, 72, KVB)
    a(f"s_add_u32 s72, s70, {OOFF}", "s_addc_u32 s73, s71, 0")
    srd(a, RO, 72, OBYTES); srd(a, ROUT, 66, OBYTES)
    a(f"s_add_u32 s72, s70, {FOFF}", "s_addc_u32 s73, s71, 0")
    srd(a, RDBG, 72, 0x10100)

def dma(a, vaddr, r, soff, ldsaddr_s=None, ldsaddr=None, flags=""):
    if ldsaddr_s is not None: a(f"s_mov_b32 m0, {s(ldsaddr_s)}")
    else: a(f"s_mov_b32 m0, {ldsaddr}")
    a("s_nop 0", f"buffer_load_dwordx4 {v(vaddr)}, {s(r,4)}, {soff} offen{flags} lds")

ACA, ACB, ACC2 = 16, 32, 48
FR = [64, 112]
XF, WF = 64, 80
X16, W16 = [96, 112], [104, 120]
AX, AXB, AW, AX16, AX16T, AWR, AXK, AWK, APT, DW, D3, TAGV = 160, 164, 168, 169, 171, 173, 175, 176, 177, 178, 179, 180

def swz_row(a, dst, row, sel, tmp):
    a(f"v_bfe_u32 {v(tmp)}, {v(row)}, 1, 3", f"v_xor_b32 {v(tmp)}, {v(tmp)}, {v(sel)}", f"v_lshlrev_b32 {v(tmp)}, 4, {v(tmp)}",
      f"v_lshl_add_u32 {v(dst)}, {v(row)}, 7, {v(tmp)}")

def wrap9(a, r):
    a(f"s_cmp_ge_u32 {s(r)}, 9", f"s_cselect_b32 s3, 9, 0", f"s_sub_u32 {s(r)}, {s(r)}, s3")

def chunk_dma(a, n, role):
    sl = RB + (n & 3)*SLOT
    a(f"s_mul_i32 {s(ST+8)}, {s(SJ)}, {64*1152}", f"s_add_u32 {s(ST+9)}, {s(ST+8)}, {s(SWB)}", f"s_add_u32 m0, {s(SLB)}, {sl}")
    if role == 0: a(f"s_lshl_b32 {s(ST+8)}, {s(SJ)}, 7")
    else: a("s_nop 0")
    a(f"buffer_load_dwordx4 {v(DW)}, {s(RW,4)}, {s(ST+9)} offen lds")
    a(f"s_add_u32 m0, {s(SLB)}, {sl + 1024}", f"s_add_u32 {s(ST+9)}, {s(ST+9)}, {4*1152}", f"buffer_load_dwordx4 {v(DW)}, {s(RW,4)}, {s(ST+9)} offen lds")
    a(f"s_add_u32 m0, {s(SLB+1)}, {sl}", f"s_add_u32 {s(ST+8)}, {s(ST+8)}, {s(SXB)}", f"buffer_load_dwordx4 {v(D3)}, {s(RX if role == 0 else RW,4)}, {s(ST+8)} offen lds")
    if n < 8:
        a(f"s_add_u32 {s(SJ)}, {s(SJ)}, 1"); wrap9(a, SJ)

def issue_loads(a, role):
    L = v(LANE)
    a(f"s_lshl_b32 {s(ST)}, {s(SB)}, 7", f"s_add_u32 {s(ST)}, {s(ST)}, {FEP}", "v_mov_b32 v2, 0", f"buffer_load_dword {v(TAGV)}, v2, {s(RDBG,4)}, {s(ST)} offen sc1")
    a(f"s_and_b32 {s(SJ)}, {s(SQB)}, 7", f"s_and_b32 s3, {s(SHG)}, 1", "s_lshl_b32 s3, s3, 2", f"s_add_u32 {s(SJ)}, {s(SJ)}, s3"); wrap9(a, SJ)
    a(f"v_lshrrev_b32 v2, 3, {L}", f"v_and_b32 v3, 7, {L}", f"s_lshl_b32 {s(ST)}, {s(SW)}, 2", f"v_lshrrev_b32 v4, 1, v2",
      f"v_add_u32 v4, {s(ST)}, v4", "v_and_b32 v4, 7, v4", "v_xor_b32 v3, v3, v4", "v_lshlrev_b32 v3, 4, v3",
      f"s_movk_i32 {s(ST+7)}, 1152", f"v_mad_u32_u24 v2, v2, {s(ST+7)}, v3")
    a(f"s_lshr_b32 {s(ST+5)}, {s(SHG)}, 1", f"s_and_b32 {s(ST+6)}, {s(SW)}, 3", f"s_lshl_b32 {s(ST)}, {s(SQB)}, 3", f"s_add_u32 {s(ST)}, {s(ST)}, {s(ST+6)}",
      f"s_lshl_b32 s3, {s(ST+5)}, 2", f"s_add_u32 {s(ST+1)}, {s(ST)}, s3", f"s_mul_i32 {s(ST+1)}, {s(ST+1)}, {8*1152}",
      f"s_xor_b32 s3, s3, 4", f"s_add_u32 {s(ST)}, {s(ST)}, s3", f"s_mul_i32 {s(SXB)}, {s(ST)}, {8*1152}",
      f"s_lshl_b32 {s(ST+6)}, {s(ST+6)}, 10", f"s_add_u32 {s(ST+2)}, {s(SJ)}, {role}")
    wrap9(a, ST+2)
    def xk(i):
        n = min(role + 2*i, 8)
        a(f"s_lshl_b32 s3, {s(ST+2)}, 7", f"s_add_u32 m0, {s(ST+6)}, {XKB + n*4096}", f"s_add_u32 s3, s3, {s(ST+1)}", f"buffer_load_dwordx4 v2, {s(RX,4)}, s3 offen lds")
        nn = min(role + 2*i + 2, 8)
        if i < 4: a(f"s_add_u32 {s(ST+2)}, {s(ST+2)}, {nn - n}"); wrap9(a, ST+2)
    xk(0)
    if role == 1:
        a(f"s_lshr_b32 s3, s2, 4", "s_and_b32 s3, s3, 15", f"s_mul_i32 s3, s3, {11*128}", f"s_mul_i32 {s(ST+8)}, {s(ST+6)}, 3", f"s_lshr_b32 {s(ST+8)}, {s(ST+8)}, 3", f"s_add_u32 s3, s3, {s(ST+8)}",
          f"v_lshlrev_b32 v3, 7, {L}", "s_mov_b32 exec_lo, 7", "s_mov_b32 exec_hi, 0", f"buffer_load_dword {v(JUNK)}, v3, {s(RKW,4)}, s3 offen", "s_mov_b64 exec, -1")
    xk(1)
    a(f"v_lshrrev_b32 v3, 4, {L}", f"v_and_b32 v4, 15, {L}", "v_lshlrev_b32 v5, 2, v3", "v_xor_b32 v4, v4, v5", "v_lshlrev_b32 v4, 4, v4", f"v_mad_u32_u24 {v(DW)}, v3, {s(ST+7)}, v4")
    a(f"s_mul_i32 {s(ST+4)}, {s(SHG)}, 288", f"s_mul_i32 {s(SWB)}, {s(SW)}, {8*1152}", f"s_add_u32 {s(SWB)}, {s(SWB)}, {s(ST+4)}", f"s_lshl_b32 {s(SLB)}, {s(SW)}, 11")
    if role == 0:
        a(f"v_mov_b32 {v(D3)}, v2", f"s_add_u32 {s(SLB+1)}, {s(ST+6)}, 18432")
    else:
        a(f"v_lshrrev_b32 v3, 1, {L}", f"v_bfe_u32 v4, {L}, 4, 1", "v_lshlrev_b32 v4, 2, v4", "v_xor_b32 v3, v3, v4", f"v_and_b32 v4, 1, {L}", "v_lshlrev_b32 v4, 4, v4", f"v_mad_u32_u24 {v(D3)}, v3, {s(ST+7)}, v4",
          f"s_and_b32 s3, {s(SW)}, 1", f"s_mul_i32 {s(SXB)}, s3, {32*1152}", f"s_add_u32 {s(SXB)}, {s(SXB)}, {s(ST+4)}", f"s_add_u32 {s(SXB)}, {s(SXB)}, 256",
          f"s_lshl_b32 s3, s3, 10", f"s_add_u32 {s(SLB+1)}, s3, 16384")
    a(f"s_mov_b32 {s(ST+3)}, {s(SJ)}")
    chunk_dma(a, 0, role)
    xk(2); xk(3); xk(4)
    a(f"s_and_b32 {s(ST)}, {s(SW)}, 1", f"s_mul_i32 {s(ST)}, {s(ST)}, 72", f"s_lshr_b32 {s(ST+2)}, {s(SW)}, 1", f"s_mul_i32 {s(ST+2)}, {s(ST+2)}, {16*36}",
      f"s_mul_i32 {s(ST+1)}, {s(SW)}, {216*16}", f"s_add_u32 {s(ST+1)}, {s(ST+1)}, {WKVB}", f"s_movk_i32 {s(ST+4)}, 0x5556")
    for n in range(4):
        a(f"v_add_u32 v3, {64*n}, {L}" if n else f"v_mov_b32 v3, {L}")
        a(f"v_mul_u32_u24 v4, {s(ST+4)}, v3", "v_lshrrev_b32 v4, 16, v4", "v_mad_i32_i24 v3, v4, -3, v3")
        a(f"v_add_u32 v4, {s(ST)}, v4", "v_lshrrev_b32 v5, 4, v4", "v_and_b32 v4, 15, v4", f"v_add_u32 v5, {s(ST+3)}, v5", "v_subrev_u32 v6, 9, v5", "v_min_u32 v5, v5, v6",
          "v_lshl_add_u32 v4, v5, 6, v4", "v_mul_u32_u24 v4, 36, v4", "v_lshl_add_u32 v3, v3, 4, v4")
        if n == 3: a("s_mov_b32 exec_lo, 0xffffff", "s_mov_b32 exec_hi, 0")
        a(f"s_add_u32 m0, {s(ST+1)}, {1024*n}", "s_nop 0", f"buffer_load_dwordx4 v3, {s(RKW,4)}, {s(ST+2)} offen lds")
        if n == 3: a("s_mov_b64 exec, -1")
    for n in (1, 2, 3): chunk_dma(a, n, role)

def lane_fields(a):
    L = v(LANE)
    a(f"v_lshrrev_b32 v6, 5, {L}", f"v_bfe_u32 v7, {L}, 4, 1", f"v_bfe_u32 v8, {L}, 2, 2", f"v_and_b32 v9, 3, {L}", f"v_and_b32 v10, 31, {L}")

def addr_main(a):
    for r in range(4):
        a(f"v_add_u32 v11, {2*r}, v6")
        swz_row(a, AX+r, 10, 11, 12)
        a(f"v_add_u32 {v(AXB+r)}, {RB + 18432}, {v(AX+r)}")
    a(f"v_xor_b32 v11, {s(SW)}, v8", "v_lshlrev_b32 v11, 6, v11", "v_lshl_add_u32 v11, v7, 5, v11", "v_lshl_add_u32 v11, v9, 3, v11",
      "v_lshl_add_u32 v12, v6, 3, v8", "v_lshl_add_u32 v11, v12, 8, v11", f"v_add_u32 {v(AW)}, {RB}, v11")

def addr_rem(a):
    L = v(LANE)
    a(f"v_and_b32 v11, 15, {L}", f"s_and_b32 {s(ST)}, {s(SW)}, 1", f"s_lshl_b32 {s(ST)}, {s(ST)}, 4", f"v_add_u32 v11, {s(ST)}, v11", f"v_lshrrev_b32 v13, 4, {L}")
    for s2 in range(2):
        a(f"v_add_u32 v14, {4*s2}, v13")
        swz_row(a, AX16+s2, 11, 14, 12)
    for a4 in range(2):
        a(f"v_xor_b32 v12, {a4}, v7", "v_lshl_add_u32 v12, v12, 2, v8", "v_lshl_add_u32 v12, v13, 3, v12", "v_lshlrev_b32 v12, 5, v12",
          "v_lshl_add_u32 v12, v9, 3, v12", f"v_add_u32 {v(AWR+a4)}, {RB + 16384}, v12")

def addr_kv(a):
    a(f"s_sub_u32 {s(ST+2)}, {s(SW)}, 4", f"s_lshl_b32 {s(ST)}, {s(ST+2)}, 1", f"v_add_u32 v11, {s(ST)}, v6")
    swz_row(a, AXK, 10, 11, 12)
    a("v_lshlrev_b32 v11, 3, v9", "v_and_b32 v12, 1, v9", "v_lshlrev_b32 v12, 4, v12", "v_lshrrev_b32 v13, 1, v9", "v_lshl_add_u32 v12, v13, 3, v12")
    a(f"s_bitcmp1_b32 {s(SHG)}, 0", "s_cselect_b64 vcc, -1, 0", "v_cndmask_b32 v11, v12, v11, vcc")
    a("v_cmp_eq_u32 vcc, 1, v7", "s_nop 1", "v_cndmask_b32 v11, v11, 32, vcc")
    a("v_lshl_add_u32 v12, v6, 3, v8", "v_mad_u32_u24 v11, v12, 48, v11", f"s_mul_i32 {s(ST)}, {s(ST+2)}, {144*48}", f"s_add_u32 {s(ST)}, {s(ST)}, {WKVB}",
      f"v_add_u32 {v(AWK)}, {s(ST)}, v11", f"v_lshlrev_b32 v11, 4, {v(LANE)}", f"v_add_u32 {v(APT)}, {s(ST)}, v11")

def kv_compute(a):
    def reads(n):
        st = n & 3
        a(f"ds_read_b128 {v(XF+4*st,4)}, {v(AXK)} offset:{XKB + n*4096}",
          f"ds_read_b64_tr_b16 {v(WF+4*st,2)}, {v(AWK)} offset:{n*768}", f"ds_read_b64_tr_b16 {v(WF+4*st+2,2)}, {v(AWK)} offset:{n*768+192}")
    for typ in ("K", "V"):
        if typ == "K": a(f"s_bitcmp1_b32 {s(SHG)}, 0", "s_cbranch_scc1 L_kvV")
        else: a.label("L_kvV")
        for n in range(4): reads(n)
        for n in range(9):
            st = n & 3
            a(f"s_waitcnt lgkmcnt({3*(min(8, n+3) - n)})")
            A, B = (WF+4*st, XF+4*st) if typ == "K" else (XF+4*st, WF+4*st)
            a(f"v_mfma_f32_32x32x16_bf16 {v(ACA,16)}, {v(A,4)}, {v(B,4)}, {'0' if n == 0 else v(ACA,16)}")
            if n + 4 < 9: reads(n+4)
        if typ == "K": a("s_branch L_kvD")
    a.label("L_kvD")

def kv_finalize(a):
    L = v(LANE)
    a(f"s_sub_u32 {s(ST+2)}, {s(SW)}, 4", f"s_lshl_b32 {s(ST)}, {s(ST+2)}, 10", f"s_add_u32 {s(ST)}, {s(ST)}, {WKVB}", f"v_lshl_add_u32 v11, {L}, 4, {s(ST)}")
    for p in range(4): a(f"ds_read_b128 {v(XF+4*p,4)}, v11 offset:{p*6912}")
    a(f"s_lshr_b32 {s(ST)}, {s(SHG)}, 1", f"s_lshl_b32 {s(ST+1)}, {s(SQB)}, 1", f"s_add_u32 {s(ST)}, {s(ST)}, {s(ST+1)}",
      f"s_lshr_b32 {s(ST+1)}, {s(ST)}, 2", f"s_mul_i32 {s(ST+1)}, {s(ST+1)}, {BLK}", f"s_and_b32 {s(ST)}, {s(ST)}, 3",
      f"s_mul_i32 {s(ST+3)}, {s(ST)}, {STEPB}", f"s_add_u32 {s(ST+3)}, {s(ST+3)}, {s(ST+1)}", f"s_add_u32 {s(ST+3)}, {s(ST+3)}, 512",
      f"s_and_b32 {s(ST+4)}, {s(ST+2)}, 1", f"s_lshl_b32 {s(ST+4)}, {s(ST+4)}, 3", f"s_add_u32 {s(ST+3)}, {s(ST+3)}, {s(ST+4)}")
    a(f"s_bitcmp1_b32 {s(SHG)}, 0", "s_cbranch_scc1 L_kvFV")
    def red():
        a("s_waitcnt lgkmcnt(2)")
        for r in range(4): a(f"v_add_f32 {v(XF+r)}, {v(XF+r)}, {v(XF+4+r)}")
        a("s_waitcnt lgkmcnt(0)")
        for r in range(4): a(f"v_add_f32 {v(XF+8+r)}, {v(XF+8+r)}, {v(XF+12+r)}")
        for r in range(4): a(f"v_add_f32 {v(XF+r)}, {v(XF+r)}, {v(XF+8+r)}")
    a("v_and_b32 v11, 0x13, v10", "v_bfe_u32 v12, v10, 2, 1", "v_lshl_or_b32 v11, v12, 3, v11", "v_bfe_u32 v12, v10, 3, 1", "v_lshl_or_b32 v11, v12, 2, v11", f"s_mov_b32 {s(ST+4)}, {fbits(SCALE)}")
    red()
    for r in range(4): a(f"v_mul_f32 {v(XF+r)}, {s(ST+4)}, {v(XF+r)}")
    for r in range(2): a(f"v_cvt_pk_bf16_f32 {v(XF+4+r)}, {v(XF+2*r)}, {v(XF+2*r+1)}")
    a(f"s_cmp_ge_u32 {s(SW)}, 6", "s_cbranch_scc1 L_kvK2")
    a("v_lshl_add_u32 v11, v6, 5, v11", "v_lshlrev_b32 v11, 4, v11", f"buffer_store_dwordx2 {v(XF+4,2)}, v11, {s(RKV,4)}, {s(ST+3)} offen sc1", "s_branch L_kvF")
    a.label("L_kvK2")
    a("v_lshlrev_b32 v11, 4, v11", f"s_lshl_b32 {s(ST)}, {s(ST)}, 2", f"s_add_u32 {s(ST+1)}, {s(ST+1)}, {s(ST)}", f"s_and_b32 s3, {s(SW)}, 1", "s_lshl_b32 s3, s3, 20", f"s_add_u32 {s(ST+1)}, {s(ST+1)}, s3",
      "s_mov_b32 exec_hi, 0", f"buffer_store_dword {v(XF+4)}, v11, {s(RKV,4)}, {s(ST+1)} offen sc1", "s_mov_b64 exec, -1", "s_branch L_kvF")
    a.label("L_kvFV")
    a("v_cmp_eq_u32 vcc, 18, v10", "v_mov_b32 v12, 0x3f803f80", f"s_movk_i32 {s(ST)}, {VH}", "v_lshlrev_b32 v11, 4, v10", f"v_mad_u32_u24 v11, v6, {s(ST)}, v11",
      f"s_lshr_b32 {s(ST+2)}, {s(ST+2)}, 1", f"s_mul_i32 {s(ST+2)}, {s(ST+2)}, {2*VH}", f"s_add_u32 {s(ST+3)}, {s(ST+3)}, {s(ST+2)}")
    red()
    for r in range(2): a(f"v_cvt_pk_bf16_f32 {v(XF+4+r)}, {v(XF+2*r)}, {v(XF+2*r+1)}")
    for r in range(2): a(f"v_cndmask_b32 {v(XF+4+r)}, {v(XF+4+r)}, v12, vcc")
    a("s_mov_b32 exec_lo, 0x7ffff", "s_mov_b32 exec_hi, 0x7ffff", f"buffer_store_dwordx2 {v(XF+4,2)}, v11, {s(RKV,4)}, {s(ST+3)} offen offset:1024 sc1", "s_mov_b64 exec, -1")
    a.label("L_kvF")

def main_reads(a, n, st):
    F = FR[n & 1] + 12*st; sl = (n & 3)
    xb = (AXB + st, sl*SLOT) if sl < 2 else (AXB + st, sl*SLOT)
    a(f"ds_read_b128 {v(F,4)}, {v(AX+st)} offset:{XKB + n*4096}")
    hi = sl*SLOT + st*4096 + 1024 > 65535
    a(f"ds_read_b128 {v(F+4,4)}, {v(AXB+st)} offset:{(sl - (3 if sl == 3 else 0))*SLOT}" if sl < 3 else f"ds_read_b128 {v(F+4,4)}, {v(AXH+st)}")
    aw, o = (AW, sl*SLOT + st*4096) if sl < 2 else (AWH, (sl-2)*SLOT + st*4096)
    a(f"ds_read_b64_tr_b16 {v(F+8,2)}, {v(aw)} offset:{o}", f"ds_read_b64_tr_b16 {v(F+10,2)}, {v(aw)} offset:{o+1024}")
AXH, AWH, AWRH = 184, 188, 189
def main_mfma(a, n, st):
    F = FR[n & 1] + 12*st; z = (n == 0 and st == 0)
    a(f"v_mfma_f32_32x32x16_bf16 {v(ACA,16)}, {v(F+8,4)}, {v(F,4)}, {'0' if z else v(ACA,16)}", f"v_mfma_f32_32x32x16_bf16 {v(ACB,16)}, {v(F+8,4)}, {v(F+4,4)}, {'0' if z else v(ACB,16)}")
def rem_reads(a, n):
    sl = n & 3
    a(f"s_mov_b32 s3, {XKB + n*4096}", f"s_cmp_ge_u32 {s(SW)}, 6", f"s_cselect_b32 s3, {RB + 18432 + sl*SLOT}, s3")
    for s2 in range(2): a(f"v_add_u32 {v(AX16T+s2)}, s3, {v(AX16+s2)}")
    aw, o = (AWR, sl*SLOT) if sl < 2 else (AWRH, (sl-2)*SLOT)
    for s2 in range(2):
        a(f"ds_read_b128 {v(X16[n&1]+4*s2,4)}, {v(AX16T+s2)}",
          f"ds_read_b64_tr_b16 {v(W16[n&1]+4*s2,2)}, {v(aw)} offset:{o + s2*1024}", f"ds_read_b64_tr_b16 {v(W16[n&1]+4*s2+2,2)}, {v(aw+1)} offset:{o + s2*1024}")
def rem_mfma(a, n):
    for s2 in range(2):
        a(f"v_mfma_f32_16x16x32_bf16 {v(ACC2,4)}, {v(W16[n&1]+4*s2,4)}, {v(X16[n&1]+4*s2,4)}, {'0' if (n == 0 and s2 == 0) else v(ACC2,4)}")

def flag_store(a, base_s):
    a(f"v_mov_b32 v11, {s(STAG)}", "v_mov_b32 v12, 0", "s_mov_b32 exec_lo, 1", "s_mov_b32 exec_hi, 0", f"buffer_store_dword v11, v12, {s(RDBG,4)}, {s(base_s)} offen sc1", "s_mov_b64 exec, -1")

def poll(a, uid, base_s, nloads, mask=None):
    a(f"v_lshlrev_b32 v11, 7, {v(LANE)}", "v_add_u32 v12, 0x2000, v11", f"s_mov_b32 {s(SIT)}, 0")
    if mask: a(f"s_mov_b32 exec_lo, {mask}", "s_mov_b32 exec_hi, 0")
    a.label(f"L_poll{uid}")
    for i in range(nloads): a(f"buffer_load_dword {v(13+i)}, {v(11+i)}, {s(RDBG,4)}, {s(base_s)} offen sc1")
    a(f"s_add_u32 {s(SIT)}, {s(SIT)}, 1", f"s_cmp_gt_u32 {s(SIT)}, {SPIN}", f"s_cbranch_scc1 L_polld{uid}", "s_waitcnt vmcnt(0)")
    a(f"v_cmp_ne_u32 vcc, {s(STAG)}, v13")
    if nloads == 2: a(f"v_cmp_ne_u32 {s(SEX,2)}, {s(STAG)}, v14", "s_nop 0", f"s_or_b64 vcc, vcc, {s(SEX,2)}")
    else: a("s_nop 4")
    a(f"s_cbranch_vccnz L_poll{uid}")
    a.label(f"L_polld{uid}")
    a("s_waitcnt vmcnt(0)", "s_mov_b64 exec, -1")

KVFLAG_AT = 4
def prologue(a):
    a(f"s_cmp_ge_u32 {s(SW)}, 4", "s_cbranch_scc1 L_role1")
    for role in (0, 1):
        if role == 1: a.label("L_role1")
        issue_loads(a, role)
        stamp(a, 1)
        lane_fields(a)
        if role == 0:
            addr_main(a)
            for r in range(4): a(f"v_add_u32 {v(AXH+r)}, {3*SLOT}, {v(AXB+r)}")
            a(f"v_add_u32 {v(AWH)}, {2*SLOT}, {v(AW)}")
        else:
            addr_rem(a); addr_kv(a)
            for r in range(2): a(f"v_add_u32 {v(AWRH+r)}, {2*SLOT}, {v(AWR+r)}")
        a("s_waitcnt vmcnt(9)", f"v_readfirstlane_b32 {s(STAG)}, {v(TAGV)}", "s_barrier")
        a(f"s_add_u32 {s(STAG)}, {s(STAG)}, {TAGC}")
        stamp(a, 2)
        for n in range(9):
            if role == 1 and n == 0: kv_compute(a)
            if role == 1 and n == 1: kv_finalize(a)
            if role == 1 and n == KVFLAG_AT:
                a(f"s_cmp_eq_u32 {s(SW)}, 4", "s_cbranch_scc0 L_nokvf", f"s_lshl_b32 {s(ST)}, {s(SQB)}, 2", f"s_add_u32 {s(ST)}, {s(ST)}, {s(SHG)}", f"s_lshl_b32 s3, {s(SB)}, 7", f"s_add_u32 {s(ST)}, {s(ST)}, s3", f"s_lshl_b32 {s(ST)}, {s(ST)}, 7")
                flag_store(a, ST)
                a.label("L_nokvf")
            if 1 <= n <= 5: chunk_dma(a, n+3, role)
            if role == 0:
                for st in range(4):
                    if st == 3: a("s_waitcnt lgkmcnt(8)")
                    main_reads(a, n, st)
                    if n: main_mfma(a, n-1, st)
            else:
                rem_reads(a, n)
                if n == 0:
                    a("s_nop 0")
                    for qd in range(4): a(f"ds_write_b128 {v(APT)}, {v(ACA+4*qd,4)} offset:{qd*1024}")
                if n: rem_mfma(a, n-1)
            if n < 8:
                cnt = {7: 0, 6: 3}.get(n, 6)
                if role == 1 and 1 <= n < KVFLAG_AT - 1: cnt += 1
                a(f"s_waitcnt vmcnt({cnt}) lgkmcnt(0)", "s_barrier")
        a("s_waitcnt lgkmcnt(0)")
        a(f"s_movk_i32 {s(ST+2)}, {QS}", f"s_lshr_b32 {s(ST)}, {s(SHG)}, 1")
        if role == 0:
            for st in range(4): main_mfma(a, 8, st)
            a(f"s_mul_i32 {s(ST)}, {s(ST)}, {32*QS}", f"s_lshl_b32 {s(ST+1)}, {s(SW)}, 6", f"s_add_u32 {s(ST+1)}, {s(ST+1)}, {QX}", f"v_lshl_add_u32 v11, v6, 3, {s(ST+1)}", f"v_mad_u32_u24 v11, v10, {s(ST+2)}, v11",
              f"s_sub_u32 {s(ST+1)}, {32*QS}, {s(ST)}", f"v_add_u32 v12, {s(ST+1)}, v11", f"v_add_u32 v11, {s(ST)}, v11", "s_nop 2")
            for t, (acc, ad) in enumerate(((ACA, 11), (ACB, 12))):
                for r in range(8): a(f"v_cvt_pk_bf16_f32 {v(FR[1]+8*t+r)}, {v(acc+2*r)}, {v(acc+2*r+1)}")
                for q in range(4): a(f"ds_write_b64 {v(ad)}, {v(FR[1]+8*t+2*q,2)} offset:{16*q}")
        else:
            rem_mfma(a, 8)
            a(f"s_bfe_u32 {s(ST+1)}, {s(SW)}, 0x10001", f"s_xor_b32 {s(ST)}, {s(ST)}, {s(ST+1)}", f"s_lshl_b32 {s(ST)}, {s(ST)}, 1", f"s_and_b32 {s(ST+1)}, {s(SW)}, 1", f"s_add_u32 {s(ST)}, {s(ST)}, {s(ST+1)}",
              f"s_mul_i32 {s(ST)}, {s(ST)}, {16*QS}", f"s_add_u32 {s(ST)}, {s(ST)}, {QX + 256}", f"v_lshrrev_b32 v12, 4, {v(LANE)}", f"v_lshl_add_u32 v12, v12, 3, {s(ST)}",
              f"v_and_b32 v13, 15, {v(LANE)}", f"v_mad_u32_u24 v12, v13, {s(ST+2)}, v12")
            for r in range(2): a(f"v_cvt_pk_bf16_f32 {v(XF+r)}, {v(ACC2+2*r)}, {v(ACC2+2*r+1)}")
            a(f"ds_write_b64 v12, {v(XF,2)}")
        if role == 0: a("s_branch L_pro_done")
    a.label("L_pro_done")

def wait_kv(a):
    a(f"s_cmp_eq_u32 {s(SW)}, 7", "s_cbranch_scc0 L_kvseen", f"s_lshl_b32 {s(ST+5)}, {s(SB)}, 14")
    poll(a, "kv", ST+5, 2)
    a(f"s_or_b32 s3, {s(SQB)}, {s(SHG)}", "s_cmp_eq_u32 s3, 0", "s_cbranch_scc0 L_kvseen", f"s_lshl_b32 {s(ST+5)}, {s(SB)}, 7", f"s_add_u32 {s(ST+5)}, {s(ST+5)}, {FEP}")
    flag_store(a, ST+5)
    a.label("L_kvseen")

IDX, AK1, AK2, AV = 2, 3, 4, 5
S = [16, 32, 48, 64]; O = [80, 96, 112, 128]; Q1 = [144, 148, 152, 156]; Q2 = [160, 164]
K1 = [168, 172]; K2 = 176; V = [[180, 184], [188, 192]]; MX = 196

def kv_dma_setup(a):
    a(f"v_lshlrev_b32 v15, 4, {v(LANE)}", f"s_lshr_b32 {s(ST)}, {s(SW)}, 2", f"s_mul_i32 {s(ST)}, {s(ST)}, {8*BLK}", f"s_and_b32 {s(ST+1)}, {s(SW)}, 3",
      f"s_lshl_b32 {s(ST+1)}, {s(ST+1)}, 10", f"s_add_u32 {s(ST)}, {s(ST)}, {s(ST+1)}")
def kv_dma(a, n, flags=""):
    for i in range(n):
        dma(a, 15, RKV, s(ST), ldsaddr_s=ST, flags=flags)
        a(f"s_add_u32 {s(ST)}, {s(ST)}, 4096")

def kv_dma2(a, flags):
    a(f"s_lshr_b32 {s(ST+1)}, s2, 3")
    for i in range(16):
        a(f"s_and_b32 {s(ST+1)}, {s(ST+1)}, 15", f"s_lshl_b32 s3, {s(ST+1)}, 12", f"s_add_u32 s3, s3, {s(ST)}", "s_mov_b32 m0, s3", f"s_add_u32 {s(ST+1)}, {s(ST+1)}, 1",
          f"buffer_load_dwordx4 v15, {s(RKV,4)}, s3 offen{flags} lds")
def wo_touch(a):
    srd(a, RW, PWO, 576*1152)
    a(f"s_lshr_b32 s3, s2, 3", "s_mul_i32 s3, s3, 162", f"s_mul_i32 {s(ST+1)}, {s(SW)}, 21", f"s_add_u32 s3, s3, {s(ST+1)}", "s_lshl_b32 s3, s3, 7", f"v_lshlrev_b32 v14, 7, {v(LANE)}",
      "s_mov_b32 exec_lo, 0x1fffff", "s_mov_b32 exec_hi, 0", f"buffer_load_dword {v(JUNK)}, v14, {s(RW,4)}, s3 offen", "s_mov_b64 exec, -1")

def attn_addr(a):
    L = v(LANE)
    a(f"s_lshr_b32 {s(ST+2)}, {s(SW)}, 2", f"s_mul_i32 {s(ST+2)}, {s(ST+2)}, {8*BLK}")
    a(f"v_lshl_add_u32 {v(AK1)}, {L}, 4, {s(ST+2)}", f"v_lshl_add_u32 {v(AK2)}, v10, 4, {s(ST+2)}")
    a("v_and_b32 v11, 0x13, v10", "v_bfe_u32 v12, v10, 2, 1", "v_lshl_or_b32 v11, v12, 3, v11", "v_bfe_u32 v12, v10, 3, 1", "v_lshl_or_b32 v11, v12, 2, v11")
    a("v_mov_b32 v12, 0x4000", "v_cmp_lt_u32 vcc, 16, v10", "s_nop 1", "v_cndmask_b32 v11, v11, v12, vcc")
    a("v_cmp_eq_u32 vcc, 20, v10", "s_nop 1", "v_cndmask_b32 v11, v11, 17, vcc")
    a("v_and_b32 v12, 0x1b, v10", "v_cmp_eq_u32 vcc, 17, v12", "s_nop 1", "v_cndmask_b32 v11, v11, 18, vcc")
    a(f"s_movk_i32 {s(ST+3)}, {VH}", f"v_lshl_add_u32 v11, v11, 4, {s(ST+2)}", f"v_mad_u32_u24 {v(AV)}, v6, {s(ST+3)}, v11", f"v_mov_b32 {v(IDX)}, 0xdddddddd")

def q_fetch(a):
    a(f"s_and_b32 {s(ST+3)}, {s(SW)}, 3", f"s_mul_i32 {s(ST+3)}, {s(ST+3)}, 72", f"s_add_u32 {s(ST+3)}, {s(ST+3)}, {QX}", f"s_movk_i32 {s(ST+4)}, {QS}",
      f"v_mov_b32 v12, {s(ST+3)}", f"v_mad_u32_u24 v12, v10, {s(ST+4)}, v12", "v_lshl_add_u32 v13, v6, 4, v12", f"v_add_u32 v14, {32*QS}, v13", "v_mad_u32_u24 v12, v6, 36, v12")
    for t in range(4):
        base = 13 + (t >> 1); o = 9*(t & 1)
        a(f"ds_read2_b32 {v(Q1[t],2)}, {v(base)} offset0:{o} offset1:{o+1}", f"ds_read2_b32 {v(Q1[t]+2,2)}, {v(base)} offset0:{o+2} offset1:{o+3}")
    for p in range(2):
        a(f"ds_read_b32 {v(Q2[p])}, v12 offset:{32 + p*32*QS}", f"ds_read_b32 {v(Q2[p]+3)}, v12 offset:{32 + p*32*QS}")
        a(f"v_mov_b32 {v(Q2[p]+1)}, 0", f"v_mov_b32 {v(Q2[p]+2)}, 0")

def E(t, x, y, sub):
    out = []
    for i in range(x, y):
        if sub: out.append(f"v_sub_f32 {v(S[t]+i)}, {v(S[t]+i)}, {v(MX+t)}")
        out.append(f"v_exp_f32 {v(S[t]+i)}, {v(S[t]+i)}")
    return out
pvhi = lambda t, vb: [f"v_smfmac_f32_32x32x32_bf16 {v(O[t],16)}, {v(V[vb][1],4)}, {v(S[t]+8,8)}, {v(IDX)}"]
pvlo = lambda t, vb: [f"v_smfmac_f32_32x32x32_bf16 {v(O[t],16)}, {v(V[vb][0],4)}, {v(S[t],8)}, {v(IDX)}"]
qk1 = lambda t, kb: [f"v_mfma_f32_32x32x16_bf16 {v(S[t],16)}, {v(K1[kb],4)}, {v(Q1[t],4)}, 0"]
q2b = lambda t, sg: [f"v_mfma_f32_32x32x4bf16_1k {v(S[t],32)}, {v(K2 + (sg & 2),2)}, {v(Q2[t>>1] + 2*(sg & 1),2)}, {v(S[t],32)}"]

def attn_step(sg, sub, prio=None):
    b = sg & 1; nb = b ^ 1
    off = 512 + (sg+1)*STEPB if sg < 3 else BLK + 512
    k1 = [f"ds_read_b128 {v(K1[nb],4)}, {v(AK1)} offset:{off}"]
    v0 = [f"ds_read_b128 {v(V[nb][0],4)}, {v(AV)} offset:{off+1024}"]
    v1 = [f"ds_read_b128 {v(V[nb][1],4)}, {v(AV)} offset:{off+1024+2*VH}"]
    k2 = []
    if sg == 0: k2 = [f"ds_read_b64 {v(K2+2,2)}, {v(AK2)} offset:8"]
    if sg == 2: k2 = [f"ds_read_b64 {v(K2,2)}, {v(AK2)} offset:{BLK}"]
    w = ["s_waitcnt lgkmcnt(0)"]
    P = (lambda k: [f"s_setprio {prio[k]}"] if prio and k in prio else [])
    L = P((sg, 0))
    L += E(0,0,2,sub) + pvhi(3, nb) + E(0,2,4,sub) + k1 + E(0,4,5,sub) + qk1(3, b) + E(0,5,8,sub) + v0 + E(0,8,10,sub) + pvlo(0, b) + E(0,10,12,sub) + v1 + E(0,12,14,sub) + q2b(2, sg) + E(0,14,16,sub) + k2
    L += P((sg, 1))
    L += E(1,0,6,sub) + pvhi(0, b) + E(1,6,9,sub) + w + qk1(0, nb) + E(1,9,12,sub) + pvlo(1, b) + E(1,12,16,sub)
    L += P((sg, 2))
    L += E(2,0,2,sub) + pvhi(1, b) + E(2,2,5,sub) + qk1(1, nb) + E(2,5,10,sub) + pvlo(2, b) + E(2,10,14,sub) + q2b(0, (sg+1) & 3) + E(2,14,16,sub)
    L += P((sg, 3))
    L += E(3,0,6,sub) + pvhi(2, b) + E(3,6,9,sub) + qk1(2, nb) + E(3,9,12,sub) + pvlo(3, b) + E(3,12,16,sub)
    return L

def attn_first_frags(a):
    a(f"ds_read_b128 {v(K1[0],4)}, {v(AK1)} offset:512", f"ds_read_b64 {v(K2,2)}, {v(AK2)}",
      f"ds_read_b128 {v(V[0][0],4)}, {v(AV)} offset:{512+1024}", f"ds_read_b128 {v(V[0][1],4)}, {v(AV)} offset:{512+1024+2*VH}")

def attn_loop(a, uid, sub, prio=None):
    a("s_waitcnt lgkmcnt(0)")
    a(qk1(0, 0), qk1(1, 0), qk1(2, 0), "s_nop 7", "s_nop 0", q2b(0, 0), f"s_mov_b32 {s(SIT)}, 0", "s_nop 15", "s_nop 2")
    a(".p2align 6")
    a.label(f"L_att{uid}")
    for sg in range(4): a(attn_step(sg, sub, prio))
    a(f"v_add_u32 {v(AK1)}, {BLK}, {v(AK1)}", f"v_add_u32 {v(AK2)}, {BLK}, {v(AK2)}", f"v_add_u32 {v(AV)}, {BLK}, {v(AV)}")
    a(f"s_add_u32 {s(SIT)}, {s(SIT)}, 1", f"s_cmp_eq_u32 {s(SIT)}, 1", f"s_cbranch_scc1 L_attb{uid}", f"s_cmp_lt_u32 {s(SIT)}, 8", f"s_cbranch_scc1 L_att{uid}", f"s_branch L_atte{uid}")
    a.label(f"L_attb{uid}")
    a("s_waitcnt vmcnt(0)", "s_barrier", f"s_branch L_att{uid}")
    a.label(f"L_atte{uid}")
    a(pvhi(3, 1))

def zero_acc(a):
    for r in range(64): a(f"v_mov_b32 {v(O[0]+r)}, 0")
    for r in range(8): a(f"v_mov_b32 {v(S[3]+8+r)}, 0")
    for r in range(4): a(f"v_mov_b32 {v(V[1][1]+r)}, 0")

def max_pass(a):
    a("s_waitcnt vmcnt(0)", "s_barrier")
    for t in range(4): a(f"v_mov_b32 {v(MX+t)}, 0xff800000")
    a(f"s_mov_b32 {s(SIT)}, 0")
    a.label("L_mx")
    a(f"ds_read_b128 {v(K2,4)}, {v(AK2)}")
    for sg in range(4):
        a(f"ds_read_b128 {v(K1[0],4)}, {v(AK1)} offset:{512 + sg*STEPB}", "s_waitcnt lgkmcnt(0)")
        for t in range(4): a(qk1(t, 0))
        a("s_nop 9", q2b(0, sg), q2b(2, sg), "s_nop 15", "s_nop 3")
        for t in range(4):
            for r in range(8): a(f"v_max3_f32 {v(MX+t)}, {v(S[t]+2*r)}, {v(S[t]+2*r+1)}, {v(MX+t)}")
    a(f"v_add_u32 {v(AK1)}, {BLK}, {v(AK1)}", f"v_add_u32 {v(AK2)}, {BLK}, {v(AK2)}")
    a(f"s_add_u32 {s(SIT)}, {s(SIT)}, 1", f"s_cmp_lt_u32 {s(SIT)}, 8", "s_cbranch_scc1 L_mx")
    a(f"v_subrev_u32 {v(AK1)}, {8*BLK}, {v(AK1)}", f"v_subrev_u32 {v(AK2)}, {8*BLK}, {v(AK2)}")
    a(f"v_lshlrev_b32 v11, 4, v0", f"v_add_u32 v11, {KVB + 2048}, v11", f"ds_write_b128 v11, {v(MX,4)}", "s_waitcnt lgkmcnt(0)", "s_barrier")
    a(f"v_xor_b32 v12, 32, v0", "v_xor_b32 v13, 0x100, v0", "v_xor_b32 v14, 0x120, v0")
    for i in range(3): a(f"v_lshlrev_b32 {v(12+i)}, 4, {v(12+i)}", f"v_add_u32 {v(12+i)}, {KVB + 2048}, {v(12+i)}", f"ds_read_b128 {v(S[0]+4*i,4)}, {v(12+i)}")
    a("s_waitcnt lgkmcnt(0)")
    for t in range(4): a(f"v_max3_f32 {v(MX+t)}, {v(MX+t)}, {v(S[0]+t)}, {v(S[0]+4+t)}", f"v_max_f32 {v(MX+t)}, {v(MX+t)}, {v(S[0]+8+t)}")

FLAGA = KVB + 10240
def attn_epilogue(a, uid, check_range, oflags, after_barrier=None):
    L = v(LANE)
    a("s_nop 7")
    if check_range:
        a(f"s_mov_b32 {s(ST)}, 0x21800000", f"s_mov_b32 {s(ST+1)}, 0x5d800000", f"s_mov_b32 {s(ST+2)}, 0x7e800000", "s_nop 0")
        a(f"v_min3_f32 v11, {v(O[0]+9)}, {v(O[1]+9)}, {v(O[2]+9)}", f"v_max3_f32 v12, {v(O[0]+9)}, {v(O[1]+9)}, {v(O[2]+9)}",
          f"v_min_f32 v11, v11, {v(O[3]+9)}", f"v_max_f32 v12, v12, {v(O[3]+9)}")
        a(f"v_add_f32 v13, abs({v(O[0])}), abs({v(O[1])})", f"v_add_f32 v14, abs({v(O[2])}), abs({v(O[3])})")
        for r in range(1, 10):
            for t in range(0, 4, 2):
                a(f"v_add_f32 v13, abs({v(O[t]+r)}), v13", f"v_add_f32 v14, abs({v(O[t+1]+r)}), v14")
        a("v_add_f32 v13, v13, v14", f"v_cmp_nle_f32 vcc, {s(ST)}, v11", f"v_cmp_nge_f32 {s(ST+4,2)}, {s(ST+1)}, v12", f"v_cmp_nge_f32 {s(ST+6,2)}, {s(ST+2)}, v13", "s_nop 0",
          f"s_or_b64 vcc, vcc, {s(ST+4,2)}", f"s_or_b64 vcc, vcc, {s(ST+6,2)}", "s_cmp_lg_u64 vcc, 0", f"s_cselect_b32 {s(ST)}, 1, 0", f"v_mov_b32 v11, {s(ST)}",
          f"s_lshl_b32 {s(ST+1)}, {s(SW)}, 2", f"s_add_u32 {s(ST+1)}, {s(ST+1)}, {FLAGA}", f"v_mov_b32 v12, {s(ST+1)}", "ds_write_b32 v12, v11")
    else: a("s_nop 3")
    a(f"s_mul_i32 {s(ST)}, {s(SW)}, 6144", f"v_lshl_add_u32 v13, {L}, 4, {s(ST)}", f"s_xor_b32 {s(ST+1)}, {s(SW)}, 4", f"s_mul_i32 {s(ST+1)}, {s(ST+1)}, 6144", f"v_lshl_add_u32 v14, {L}, 4, {s(ST+1)}")
    a("s_waitcnt lgkmcnt(0)", "s_barrier")
    if check_range:
        a(f"v_mov_b32 v12, {FLAGA}", f"ds_read_b128 {v(S[2],4)}, v12", f"ds_read_b128 {v(S[2]+4,4)}, v12 offset:16", "s_waitcnt lgkmcnt(0)",
          f"v_or3_b32 v11, {v(S[2])}, {v(S[2]+1)}, {v(S[2]+2)}", f"v_or3_b32 v11, v11, {v(S[2]+3)}, {v(S[2]+4)}", f"v_or3_b32 v11, v11, {v(S[2]+5)}, {v(S[2]+6)}", f"v_or_b32 v11, v11, {v(S[2]+7)}",
          "s_nop 0", f"v_readfirstlane_b32 {s(ST)}, v11", "s_nop 1", f"s_cmp_lg_u32 {s(ST)}, 0", "s_cbranch_scc1 L_fallback")
    if after_barrier: after_barrier(a)
    a(f"s_and_b32 {s(ST)}, {s(SQB)}, 1", f"s_lshl_b32 {s(ST)}, {s(ST)}, 1", f"s_lshr_b32 {s(ST+1)}, {s(SW)}, 2", f"s_add_u32 {s(ST)}, {s(ST)}, {s(ST+1)}",
      f"s_lshl_b32 {s(ST+1)}, {s(SGRP)}, 2", f"s_add_u32 {s(ST)}, {s(ST)}, {s(ST+1)}", f"s_mul_i32 {s(ST)}, {s(ST)}, 36", f"s_mul_i32 {s(ST+1)}, {s(SHG)}, 9", f"s_add_u32 {s(ST)}, {s(ST)}, {s(ST+1)}",
      f"s_lshl_b32 {s(ST)}, {s(ST)}, 10", f"s_and_b32 {s(ST+1)}, {s(SW)}, 3", f"s_lshl_b32 {s(ST+2)}, {s(ST+1)}, 2", f"s_add_u32 {s(ST+2)}, {s(ST+2)}, {s(ST)}", f"s_add_u32 {s(ST+2)}, {s(ST+2)}, 8192",
      f"s_lshl_b32 {s(ST+1)}, {s(ST+1)}, 11", f"s_add_u32 {s(ST)}, {s(ST)}, {s(ST+1)}", f"v_lshlrev_b32 v15, 4, {L}")
    a(f"s_cmp_ge_u32 {s(SW)}, 4", f"s_cbranch_scc1 L_ep1{uid}")
    for kh in (0, 1):
        if kh: a.label(f"L_ep1{uid}")
        for hh in range(2):
            for q in range(3): a(f"ds_write_b128 v13, {v(O[2*(1-kh)+hh]+4*q,4)} offset:{hh*3072 + q*1024}")
        a("s_waitcnt lgkmcnt(0)", "s_barrier")
        for hh in range(2):
            for q in range(3): a(f"ds_read_b128 {v(S[hh]+4*q,4)}, v14 offset:{hh*3072 + q*1024}")
        for hh in range(2):
            T = O[2*kh+hh]
            a(f"s_waitcnt lgkmcnt({3-3*hh})")
            for r in (9, 0, 1, 2, 3, 4, 5, 6, 7, 8):
                a(f"v_add_f32 {v(T+r)}, {v(T+r)}, {v(S[hh]+r)}")
                if r == 0: a(f"v_rcp_f32 {v(T+9)}, {v(T+9)}")
            for r in range(9): a(f"v_mul_f32 {v(T+r)}, {v(T+r)}, {v(T+9)}")
            for r in range(4): a(f"v_cvt_pk_bf16_f32 {v(S[2]+4*hh+r)}, {v(T+2*r)}, {v(T+2*r+1)}")
            a(f"buffer_store_dwordx4 {v(S[2]+4*hh,4)}, v15, {s(RO,4)}, {s(ST)} offen offset:{1024*hh}{oflags}")
        a(f"v_cvt_pk_bf16_f32 {v(S[2]+8)}, {v(O[2*kh]+8)}, {v(O[2*kh+1]+8)}", f"buffer_store_dword {v(S[2]+8)}, v15, {s(RO,4)}, {s(ST+2)} offen{oflags}")
        if kh == 0: a(f"s_branch L_ep2{uid}")
    a.label(f"L_ep2{uid}")

def attention(a, kvflags, oflags, wait_kv=None, after_barrier=None, prio=None):
    stamp(a, 3)
    kv_dma_setup(a); attn_addr(a)
    if wait_kv: wait_kv(a)
    a("s_waitcnt lgkmcnt(0)", "s_barrier")
    kv_dma(a, 3, kvflags)
    q_fetch(a)
    zero_acc(a)
    a("s_waitcnt vmcnt(0) lgkmcnt(0)", "s_barrier")
    stamp(a, 4)
    attn_first_frags(a)
    kv_dma2(a, kvflags)
    wo_touch(a)
    if prio:
        a(f"s_cmp_ge_u32 {s(SW)}, 4", "s_cbranch_scc1 L_attB")
        attn_loop(a, "A", False, prio[0]); a("s_setprio 0", "s_branch L_attD")
        a.label("L_attB"); a("s_setprio 1")
        attn_loop(a, "B", False, prio[1]); a("s_setprio 0")
        a.label("L_attD")
    else:
        attn_loop(a, "A", False)
    stamp(a, 5)
    attn_epilogue(a, "f", True, oflags, after_barrier)
    stamp(a, 6)

def fallback(a, kvflags, oflags, after_barrier, back):
    a.label("L_fallback")
    a(f"v_subrev_u32 {v(AK1)}, {8*BLK}, {v(AK1)}", f"v_subrev_u32 {v(AK2)}, {8*BLK}, {v(AK2)}", f"v_subrev_u32 {v(AV)}, {8*BLK}, {v(AV)}")
    max_pass(a)
    zero_acc(a)
    attn_first_frags(a)
    attn_loop(a, "S", True)
    attn_epilogue(a, "s", False, oflags, after_barrier)
    a(f"s_branch {back}")

BF, AF, D0, DX = 16, 88, 136, 168
A0, A1, AXT = 2, 3, 4
def wo_dma(a):
    L = v(LANE)
    a(f"v_lshrrev_b32 v2, 3, {L}", f"v_and_b32 v3, 7, {L}", f"v_bfe_u32 v4, {L}, 4, 1", "v_lshlrev_b32 v4, 2, v4", "v_xor_b32 v3, v3, v4", "v_lshlrev_b32 v3, 4, v3",
      f"s_movk_i32 {s(ST+4)}, 1152", f"s_movk_i32 {s(ST+5)}, {18*1152}", f"v_mad_u32_u24 v4, v2, {s(ST+5)}, v3", f"v_mad_u32_u24 v3, v2, {s(ST+4)}, v3")
    a(f"s_lshr_b32 {s(ST+2)}, {s(SW)}, 1", f"s_and_b32 {s(ST+3)}, {s(SW)}, 1", f"s_mul_i32 {s(ST+6)}, {s(ST+2)}, {144*1152}", f"s_lshl_b32 {s(ST)}, {s(SJJ)}, 7", f"s_add_u32 {s(ST+7)}, {s(ST+6)}, {s(ST)}",
      f"s_mul_i32 {s(ST)}, {s(ST+3)}, {8*1152}", f"s_add_u32 {s(ST)}, {s(ST)}, {s(ST+7)}",
      f"s_mul_i32 {s(ST+1)}, {s(ST+2)}, {9*2048}", f"s_lshl_b32 {s(ST+8)}, {s(ST+3)}, 10", f"s_add_u32 {s(ST+1)}, {s(ST+1)}, {s(ST+8)}", f"s_add_u32 {s(ST+1)}, {s(ST+1)}, {WOM}")
    for ff in range(8):
        dma(a, 3, RW, s(ST), ldsaddr_s=ST+1)
        a(f"s_add_u32 {s(ST)}, {s(ST)}, {18*1152}", f"s_add_u32 {s(ST+1)}, {s(ST+1)}, 2048")
    a(f"s_mul_i32 {s(ST)}, {s(ST+3)}, 1152", f"s_add_u32 {s(ST)}, {s(ST)}, {s(ST+7)}", f"s_add_u32 {s(ST)}, {s(ST)}, {16*1152}")
    dma(a, 4, RW, s(ST), ldsaddr_s=ST+1)
    a(f"v_lshrrev_b32 v2, 2, {L}", f"v_and_b32 v3, 3, {L}", "v_lshlrev_b32 v3, 4, v3", "v_and_b32 v4, 7, v2", f"v_mad_u32_u24 v4, v4, {s(ST+5)}, v3", f"v_lshrrev_b32 v5, 5, {L}",
      f"v_mad_u32_u24 v4, v5, {s(ST+4)}, v4", f"v_mad_u32_u24 v3, v2, {s(ST+4)}, v3")
    a(f"s_lshr_b32 {s(ST)}, {s(SJJ)}, 2", f"s_lshl_b32 {s(ST)}, {s(ST)}, 6", f"s_add_u32 {s(ST+6)}, {s(ST+6)}, {s(ST)}", f"s_add_u32 {s(ST+6)}, {s(ST+6)}, 1024",
      f"s_mul_i32 {s(ST)}, {s(ST+3)}, {18*1152}", f"s_add_u32 {s(ST)}, {s(ST)}, {s(ST+6)}",
      f"s_mul_i32 {s(ST+7)}, {s(ST+2)}, {9*1024}", f"s_add_u32 {s(ST+7)}, {s(ST+7)}, {WOX}", f"s_add_u32 {s(ST+1)}, {s(ST+7)}, {s(ST+8)}")
    for n in range(4):
        dma(a, 3, RW, s(ST), ldsaddr_s=ST+1)
        if n < 3: a(f"s_add_u32 {s(ST)}, {s(ST)}, {36*1152}", f"s_add_u32 {s(ST+1)}, {s(ST+1)}, 2048")
    a(f"s_cmp_eq_u32 {s(ST+3)}, 0", f"s_cbranch_scc0 L_wox{a.uid}", f"s_add_u32 {s(ST)}, {s(ST+6)}, {16*1152}", f"s_add_u32 {s(ST+1)}, {s(ST+7)}, 8192")
    dma(a, 4, RW, s(ST), ldsaddr_s=ST+1)
    a.label(f"L_wox{a.uid}"); a.uid += 1

def oproj(a, oflags, wait_o=None):
    L = v(LANE)
    a(f"s_lshr_b32 {s(ST+2)}, {s(SW)}, 1", f"s_and_b32 {s(ST+3)}, {s(SW)}, 1")
    a(f"s_lshl_b32 {s(ST)}, {s(SGRP)}, 2", f"s_add_u32 {s(ST)}, {s(ST)}, {s(ST+2)}", f"s_mul_i32 {s(ST)}, {s(ST)}, 36", f"s_mul_i32 {s(ST+1)}, {s(ST+3)}, 18", f"s_add_u32 {s(ST)}, {s(ST)}, {s(ST+1)}",
      f"s_lshl_b32 {s(ST)}, {s(ST)}, 10", f"v_lshlrev_b32 v15, 4, {L}")
    a(f"s_mov_b32 {s(ST+9)}, {s(ST)}")
    lane_fields(a)
    a("v_and_b32 v11, 1, v9", "v_lshlrev_b32 v11, 5, v11", "v_lshl_add_u32 v11, v7, 4, v11", "v_lshrrev_b32 v12, 1, v9", "v_lshl_add_u32 v11, v12, 3, v11", "v_lshl_add_u32 v12, v6, 3, v8")
    a(f"s_mul_i32 {s(ST)}, {s(ST+3)}, {18*1024}", f"s_add_u32 {s(ST+1)}, {s(ST)}, {WOX}", f"v_lshl_add_u32 v13, v12, 6, v11", f"v_add_u32 {v(AXT)}, {s(ST+1)}, v13",
      f"s_lshl_b32 {s(ST)}, {s(ST)}, 1", f"s_add_u32 {s(ST)}, {s(ST)}, {WOM}", "v_lshl_add_u32 v13, v12, 7, v11", f"v_add_u32 v13, {s(ST)}, v13",
      "v_lshrrev_b32 v12, 1, v8", f"v_lshl_add_u32 {v(A0)}, v12, 6, v13", "v_xor_b32 v12, 1, v12", f"v_lshl_add_u32 {v(A1)}, v12, 6, v13")
    a(f"s_lshl_b32 {s(ST)}, {s(SW)}, 12", f"v_add_u32 v13, {s(ST)}, v15", f"s_xor_b32 {s(ST)}, {s(ST)}, 4096", f"v_add_u32 v14, {s(ST)}, v15")
    a(f"s_and_b32 {s(ST)}, {s(SGRP)}, 15", f"s_lshl_b32 {s(ST)}, {s(ST)}, 2", f"s_add_u32 {s(ST)}, {s(ST)}, {s(ST+2)}", f"s_mul_i32 {s(ST)}, {s(ST)}, {32*2304}", f"s_mul_i32 {s(ST+1)}, {s(SB)}, 1152",
      f"s_add_u32 {s(ST+4)}, {s(ST)}, {s(ST+1)}", f"s_movk_i32 {s(ST+1)}, 2304", "v_lshlrev_b32 v12, 5, v6", f"v_mad_u32_u24 v12, v10, {s(ST+1)}, v12",
      f"s_lshr_b32 {s(ST)}, {s(SJJ)}, 2", f"s_lshl_b32 {s(ST)}, {s(ST)}, 6", f"s_add_u32 {s(ST+5)}, {s(ST+4)}, {s(ST)}", f"s_add_u32 {s(ST+5)}, {s(ST+5)}, 1024",
      f"s_lshl_b32 {s(ST)}, {s(SJJ)}, 7", f"s_add_u32 {s(ST+4)}, {s(ST+4)}, {s(ST)}", f"s_lshl_b32 {s(ST)}, {s(ST+3)}, 6", f"s_add_u32 {s(ST+4)}, {s(ST+4)}, {s(ST)}")
    a(f"s_mul_i32 {s(ST+6)}, {s(SJJ)}, 144", f"s_mul_i32 s3, {s(SW)}, 18", f"s_add_u32 {s(ST+6)}, {s(ST+6)}, s3", f"s_lshl_b32 {s(ST+6)}, {s(ST+6)}, 7", f"s_mul_i32 s3, {s(SGRP)}, {144*1024}", f"s_add_u32 {s(ST+6)}, {s(ST+6)}, s3",
      f"v_lshlrev_b32 v5, 7, {L}")
    wait_o(a)
    stamp(a, 7)
    a("s_mov_b32 exec_lo, 0x3ffff", "s_mov_b32 exec_hi, 0", f"buffer_load_dword {v(JUNK)}, v5, {s(RO,4)}, {s(ST+6)} offen{oflags}", "s_mov_b64 exec, -1")
    for fi in range(18):
        a(f"buffer_load_dwordx4 {v(BF+4*fi,4)}, v15, {s(RO,4)}, {s(ST+9)} offen offset:{1024*(fi&3)}{oflags}")
        if fi & 3 == 3: a(f"s_add_u32 {s(ST+9)}, {s(ST+9)}, 4096")
    a(f"s_and_b32 {s(ST)}, {s(SJJ)}, 3", f"s_cmp_eq_u32 {s(ST)}, {s(ST+2)}", "s_cbranch_scc1 L_opx")
    for ext in (0, 1):
        if ext: a.label("L_opx")
        nt = 3 if ext else 2; depth = 2 if ext else 3
        def reads(fi):
            bb = AF + 12*(fi % depth if ext else fi % depth)
            for c in range(2):
                a(f"ds_read_b64_tr_b16 {v(bb+4*c,2)}, {v(A0+c)} offset:{fi*2048}", f"ds_read_b64_tr_b16 {v(bb+4*c+2,2)}, {v(A0+c)} offset:{fi*2048+512}")
            if ext: a(f"ds_read_b64_tr_b16 {v(bb+8,2)}, {v(AXT)} offset:{fi*1024}", f"ds_read_b64_tr_b16 {v(bb+10,2)}, {v(AXT)} offset:{fi*1024+256}")
        for fi in range(depth): reads(fi)
        for fi in range(18):
            bb = AF + 12*(fi % depth)
            later = min(17, fi+depth-1) - fi
            a(f"s_waitcnt vmcnt({17-fi}) lgkmcnt({2*nt*later})")
            for c in range(nt):
                D = D0 + 16*c
                a(f"v_mfma_f32_32x32x16_bf16 {v(D,16)}, {v(bb+4*c,4)}, {v(BF+4*fi,4)}, {'0' if fi == 0 else v(D,16)}")
            if fi + depth < 18: reads(fi+depth)
        stamp(a, 8)
        a("s_nop 7", "s_nop 3")
        a(f"s_cmp_eq_u32 {s(ST+3)}, 0", f"s_cbranch_scc0 L_op1{ext}")
        for kh in (0, 1):
            if kh: a.label(f"L_op1{ext}")
            for q in range(4): a(f"ds_write_b128 v13, {v(D0+16*(1-kh)+4*q,4)} offset:{q*1024}")
            if ext and kh == 1:
                for q in range(4): a(f"ds_write_b128 v15, {v(DX+4*q,4)} offset:{32768 + q*1024}")
            a("s_waitcnt lgkmcnt(0)", "s_barrier")
            jobs = [(D0+16*kh, "v14", 0, ST+4)] + ([(DX, "v15", 32768, ST+5)] if (ext and kh == 0) else [])
            for n, (D, ad, of, so) in enumerate(jobs):
                for q in range(4): a(f"ds_read_b128 {v(BF+16*n+4*q,4)}, {ad} offset:{of + q*1024}")
            for n, (D, ad, of, so) in enumerate(jobs):
                for q in range(4):
                    a(f"s_waitcnt lgkmcnt({4*(len(jobs)-1-n) + 3 - q})")
                    for r in range(4): a(f"v_add_f32 {v(D+4*q+r)}, {v(D+4*q+r)}, {v(BF+16*n+4*q+r)}")
                    for r in range(2): a(f"v_cvt_pk_bf16_f32 {v(AF+8*n+2*q+r)}, {v(D+4*q+2*r)}, {v(D+4*q+2*r+1)}")
                    if q & 1: a(f"buffer_store_dwordx4 {v(AF+8*n+2*q-2,4)}, v12, {s(ROUT,4)}, {s(so)} offen offset:{16*(q>>1)}")
            if DIAG: a("s_waitcnt vmcnt(0)")
            stamp_out(a, a.kidx); a("s_endpgm")

def kernel(name, body, nvgpr=256):
    a = Asm(); a.uid = 0
    a.label(name)
    setup(a, f"L_end_{name}")
    body(a)
    a.label(f"L_end_{name}")
    a("s_endpgm")
    lines = []
    import re
    for l in a.lines:
        lines.append(re.sub(r"\bL_(\w+)", lambda m: f"L_{name[:3]}_{m.group(1)}", l))
    a.lines = lines
    n = check(a.lines)
    if n: print(f"{name}: {n} hazards"); sys.exit(1)
    head = f".globl {name}\n.p2align 8\n.type {name},@function\n"
    kd = f""".amdhsa_kernel {name}
  .amdhsa_next_free_vgpr {nvgpr}
  .amdhsa_next_free_sgpr 96
  .amdhsa_accum_offset {(nvgpr+3)//4*4}
  .amdhsa_group_segment_fixed_size 0
  .amdhsa_kernarg_size 104
  .amdhsa_user_sgpr_count 2
  .amdhsa_user_sgpr_kernarg_segment_ptr 1
  .amdhsa_system_sgpr_workgroup_id_x 1
.end_amdhsa_kernel
"""
    return head + a.text(), kd

def publish_o(a):
    wo_dma(a)
    a("s_waitcnt vmcnt(13)", "s_barrier")
    a(f"s_cmp_eq_u32 {s(SW)}, 0", "s_cbranch_scc0 L_noof", f"s_lshl_b32 s3, {s(SGRP)}, 3", f"s_add_u32 s3, s3, {s(SJJ)}", f"s_lshl_b32 {s(ST)}, s3, 7", f"s_add_u32 {s(ST)}, {s(ST)}, {FO}")
    flag_store(a, ST)
    a.label("L_noof")
def wait_o(a):
    a(f"s_cmp_eq_u32 {s(SW)}, 0", "s_cbranch_scc0 L_oseen", f"s_lshl_b32 {s(ST+7)}, {s(SGRP)}, 10", f"s_add_u32 {s(ST+7)}, {s(ST+7)}, {FO}",
      "v_mov_b32 v201, v11", "v_mov_b32 v202, v12", "v_mov_b32 v203, v13")
    poll(a, "o", ST+7, 1, mask=0xff)
    a("v_mov_b32 v11, v201", "v_mov_b32 v12, v202", "v_mov_b32 v13, v203")
    a.label("L_oseen")
    a("s_waitcnt vmcnt(0)", "s_barrier")

def build(mode, prio=None):
    def k1(a):
        a.kidx = 0
        prologue(a); attention(a, " sc1", " sc1", wait_kv=wait_kv, prio=prio); a.label("L_fin")
        publish_o(a); oproj(a, " sc1", wait_o); fallback(a, " sc1", " sc1", None, "L_fin")
    ks = [(NAME + "_kernel", k1)]
    hdr = open(os.path.join(os.path.dirname(os.path.abspath(__file__)), "header.txt")).read()
    out = hdr
    out += f"; @launch grid=(256,1,1) block=(512,1,1) lds={LDS_TOTAL}\n"
    out += '.amdgcn_target "amdgcn-amd-amdhsa--gfx950"\n.text\n'
    kds = ""
    for n, f in ks:
        t, kd = kernel(n, f)
        out += t; kds += ".p2align 6\n" + kd
    out += '.section .rodata,"a"\n' + kds
    return out

if __name__ == "__main__":
    if "diag" in sys.argv: DIAG = True; sys.argv.remove("diag")
    mode = sys.argv[1] if len(sys.argv) > 1 else "one"
    dst = sys.argv[2] if len(sys.argv) > 2 else f"cdna_kernels/{NAME}.s"
    open(dst, "w").write(build(mode))
    print("wrote", dst)
```

```python
import sys, os, struct, math
from asmlib import Asm, v, s, check

NAME = "concat_heads__grouped_kv_mqa__grouped_kv_mqa__prompt"
VH = 304
STEPB = 1024 + 4*VH
BLK = 512 + 4*STEPB
KVB = 16*BLK
KVSTRIDE = 0x40000
OOFF = 0x100000
OBYTES = 2*2048*576*2
LDS_TOTAL = 163840
XKB = 0; WKVB = 36864; RB = WKVB + 27648; SLOT = 22528; QX = RB + 2*SLOT; QS = 296
assert RB + 4*SLOT <= LDS_TOTAL
FOFF = 0x80000
FKV, FO, FEP = 0, 0x8000, 0x10000
TAGC = 0x9E3779B1
SPIN = 1 << 20
WOM = 49152; WOX = WOM + 73728
assert WOX + 36864 <= LDS_TOTAL
SCALE = 18 ** -0.5 * math.log2(math.e)
def fbits(x): return struct.unpack("<I", struct.pack("<f", x))[0]
RX, RW, RKW, RKV, RO, ROUT, RDBG = 4, 8, 12, 16, 20, 24, 28
SB, SQB, SHG, SW = 32, 33, 34, 35
ST = 36
SEX = 48
SIT = 50; SFLAG = 51; SJJ = 52; SGRP = 53
PWO = 54
STAG = 74; SJ = 75; SWB, SXB, SLB = 58, 59, 60
JUNK = 200
LANE = 1

DIAG = False
STAMP0 = 76
def stamp(a, i):
    if DIAG: a(f"s_memrealtime {s(STAMP0 + 2*i, 2)}")
def stamp_out(a, kidx):
    if not DIAG: return
    a("s_memrealtime s[94:95]", "s_waitcnt lgkmcnt(0)", "s_mov_b64 exec, -1")
    if DIAG == 2:
        srd(a, RDBG, 68, 256)
        a(f"v_lshlrev_b32 v250, 2, {v(LANE)}", f"s_not_b32 s3, {s(STAMP0)}", "v_mov_b32 v251, s3")
        for i in range(10): a(f"v_writelane_b32 v251, {s(STAMP0 + 2*i)}, {i+1}")
        for n, i in enumerate((2, 3, 4, 5, 7)): a(f"s_not_b32 s3, {s(STAMP0 + 2*i)}", f"v_writelane_b32 v251, s3, {11+n}")
        a(f"s_and_b32 s3, {s(SW)}, 3", "s_cmp_eq_u32 s3, 0", f"s_cbranch_scc0 L_dg{a.uid}", "s_mov_b32 exec_lo, 0xffff", "s_mov_b32 exec_hi, 0", f"buffer_atomic_umax v251, v250, {s(RDBG,4)}, 0 offen sc1")
        a.label(f"L_dg{a.uid}"); a.uid += 1
        return
    a(f"s_add_u32 s72, s70, {0x800000 + kidx*0x40000}", "s_addc_u32 s73, s71, 0")
    srd(a, RDBG, 72, 0x40000)
    a("s_lshl_b32 s3, s2, 3", f"s_add_u32 s3, s3, {s(SW)}", "s_lshl_b32 s3, s3, 6", "v_mov_b32 v250, 0")
    for i in range(10):
        a(f"v_mov_b32 v251, {s(STAMP0 + 2*i)}", f"buffer_store_dword v251, v250, {s(RDBG,4)}, s3 offen offset:{4*i}")

def srd(a, r, ptr, size):
    a(f"s_mov_b32 {s(r)}, {s(ptr)}", f"s_mov_b32 {s(r+1)}, {s(ptr+1)}", f"s_mov_b32 {s(r+2)}, {size}", f"s_mov_b32 {s(r+3)}, 0x20000")

def setup(a, endlabel):
    a(f"s_cmp_ge_u32 s2, 256", f"s_cbranch_scc1 {endlabel}")
    if DIAG:
        for i in range(1, 10): a(f"s_mov_b32 {s(STAMP0+2*i)}, 0")
    stamp(a, 0)
    a(f"s_and_b32 {s(SB)}, s2, 1", f"s_mul_i32 s3, {s(SB)}, 40", "s_add_u32 s56, s0, s3", "s_addc_u32 s57, s1, 0")
    a("s_load_dwordx2 s[58:59], s[56:57], 0", "s_load_dwordx2 s[60:61], s[56:57], 8", "s_load_dwordx2 s[62:63], s[56:57], 16",
      "s_load_dwordx2 s[64:65], s[56:57], 24", f"s_load_dwordx2 {s(PWO,2)}, s[56:57], 32",
      "s_load_dwordx2 s[66:67], s[0:1], 80", "s_load_dwordx2 s[68:69], s[0:1], 88", "s_load_dwordx2 s[70:71], s[0:1], 96")
    a(f"v_lshrrev_b32 v2, 6, v0", f"v_and_b32 {v(LANE)}, 63, v0")
    a(f"s_bfe_u32 s3, s2, 0x20001", f"s_lshl_b32 s3, s3, 3", f"s_lshr_b32 {s(SQB)}, s2, 5", f"s_add_u32 {s(SQB)}, {s(SQB)}, s3", f"s_bfe_u32 {s(SHG)}, s2, 0x20003")
    a(f"v_readfirstlane_b32 {s(SW)}, v2")
    a(f"s_and_b32 s3, {s(SQB)}, 1", f"s_lshl_b32 s3, s3, 2", f"s_add_u32 {s(SJJ)}, s3, {s(SHG)}")
    a(f"s_lshr_b32 s3, {s(SQB)}, 1", f"s_lshl_b32 {s(SGRP)}, {s(SB)}, 4", f"s_add_u32 {s(SGRP)}, {s(SGRP)}, s3")
    a("s_waitcnt lgkmcnt(0)")
    srd(a, RX, 58, 2048*1152); srd(a, RW, 60, 576*1152)
    a(f"s_bitcmp1_b32 {s(SHG)}, 0", "s_cselect_b64 s[62:63], s[64:65], s[62:63]")
    srd(a, RKW, 62, 576*36)
    a(f"s_lshl_b32 s3, {s(SB)}, 18", "s_add_u32 s72, s70, s3", "s_addc_u32 s73, s71, 0")
    srd(a, RKV, 72, KVB)
    a(f"s_add_u32 s72, s70, {OOFF}", "s_addc_u32 s73, s71, 0")
    srd(a, RO, 72, OBYTES); srd(a, ROUT, 66, OBYTES)
    a(f"s_add_u32 s72, s70, {FOFF}", "s_addc_u32 s73, s71, 0")
    srd(a, RDBG, 72, 0x10100)

def dma(a, vaddr, r, soff, ldsaddr_s=None, ldsaddr=None, flags=""):
    if ldsaddr_s is not None: a(f"s_mov_b32 m0, {s(ldsaddr_s)}")
    else: a(f"s_mov_b32 m0, {ldsaddr}")
    a("s_nop 0", f"buffer_load_dwordx4 {v(vaddr)}, {s(r,4)}, {soff} offen{flags} lds")

ACA, ACB, ACC2 = 16, 32, 48
FR = [64, 112]
XF, WF = 64, 80
X16, W16 = [96, 112], [104, 120]
AX, AXB, AW, AX16, AX16T, AWR, AXK, AWK, APT, DW, D3, TAGV = 160, 164, 168, 169, 171, 173, 175, 176, 177, 178, 179, 180

def swz_row(a, dst, row, sel, tmp):
    a(f"v_bfe_u32 {v(tmp)}, {v(row)}, 1, 3", f"v_xor_b32 {v(tmp)}, {v(tmp)}, {v(sel)}", f"v_lshlrev_b32 {v(tmp)}, 4, {v(tmp)}",
      f"v_lshl_add_u32 {v(dst)}, {v(row)}, 7, {v(tmp)}")

def wrap9(a, r):
    a(f"s_cmp_ge_u32 {s(r)}, 9", f"s_cselect_b32 s3, 9, 0", f"s_sub_u32 {s(r)}, {s(r)}, s3")

def chunk_dma(a, n, role):
    sl = RB + (n & 3)*SLOT
    a(f"s_mul_i32 {s(ST+8)}, {s(SJ)}, {64*1152}", f"s_add_u32 {s(ST+9)}, {s(ST+8)}, {s(SWB)}", f"s_add_u32 m0, {s(SLB)}, {sl}")
    if role == 0: a(f"s_lshl_b32 {s(ST+8)}, {s(SJ)}, 7")
    else: a("s_nop 0")
    a(f"buffer_load_dwordx4 {v(DW)}, {s(RW,4)}, {s(ST+9)} offen lds")
    a(f"s_add_u32 m0, {s(SLB)}, {sl + 1024}", f"s_add_u32 {s(ST+9)}, {s(ST+9)}, {4*1152}", f"buffer_load_dwordx4 {v(DW)}, {s(RW,4)}, {s(ST+9)} offen lds")
    a(f"s_add_u32 m0, {s(SLB+1)}, {sl}", f"s_add_u32 {s(ST+8)}, {s(ST+8)}, {s(SXB)}", f"buffer_load_dwordx4 {v(D3)}, {s(RX if role == 0 else RW,4)}, {s(ST+8)} offen lds")
    if n < 8:
        a(f"s_add_u32 {s(SJ)}, {s(SJ)}, 1"); wrap9(a, SJ)

def issue_loads(a, role):
    L = v(LANE)
    a(f"s_lshl_b32 {s(ST)}, {s(SB)}, 7", f"s_add_u32 {s(ST)}, {s(ST)}, {FEP}", "v_mov_b32 v2, 0", f"buffer_load_dword {v(TAGV)}, v2, {s(RDBG,4)}, {s(ST)} offen sc1")
    a(f"s_and_b32 {s(SJ)}, {s(SQB)}, 7", f"s_and_b32 s3, {s(SHG)}, 1", "s_lshl_b32 s3, s3, 2", f"s_add_u32 {s(SJ)}, {s(SJ)}, s3"); wrap9(a, SJ)
    a(f"v_lshrrev_b32 v2, 3, {L}", f"v_and_b32 v3, 7, {L}", f"s_lshl_b32 {s(ST)}, {s(SW)}, 2", f"v_lshrrev_b32 v4, 1, v2",
      f"v_add_u32 v4, {s(ST)}, v4", "v_and_b32 v4, 7, v4", "v_xor_b32 v3, v3, v4", "v_lshlrev_b32 v3, 4, v3",
      f"s_movk_i32 {s(ST+7)}, 1152", f"v_mad_u32_u24 v2, v2, {s(ST+7)}, v3")
    a(f"s_lshr_b32 {s(ST+5)}, {s(SHG)}, 1", f"s_and_b32 {s(ST+6)}, {s(SW)}, 3", f"s_lshl_b32 {s(ST)}, {s(SQB)}, 3", f"s_add_u32 {s(ST)}, {s(ST)}, {s(ST+6)}",
      f"s_lshl_b32 s3, {s(ST+5)}, 2", f"s_add_u32 {s(ST+1)}, {s(ST)}, s3", f"s_mul_i32 {s(ST+1)}, {s(ST+1)}, {8*1152}",
      f"s_xor_b32 s3, s3, 4", f"s_add_u32 {s(ST)}, {s(ST)}, s3", f"s_mul_i32 {s(SXB)}, {s(ST)}, {8*1152}",
      f"s_lshl_b32 {s(ST+6)}, {s(ST+6)}, 10", f"s_add_u32 {s(ST+2)}, {s(SJ)}, {role}")
    wrap9(a, ST+2)
    def xk(i):
        n = min(role + 2*i, 8)
        a(f"s_lshl_b32 s3, {s(ST+2)}, 7", f"s_add_u32 m0, {s(ST+6)}, {XKB + n*4096}", f"s_add_u32 s3, s3, {s(ST+1)}", f"buffer_load_dwordx4 v2, {s(RX,4)}, s3 offen lds")
        nn = min(role + 2*i + 2, 8)
        if i < 4: a(f"s_add_u32 {s(ST+2)}, {s(ST+2)}, {nn - n}"); wrap9(a, ST+2)
    xk(0)
    if role == 1:
        a(f"s_lshr_b32 s3, s2, 4", "s_and_b32 s3, s3, 15", f"s_mul_i32 s3, s3, {11*128}", f"s_mul_i32 {s(ST+8)}, {s(ST+6)}, 3", f"s_lshr_b32 {s(ST+8)}, {s(ST+8)}, 3", f"s_add_u32 s3, s3, {s(ST+8)}",
          f"v_lshlrev_b32 v3, 7, {L}", "s_mov_b32 exec_lo, 7", "s_mov_b32 exec_hi, 0", f"buffer_load_dword {v(JUNK)}, v3, {s(RKW,4)}, s3 offen", "s_mov_b64 exec, -1")
    xk(1)
    a(f"v_lshrrev_b32 v3, 4, {L}", f"v_and_b32 v4, 15, {L}", "v_lshlrev_b32 v5, 2, v3", "v_xor_b32 v4, v4, v5", "v_lshlrev_b32 v4, 4, v4", f"v_mad_u32_u24 {v(DW)}, v3, {s(ST+7)}, v4")
    a(f"s_mul_i32 {s(ST+4)}, {s(SHG)}, 288", f"s_mul_i32 {s(SWB)}, {s(SW)}, {8*1152}", f"s_add_u32 {s(SWB)}, {s(SWB)}, {s(ST+4)}", f"s_lshl_b32 {s(SLB)}, {s(SW)}, 11")
    if role == 0:
        a(f"v_mov_b32 {v(D3)}, v2", f"s_add_u32 {s(SLB+1)}, {s(ST+6)}, 18432")
    else:
        a(f"v_lshrrev_b32 v3, 1, {L}", f"v_bfe_u32 v4, {L}, 4, 1", "v_lshlrev_b32 v4, 2, v4", "v_xor_b32 v3, v3, v4", f"v_and_b32 v4, 1, {L}", "v_lshlrev_b32 v4, 4, v4", f"v_mad_u32_u24 {v(D3)}, v3, {s(ST+7)}, v4",
          f"s_and_b32 s3, {s(SW)}, 1", f"s_mul_i32 {s(SXB)}, s3, {32*1152}", f"s_add_u32 {s(SXB)}, {s(SXB)}, {s(ST+4)}", f"s_add_u32 {s(SXB)}, {s(SXB)}, 256",
          f"s_lshl_b32 s3, s3, 10", f"s_add_u32 {s(SLB+1)}, s3, 16384")
    a(f"s_mov_b32 {s(ST+3)}, {s(SJ)}")
    chunk_dma(a, 0, role)
    xk(2); xk(3); xk(4)
    a(f"s_and_b32 {s(ST)}, {s(SW)}, 1", f"s_mul_i32 {s(ST)}, {s(ST)}, 72", f"s_lshr_b32 {s(ST+2)}, {s(SW)}, 1", f"s_mul_i32 {s(ST+2)}, {s(ST+2)}, {16*36}",
      f"s_mul_i32 {s(ST+1)}, {s(SW)}, {216*16}", f"s_add_u32 {s(ST+1)}, {s(ST+1)}, {WKVB}", f"s_movk_i32 {s(ST+4)}, 0x5556")
    for n in range(4):
        a(f"v_add_u32 v3, {64*n}, {L}" if n else f"v_mov_b32 v3, {L}")
        a(f"v_mul_u32_u24 v4, {s(ST+4)}, v3", "v_lshrrev_b32 v4, 16, v4", "v_mad_i32_i24 v3, v4, -3, v3")
        a(f"v_add_u32 v4, {s(ST)}, v4", "v_lshrrev_b32 v5, 4, v4", "v_and_b32 v4, 15, v4", f"v_add_u32 v5, {s(ST+3)}, v5", "v_subrev_u32 v6, 9, v5", "v_min_u32 v5, v5, v6",
          "v_lshl_add_u32 v4, v5, 6, v4", "v_mul_u32_u24 v4, 36, v4", "v_lshl_add_u32 v3, v3, 4, v4")
        if n == 3: a("s_mov_b32 exec_lo, 0xffffff", "s_mov_b32 exec_hi, 0")
        a(f"s_add_u32 m0, {s(ST+1)}, {1024*n}", "s_nop 0", f"buffer_load_dwordx4 v3, {s(RKW,4)}, {s(ST+2)} offen lds")
        if n == 3: a("s_mov_b64 exec, -1")
    for n in (1, 2, 3): chunk_dma(a, n, role)

def lane_fields(a):
    L = v(LANE)
    a(f"v_lshrrev_b32 v6, 5, {L}", f"v_bfe_u32 v7, {L}, 4, 1", f"v_bfe_u32 v8, {L}, 2, 2", f"v_and_b32 v9, 3, {L}", f"v_and_b32 v10, 31, {L}")

def addr_main(a):
    for r in range(4):
        a(f"v_add_u32 v11, {2*r}, v6")
        swz_row(a, AX+r, 10, 11, 12)
        a(f"v_add_u32 {v(AXB+r)}, {RB + 18432}, {v(AX+r)}")
    a(f"v_xor_b32 v11, {s(SW)}, v8", "v_lshlrev_b32 v11, 6, v11", "v_lshl_add_u32 v11, v7, 5, v11", "v_lshl_add_u32 v11, v9, 3, v11",
      "v_lshl_add_u32 v12, v6, 3, v8", "v_lshl_add_u32 v11, v12, 8, v11", f"v_add_u32 {v(AW)}, {RB}, v11")

def addr_rem(a):
    L = v(LANE)
    a(f"v_and_b32 v11, 15, {L}", f"s_and_b32 {s(ST)}, {s(SW)}, 1", f"s_lshl_b32 {s(ST)}, {s(ST)}, 4", f"v_add_u32 v11, {s(ST)}, v11", f"v_lshrrev_b32 v13, 4, {L}")
    for s2 in range(2):
        a(f"v_add_u32 v14, {4*s2}, v13")
        swz_row(a, AX16+s2, 11, 14, 12)
    for a4 in range(2):
        a(f"v_xor_b32 v12, {a4}, v7", "v_lshl_add_u32 v12, v12, 2, v8", "v_lshl_add_u32 v12, v13, 3, v12", "v_lshlrev_b32 v12, 5, v12",
          "v_lshl_add_u32 v12, v9, 3, v12", f"v_add_u32 {v(AWR+a4)}, {RB + 16384}, v12")

def addr_kv(a):
    a(f"s_sub_u32 {s(ST+2)}, {s(SW)}, 4", f"s_lshl_b32 {s(ST)}, {s(ST+2)}, 1", f"v_add_u32 v11, {s(ST)}, v6")
    swz_row(a, AXK, 10, 11, 12)
    a("v_lshlrev_b32 v11, 3, v9", "v_and_b32 v12, 1, v9", "v_lshlrev_b32 v12, 4, v12", "v_lshrrev_b32 v13, 1, v9", "v_lshl_add_u32 v12, v13, 3, v12")
    a(f"s_bitcmp1_b32 {s(SHG)}, 0", "s_cselect_b64 vcc, -1, 0", "v_cndmask_b32 v11, v12, v11, vcc")
    a("v_cmp_eq_u32 vcc, 1, v7", "s_nop 1", "v_cndmask_b32 v11, v11, 32, vcc")
    a("v_lshl_add_u32 v12, v6, 3, v8", "v_mad_u32_u24 v11, v12, 48, v11", f"s_mul_i32 {s(ST)}, {s(ST+2)}, {144*48}", f"s_add_u32 {s(ST)}, {s(ST)}, {WKVB}",
      f"v_add_u32 {v(AWK)}, {s(ST)}, v11", f"v_lshlrev_b32 v11, 4, {v(LANE)}", f"v_add_u32 {v(APT)}, {s(ST)}, v11")

def kv_compute(a):
    def reads(n):
        st = n & 3
        a(f"ds_read_b128 {v(XF+4*st,4)}, {v(AXK)} offset:{XKB + n*4096}",
          f"ds_read_b64_tr_b16 {v(WF+4*st,2)}, {v(AWK)} offset:{n*768}", f"ds_read_b64_tr_b16 {v(WF+4*st+2,2)}, {v(AWK)} offset:{n*768+192}")
    for typ in ("K", "V"):
        if typ == "K": a(f"s_bitcmp1_b32 {s(SHG)}, 0", "s_cbranch_scc1 L_kvV")
        else: a.label("L_kvV")
        for n in range(4): reads(n)
        for n in range(9):
            st = n & 3
            a(f"s_waitcnt lgkmcnt({3*(min(8, n+3) - n)})")
            A, B = (WF+4*st, XF+4*st) if typ == "K" else (XF+4*st, WF+4*st)
            a(f"v_mfma_f32_32x32x16_bf16 {v(ACA,16)}, {v(A,4)}, {v(B,4)}, {'0' if n == 0 else v(ACA,16)}")
            if n + 4 < 9: reads(n+4)
        if typ == "K": a("s_branch L_kvD")
    a.label("L_kvD")

def kv_finalize(a):
    L = v(LANE)
    a(f"s_sub_u32 {s(ST+2)}, {s(SW)}, 4", f"s_lshl_b32 {s(ST)}, {s(ST+2)}, 10", f"s_add_u32 {s(ST)}, {s(ST)}, {WKVB}", f"v_lshl_add_u32 v11, {L}, 4, {s(ST)}")
    for p in range(4): a(f"ds_read_b128 {v(XF+4*p,4)}, v11 offset:{p*6912}")
    a(f"s_lshr_b32 {s(ST)}, {s(SHG)}, 1", f"s_lshl_b32 {s(ST+1)}, {s(SQB)}, 1", f"s_add_u32 {s(ST)}, {s(ST)}, {s(ST+1)}",
      f"s_lshr_b32 {s(ST+1)}, {s(ST)}, 2", f"s_mul_i32 {s(ST+1)}, {s(ST+1)}, {BLK}", f"s_and_b32 {s(ST)}, {s(ST)}, 3",
      f"s_mul_i32 {s(ST+3)}, {s(ST)}, {STEPB}", f"s_add_u32 {s(ST+3)}, {s(ST+3)}, {s(ST+1)}", f"s_add_u32 {s(ST+3)}, {s(ST+3)}, 512",
      f"s_and_b32 {s(ST+4)}, {s(ST+2)}, 1", f"s_lshl_b32 {s(ST+4)}, {s(ST+4)}, 3", f"s_add_u32 {s(ST+3)}, {s(ST+3)}, {s(ST+4)}")
    a(f"s_bitcmp1_b32 {s(SHG)}, 0", "s_cbranch_scc1 L_kvFV")
    def red():
        a("s_waitcnt lgkmcnt(2)")
        for r in range(4): a(f"v_add_f32 {v(XF+r)}, {v(XF+r)}, {v(XF+4+r)}")
        a("s_waitcnt lgkmcnt(0)")
        for r in range(4): a(f"v_add_f32 {v(XF+8+r)}, {v(XF+8+r)}, {v(XF+12+r)}")
        for r in range(4): a(f"v_add_f32 {v(XF+r)}, {v(XF+r)}, {v(XF+8+r)}")
    a("v_and_b32 v11, 0x13, v10", "v_bfe_u32 v12, v10, 2, 1", "v_lshl_or_b32 v11, v12, 3, v11", "v_bfe_u32 v12, v10, 3, 1", "v_lshl_or_b32 v11, v12, 2, v11", f"s_mov_b32 {s(ST+4)}, {fbits(SCALE)}")
    red()
    for r in range(4): a(f"v_mul_f32 {v(XF+r)}, {s(ST+4)}, {v(XF+r)}")
    for r in range(2): a(f"v_cvt_pk_bf16_f32 {v(XF+4+r)}, {v(XF+2*r)}, {v(XF+2*r+1)}")
    a(f"s_cmp_ge_u32 {s(SW)}, 6", "s_cbranch_scc1 L_kvK2")
    a("v_lshl_add_u32 v11, v6, 5, v11", "v_lshlrev_b32 v11, 4, v11", f"buffer_store_dwordx2 {v(XF+4,2)}, v11, {s(RKV,4)}, {s(ST+3)} offen sc1", "s_branch L_kvF")
    a.label("L_kvK2")
    a("v_lshlrev_b32 v11, 4, v11", f"s_lshl_b32 {s(ST)}, {s(ST)}, 2", f"s_add_u32 {s(ST+1)}, {s(ST+1)}, {s(ST)}", f"s_and_b32 s3, {s(SW)}, 1", "s_lshl_b32 s3, s3, 20", f"s_add_u32 {s(ST+1)}, {s(ST+1)}, s3",
      "s_mov_b32 exec_hi, 0", f"buffer_store_dword {v(XF+4)}, v11, {s(RKV,4)}, {s(ST+1)} offen sc1", "s_mov_b64 exec, -1", "s_branch L_kvF")
    a.label("L_kvFV")
    a("v_cmp_eq_u32 vcc, 18, v10", "v_mov_b32 v12, 0x3f803f80", f"s_movk_i32 {s(ST)}, {VH}", "v_lshlrev_b32 v11, 4, v10", f"v_mad_u32_u24 v11, v6, {s(ST)}, v11",
      f"s_lshr_b32 {s(ST+2)}, {s(ST+2)}, 1", f"s_mul_i32 {s(ST+2)}, {s(ST+2)}, {2*VH}", f"s_add_u32 {s(ST+3)}, {s(ST+3)}, {s(ST+2)}")
    red()
    for r in range(2): a(f"v_cvt_pk_bf16_f32 {v(XF+4+r)}, {v(XF+2*r)}, {v(XF+2*r+1)}")
    for r in range(2): a(f"v_cndmask_b32 {v(XF+4+r)}, {v(XF+4+r)}, v12, vcc")
    a("s_mov_b32 exec_lo, 0x7ffff", "s_mov_b32 exec_hi, 0x7ffff", f"buffer_store_dwordx2 {v(XF+4,2)}, v11, {s(RKV,4)}, {s(ST+3)} offen offset:1024 sc1", "s_mov_b64 exec, -1")
    a.label("L_kvF")

def main_reads(a, n, st):
    F = FR[n & 1] + 12*st; sl = (n & 3)
    xb = (AXB + st, sl*SLOT) if sl < 2 else (AXB + st, sl*SLOT)
    a(f"ds_read_b128 {v(F,4)}, {v(AX+st)} offset:{XKB + n*4096}")
    hi = sl*SLOT + st*4096 + 1024 > 65535
    a(f"ds_read_b128 {v(F+4,4)}, {v(AXB+st)} offset:{(sl - (3 if sl == 3 else 0))*SLOT}" if sl < 3 else f"ds_read_b128 {v(F+4,4)}, {v(AXH+st)}")
    aw, o = (AW, sl*SLOT + st*4096) if sl < 2 else (AWH, (sl-2)*SLOT + st*4096)
    a(f"ds_read_b64_tr_b16 {v(F+8,2)}, {v(aw)} offset:{o}", f"ds_read_b64_tr_b16 {v(F+10,2)}, {v(aw)} offset:{o+1024}")
AXH, AWH, AWRH = 184, 188, 189
def main_mfma(a, n, st):
    F = FR[n & 1] + 12*st; z = (n == 0 and st == 0)
    a(f"v_mfma_f32_32x32x16_bf16 {v(ACA,16)}, {v(F+8,4)}, {v(F,4)}, {'0' if z else v(ACA,16)}", f"v_mfma_f32_32x32x16_bf16 {v(ACB,16)}, {v(F+8,4)}, {v(F+4,4)}, {'0' if z else v(ACB,16)}")
def rem_reads(a, n):
    sl = n & 3
    a(f"s_mov_b32 s3, {XKB + n*4096}", f"s_cmp_ge_u32 {s(SW)}, 6", f"s_cselect_b32 s3, {RB + 18432 + sl*SLOT}, s3")
    for s2 in range(2): a(f"v_add_u32 {v(AX16T+s2)}, s3, {v(AX16+s2)}")
    aw, o = (AWR, sl*SLOT) if sl < 2 else (AWRH, (sl-2)*SLOT)
    for s2 in range(2):
        a(f"ds_read_b128 {v(X16[n&1]+4*s2,4)}, {v(AX16T+s2)}",
          f"ds_read_b64_tr_b16 {v(W16[n&1]+4*s2,2)}, {v(aw)} offset:{o + s2*1024}", f"ds_read_b64_tr_b16 {v(W16[n&1]+4*s2+2,2)}, {v(aw+1)} offset:{o + s2*1024}")
def rem_mfma(a, n):
    for s2 in range(2):
        a(f"v_mfma_f32_16x16x32_bf16 {v(ACC2,4)}, {v(W16[n&1]+4*s2,4)}, {v(X16[n&1]+4*s2,4)}, {'0' if (n == 0 and s2 == 0) else v(ACC2,4)}")

def flag_store(a, base_s):
    a(f"v_mov_b32 v11, {s(STAG)}", "v_mov_b32 v12, 0", "s_mov_b32 exec_lo, 1", "s_mov_b32 exec_hi, 0", f"buffer_store_dword v11, v12, {s(RDBG,4)}, {s(base_s)} offen sc1", "s_mov_b64 exec, -1")

def poll(a, uid, base_s, nloads, mask=None):
    a(f"v_lshlrev_b32 v11, 7, {v(LANE)}", "v_add_u32 v12, 0x2000, v11", f"s_mov_b32 {s(SIT)}, 0")
    if mask: a(f"s_mov_b32 exec_lo, {mask}", "s_mov_b32 exec_hi, 0")
    a.label(f"L_poll{uid}")
    for i in range(nloads): a(f"buffer_load_dword {v(13+i)}, {v(11+i)}, {s(RDBG,4)}, {s(base_s)} offen sc1")
    a(f"s_add_u32 {s(SIT)}, {s(SIT)}, 1", f"s_cmp_gt_u32 {s(SIT)}, {SPIN}", f"s_cbranch_scc1 L_polld{uid}", "s_waitcnt vmcnt(0)")
    a(f"v_cmp_ne_u32 vcc, {s(STAG)}, v13")
    if nloads == 2: a(f"v_cmp_ne_u32 {s(SEX,2)}, {s(STAG)}, v14", "s_nop 0", f"s_or_b64 vcc, vcc, {s(SEX,2)}")
    else: a("s_nop 4")
    a(f"s_cbranch_vccnz L_poll{uid}")
    a.label(f"L_polld{uid}")
    a("s_waitcnt vmcnt(0)", "s_mov_b64 exec, -1")

KVFLAG_AT = 4
def prologue(a):
    a(f"s_cmp_ge_u32 {s(SW)}, 4", "s_cbranch_scc1 L_role1")
    for role in (0, 1):
        if role == 1: a.label("L_role1")
        issue_loads(a, role)
        stamp(a, 1)
        lane_fields(a)
        if role == 0:
            addr_main(a)
            for r in range(4): a(f"v_add_u32 {v(AXH+r)}, {3*SLOT}, {v(AXB+r)}")
            a(f"v_add_u32 {v(AWH)}, {2*SLOT}, {v(AW)}")
        else:
            addr_rem(a); addr_kv(a)
            for r in range(2): a(f"v_add_u32 {v(AWRH+r)}, {2*SLOT}, {v(AWR+r)}")
        a("s_waitcnt vmcnt(9)", f"v_readfirstlane_b32 {s(STAG)}, {v(TAGV)}", "s_barrier")
        a(f"s_add_u32 {s(STAG)}, {s(STAG)}, {TAGC}")
        stamp(a, 2)
        for n in range(9):
            if role == 1 and n == 0: kv_compute(a)
            if role == 1 and n == 1: kv_finalize(a)
            if role == 1 and n == KVFLAG_AT:
                a(f"s_cmp_eq_u32 {s(SW)}, 4", "s_cbranch_scc0 L_nokvf", f"s_lshl_b32 {s(ST)}, {s(SQB)}, 2", f"s_add_u32 {s(ST)}, {s(ST)}, {s(SHG)}", f"s_lshl_b32 s3, {s(SB)}, 7", f"s_add_u32 {s(ST)}, {s(ST)}, s3", f"s_lshl_b32 {s(ST)}, {s(ST)}, 7")
                flag_store(a, ST)
                a.label("L_nokvf")
            if 1 <= n <= 5: chunk_dma(a, n+3, role)
            if role == 0:
                for st in range(4):
                    if st == 3: a("s_waitcnt lgkmcnt(8)")
                    main_reads(a, n, st)
                    if n: main_mfma(a, n-1, st)
            else:
                rem_reads(a, n)
                if n == 0:
                    a("s_nop 0")
                    for qd in range(4): a(f"ds_write_b128 {v(APT)}, {v(ACA+4*qd,4)} offset:{qd*1024}")
                if n: rem_mfma(a, n-1)
            if n < 8:
                cnt = {7: 0, 6: 3}.get(n, 6)
                if role == 1 and 1 <= n < KVFLAG_AT - 1: cnt += 1
                a(f"s_waitcnt vmcnt({cnt}) lgkmcnt(0)", "s_barrier")
        a("s_waitcnt lgkmcnt(0)")
        a(f"s_movk_i32 {s(ST+2)}, {QS}", f"s_lshr_b32 {s(ST)}, {s(SHG)}, 1")
        if role == 0:
            for st in range(4): main_mfma(a, 8, st)
            a(f"s_mul_i32 {s(ST)}, {s(ST)}, {32*QS}", f"s_lshl_b32 {s(ST+1)}, {s(SW)}, 6", f"s_add_u32 {s(ST+1)}, {s(ST+1)}, {QX}", f"v_lshl_add_u32 v11, v6, 3, {s(ST+1)}", f"v_mad_u32_u24 v11, v10, {s(ST+2)}, v11",
              f"s_sub_u32 {s(ST+1)}, {32*QS}, {s(ST)}", f"v_add_u32 v12, {s(ST+1)}, v11", f"v_add_u32 v11, {s(ST)}, v11", "s_nop 2")
            for t, (acc, ad) in enumerate(((ACA, 11), (ACB, 12))):
                for r in range(8): a(f"v_cvt_pk_bf16_f32 {v(FR[1]+8*t+r)}, {v(acc+2*r)}, {v(acc+2*r+1)}")
                for q in range(4): a(f"ds_write_b64 {v(ad)}, {v(FR[1]+8*t+2*q,2)} offset:{16*q}")
        else:
            rem_mfma(a, 8)
            a(f"s_bfe_u32 {s(ST+1)}, {s(SW)}, 0x10001", f"s_xor_b32 {s(ST)}, {s(ST)}, {s(ST+1)}", f"s_lshl_b32 {s(ST)}, {s(ST)}, 1", f"s_and_b32 {s(ST+1)}, {s(SW)}, 1", f"s_add_u32 {s(ST)}, {s(ST)}, {s(ST+1)}",
              f"s_mul_i32 {s(ST)}, {s(ST)}, {16*QS}", f"s_add_u32 {s(ST)}, {s(ST)}, {QX + 256}", f"v_lshrrev_b32 v12, 4, {v(LANE)}", f"v_lshl_add_u32 v12, v12, 3, {s(ST)}",
              f"v_and_b32 v13, 15, {v(LANE)}", f"v_mad_u32_u24 v12, v13, {s(ST+2)}, v12")
            for r in range(2): a(f"v_cvt_pk_bf16_f32 {v(XF+r)}, {v(ACC2+2*r)}, {v(ACC2+2*r+1)}")
            a(f"ds_write_b64 v12, {v(XF,2)}")
        if role == 0: a("s_branch L_pro_done")
    a.label("L_pro_done")

def wait_kv(a):
    a(f"s_cmp_eq_u32 {s(SW)}, 7", "s_cbranch_scc0 L_kvseen", f"s_lshl_b32 {s(ST+5)}, {s(SB)}, 14")
    poll(a, "kv", ST+5, 2)
    a(f"s_or_b32 s3, {s(SQB)}, {s(SHG)}", "s_cmp_eq_u32 s3, 0", "s_cbranch_scc0 L_kvseen", f"s_lshl_b32 {s(ST+5)}, {s(SB)}, 7", f"s_add_u32 {s(ST+5)}, {s(ST+5)}, {FEP}")
    flag_store(a, ST+5)
    a.label("L_kvseen")

IDX, AK1, AK2, AV = 2, 3, 4, 5
S = [16, 32, 48, 64]; O = [80, 96, 112, 128]; Q1 = [144, 148, 152, 156]; Q2 = [160, 164]
K1 = [168, 172]; K2 = 176; V = [[180, 184], [188, 192]]; MX = 196

def kv_dma_setup(a):
    a(f"v_lshlrev_b32 v15, 4, {v(LANE)}", f"s_lshr_b32 {s(ST)}, {s(SW)}, 2", f"s_mul_i32 {s(ST)}, {s(ST)}, {8*BLK}", f"s_and_b32 {s(ST+1)}, {s(SW)}, 3",
      f"s_lshl_b32 {s(ST+1)}, {s(ST+1)}, 10", f"s_add_u32 {s(ST)}, {s(ST)}, {s(ST+1)}")
def kv_dma(a, n, flags=""):
    for i in range(n):
        dma(a, 15, RKV, s(ST), ldsaddr_s=ST, flags=flags)
        a(f"s_add_u32 {s(ST)}, {s(ST)}, 4096")

def kv_dma2(a, flags):
    a(f"s_lshr_b32 {s(ST+1)}, s2, 3")
    for i in range(16):
        a(f"s_and_b32 {s(ST+1)}, {s(ST+1)}, 15", f"s_lshl_b32 s3, {s(ST+1)}, 12", f"s_add_u32 s3, s3, {s(ST)}", "s_mov_b32 m0, s3", f"s_add_u32 {s(ST+1)}, {s(ST+1)}, 1",
          f"buffer_load_dwordx4 v15, {s(RKV,4)}, s3 offen{flags} lds")
def wo_touch(a):
    srd(a, RW, PWO, 576*1152)
    a(f"s_lshr_b32 s3, s2, 3", "s_mul_i32 s3, s3, 162", f"s_mul_i32 {s(ST+1)}, {s(SW)}, 21", f"s_add_u32 s3, s3, {s(ST+1)}", "s_lshl_b32 s3, s3, 7", f"v_lshlrev_b32 v14, 7, {v(LANE)}",
      "s_mov_b32 exec_lo, 0x1fffff", "s_mov_b32 exec_hi, 0", f"buffer_load_dword {v(JUNK)}, v14, {s(RW,4)}, s3 offen", "s_mov_b64 exec, -1")

def attn_addr(a):
    L = v(LANE)
    a(f"s_lshr_b32 {s(ST+2)}, {s(SW)}, 2", f"s_mul_i32 {s(ST+2)}, {s(ST+2)}, {8*BLK}")
    a(f"v_lshl_add_u32 {v(AK1)}, {L}, 4, {s(ST+2)}", f"v_lshl_add_u32 {v(AK2)}, v10, 4, {s(ST+2)}")
    a("v_and_b32 v11, 0x13, v10", "v_bfe_u32 v12, v10, 2, 1", "v_lshl_or_b32 v11, v12, 3, v11", "v_bfe_u32 v12, v10, 3, 1", "v_lshl_or_b32 v11, v12, 2, v11")
    a("v_mov_b32 v12, 0x4000", "v_cmp_lt_u32 vcc, 16, v10", "s_nop 1", "v_cndmask_b32 v11, v11, v12, vcc")
    a("v_cmp_eq_u32 vcc, 20, v10", "s_nop 1", "v_cndmask_b32 v11, v11, 17, vcc")
    a("v_and_b32 v12, 0x1b, v10", "v_cmp_eq_u32 vcc, 17, v12", "s_nop 1", "v_cndmask_b32 v11, v11, 18, vcc")
    a(f"s_movk_i32 {s(ST+3)}, {VH}", f"v_lshl_add_u32 v11, v11, 4, {s(ST+2)}", f"v_mad_u32_u24 {v(AV)}, v6, {s(ST+3)}, v11", f"v_mov_b32 {v(IDX)}, 0xdddddddd")

def q_fetch(a):
    a(f"s_and_b32 {s(ST+3)}, {s(SW)}, 3", f"s_mul_i32 {s(ST+3)}, {s(ST+3)}, 72", f"s_add_u32 {s(ST+3)}, {s(ST+3)}, {QX}", f"s_movk_i32 {s(ST+4)}, {QS}",
      f"v_mov_b32 v12, {s(ST+3)}", f"v_mad_u32_u24 v12, v10, {s(ST+4)}, v12", "v_lshl_add_u32 v13, v6, 4, v12", f"v_add_u32 v14, {32*QS}, v13", "v_mad_u32_u24 v12, v6, 36, v12")
    for t in range(4):
        base = 13 + (t >> 1); o = 9*(t & 1)
        a(f"ds_read2_b32 {v(Q1[t],2)}, {v(base)} offset0:{o} offset1:{o+1}", f"ds_read2_b32 {v(Q1[t]+2,2)}, {v(base)} offset0:{o+2} offset1:{o+3}")
    for p in range(2):
        a(f"ds_read_b32 {v(Q2[p])}, v12 offset:{32 + p*32*QS}", f"ds_read_b32 {v(Q2[p]+3)}, v12 offset:{32 + p*32*QS}")
        a(f"v_mov_b32 {v(Q2[p]+1)}, 0", f"v_mov_b32 {v(Q2[p]+2)}, 0")

def E(t, x, y, sub):
    out = []
    for i in range(x, y):
        if sub: out.append(f"v_sub_f32 {v(S[t]+i)}, {v(S[t]+i)}, {v(MX+t)}")
        out.append(f"v_exp_f32 {v(S[t]+i)}, {v(S[t]+i)}")
    return out
pvhi = lambda t, vb: [f"v_smfmac_f32_32x32x32_bf16 {v(O[t],16)}, {v(V[vb][1],4)}, {v(S[t]+8,8)}, {v(IDX)}"]
pvlo = lambda t, vb: [f"v_smfmac_f32_32x32x32_bf16 {v(O[t],16)}, {v(V[vb][0],4)}, {v(S[t],8)}, {v(IDX)}"]
qk1 = lambda t, kb: [f"v_mfma_f32_32x32x16_bf16 {v(S[t],16)}, {v(K1[kb],4)}, {v(Q1[t],4)}, 0"]
q2b = lambda t, sg: [f"v_mfma_f32_32x32x4bf16_1k {v(S[t],32)}, {v(K2 + (sg & 2),2)}, {v(Q2[t>>1] + 2*(sg & 1),2)}, {v(S[t],32)}"]

def attn_step(sg, sub, prio=None):
    b = sg & 1; nb = b ^ 1
    off = 512 + (sg+1)*STEPB if sg < 3 else BLK + 512
    k1 = [f"ds_read_b128 {v(K1[nb],4)}, {v(AK1)} offset:{off}"]
    v0 = [f"ds_read_b128 {v(V[nb][0],4)}, {v(AV)} offset:{off+1024}"]
    v1 = [f"ds_read_b128 {v(V[nb][1],4)}, {v(AV)} offset:{off+1024+2*VH}"]
    k2 = []
    if sg == 0: k2 = [f"ds_read_b64 {v(K2+2,2)}, {v(AK2)} offset:8"]
    if sg == 2: k2 = [f"ds_read_b64 {v(K2,2)}, {v(AK2)} offset:{BLK}"]
    w = ["s_waitcnt lgkmcnt(0)"]
    P = (lambda k: [f"s_setprio {prio[k]}"] if prio and k in prio else [])
    L = P((sg, 0))
    L += E(0,0,2,sub) + pvhi(3, nb) + E(0,2,4,sub) + k1 + E(0,4,5,sub) + qk1(3, b) + E(0,5,8,sub) + v0 + E(0,8,10,sub) + pvlo(0, b) + E(0,10,12,sub) + v1 + E(0,12,14,sub) + q2b(2, sg) + E(0,14,16,sub) + k2
    L += P((sg, 1))
    L += E(1,0,6,sub) + pvhi(0, b) + E(1,6,9,sub) + w + qk1(0, nb) + E(1,9,12,sub) + pvlo(1, b) + E(1,12,16,sub)
    L += P((sg, 2))
    L += E(2,0,2,sub) + pvhi(1, b) + E(2,2,5,sub) + qk1(1, nb) + E(2,5,10,sub) + pvlo(2, b) + E(2,10,14,sub) + q2b(0, (sg+1) & 3) + E(2,14,16,sub)
    L += P((sg, 3))
    L += E(3,0,6,sub) + pvhi(2, b) + E(3,6,9,sub) + qk1(2, nb) + E(3,9,12,sub) + pvlo(3, b) + E(3,12,16,sub)
    return L

def attn_first_frags(a):
    a(f"ds_read_b128 {v(K1[0],4)}, {v(AK1)} offset:512", f"ds_read_b64 {v(K2,2)}, {v(AK2)}",
      f"ds_read_b128 {v(V[0][0],4)}, {v(AV)} offset:{512+1024}", f"ds_read_b128 {v(V[0][1],4)}, {v(AV)} offset:{512+1024+2*VH}")

def attn_loop(a, uid, sub, prio=None):
    a("s_waitcnt lgkmcnt(0)")
    a(qk1(0, 0), qk1(1, 0), qk1(2, 0), "s_nop 7", "s_nop 0", q2b(0, 0), f"s_mov_b32 {s(SIT)}, 0", "s_nop 15", "s_nop 2")
    a(".p2align 6")
    a.label(f"L_att{uid}")
    for sg in range(4): a(attn_step(sg, sub, prio))
    a(f"v_add_u32 {v(AK1)}, {BLK}, {v(AK1)}", f"v_add_u32 {v(AK2)}, {BLK}, {v(AK2)}", f"v_add_u32 {v(AV)}, {BLK}, {v(AV)}")
    a(f"s_add_u32 {s(SIT)}, {s(SIT)}, 1", f"s_cmp_eq_u32 {s(SIT)}, 1", f"s_cbranch_scc1 L_attb{uid}", f"s_cmp_lt_u32 {s(SIT)}, 8", f"s_cbranch_scc1 L_att{uid}", f"s_branch L_atte{uid}")
    a.label(f"L_attb{uid}")
    a("s_waitcnt vmcnt(0)", "s_barrier", f"s_branch L_att{uid}")
    a.label(f"L_atte{uid}")
    a(pvhi(3, 1))

def zero_acc(a):
    for r in range(64): a(f"v_mov_b32 {v(O[0]+r)}, 0")
    for r in range(8): a(f"v_mov_b32 {v(S[3]+8+r)}, 0")
    for r in range(4): a(f"v_mov_b32 {v(V[1][1]+r)}, 0")

def max_pass(a):
    a("s_waitcnt vmcnt(0)", "s_barrier")
    for t in range(4): a(f"v_mov_b32 {v(MX+t)}, 0xff800000")
    a(f"s_mov_b32 {s(SIT)}, 0")
    a.label("L_mx")
    a(f"ds_read_b128 {v(K2,4)}, {v(AK2)}")
    for sg in range(4):
        a(f"ds_read_b128 {v(K1[0],4)}, {v(AK1)} offset:{512 + sg*STEPB}", "s_waitcnt lgkmcnt(0)")
        for t in range(4): a(qk1(t, 0))
        a("s_nop 9", q2b(0, sg), q2b(2, sg), "s_nop 15", "s_nop 3")
        for t in range(4):
            for r in range(8): a(f"v_max3_f32 {v(MX+t)}, {v(S[t]+2*r)}, {v(S[t]+2*r+1)}, {v(MX+t)}")
    a(f"v_add_u32 {v(AK1)}, {BLK}, {v(AK1)}", f"v_add_u32 {v(AK2)}, {BLK}, {v(AK2)}")
    a(f"s_add_u32 {s(SIT)}, {s(SIT)}, 1", f"s_cmp_lt_u32 {s(SIT)}, 8", "s_cbranch_scc1 L_mx")
    a(f"v_subrev_u32 {v(AK1)}, {8*BLK}, {v(AK1)}", f"v_subrev_u32 {v(AK2)}, {8*BLK}, {v(AK2)}")
    a(f"v_lshlrev_b32 v11, 4, v0", f"v_add_u32 v11, {KVB + 2048}, v11", f"ds_write_b128 v11, {v(MX,4)}", "s_waitcnt lgkmcnt(0)", "s_barrier")
    a(f"v_xor_b32 v12, 32, v0", "v_xor_b32 v13, 0x100, v0", "v_xor_b32 v14, 0x120, v0")
    for i in range(3): a(f"v_lshlrev_b32 {v(12+i)}, 4, {v(12+i)}", f"v_add_u32 {v(12+i)}, {KVB + 2048}, {v(12+i)}", f"ds_read_b128 {v(S[0]+4*i,4)}, {v(12+i)}")
    a("s_waitcnt lgkmcnt(0)")
    for t in range(4): a(f"v_max3_f32 {v(MX+t)}, {v(MX+t)}, {v(S[0]+t)}, {v(S[0]+4+t)}", f"v_max_f32 {v(MX+t)}, {v(MX+t)}, {v(S[0]+8+t)}")

FLAGA = KVB + 10240
def attn_epilogue(a, uid, check_range, oflags, after_barrier=None):
    L = v(LANE)
    a("s_nop 7")
    if check_range:
        a(f"s_mov_b32 {s(ST)}, 0x21800000", f"s_mov_b32 {s(ST+1)}, 0x5d800000", f"s_mov_b32 {s(ST+2)}, 0x7e800000", "s_nop 0")
        a(f"v_min3_f32 v11, {v(O[0]+9)}, {v(O[1]+9)}, {v(O[2]+9)}", f"v_max3_f32 v12, {v(O[0]+9)}, {v(O[1]+9)}, {v(O[2]+9)}",
          f"v_min_f32 v11, v11, {v(O[3]+9)}", f"v_max_f32 v12, v12, {v(O[3]+9)}")
        a(f"v_add_f32 v13, abs({v(O[0])}), abs({v(O[1])})", f"v_add_f32 v14, abs({v(O[2])}), abs({v(O[3])})")
        for r in range(1, 10):
            for t in range(0, 4, 2):
                a(f"v_add_f32 v13, abs({v(O[t]+r)}), v13", f"v_add_f32 v14, abs({v(O[t+1]+r)}), v14")
        a("v_add_f32 v13, v13, v14", f"v_cmp_nle_f32 vcc, {s(ST)}, v11", f"v_cmp_nge_f32 {s(ST+4,2)}, {s(ST+1)}, v12", f"v_cmp_nge_f32 {s(ST+6,2)}, {s(ST+2)}, v13", "s_nop 0",
          f"s_or_b64 vcc, vcc, {s(ST+4,2)}", f"s_or_b64 vcc, vcc, {s(ST+6,2)}", "s_cmp_lg_u64 vcc, 0", f"s_cselect_b32 {s(ST)}, 1, 0", f"v_mov_b32 v11, {s(ST)}",
          f"s_lshl_b32 {s(ST+1)}, {s(SW)}, 2", f"s_add_u32 {s(ST+1)}, {s(ST+1)}, {FLAGA}", f"v_mov_b32 v12, {s(ST+1)}", "ds_write_b32 v12, v11")
    else: a("s_nop 3")
    a(f"s_mul_i32 {s(ST)}, {s(SW)}, 6144", f"v_lshl_add_u32 v13, {L}, 4, {s(ST)}", f"s_xor_b32 {s(ST+1)}, {s(SW)}, 4", f"s_mul_i32 {s(ST+1)}, {s(ST+1)}, 6144", f"v_lshl_add_u32 v14, {L}, 4, {s(ST+1)}")
    a("s_waitcnt lgkmcnt(0)", "s_barrier")
    if check_range:
        a(f"v_mov_b32 v12, {FLAGA}", f"ds_read_b128 {v(S[2],4)}, v12", f"ds_read_b128 {v(S[2]+4,4)}, v12 offset:16", "s_waitcnt lgkmcnt(0)",
          f"v_or3_b32 v11, {v(S[2])}, {v(S[2]+1)}, {v(S[2]+2)}", f"v_or3_b32 v11, v11, {v(S[2]+3)}, {v(S[2]+4)}", f"v_or3_b32 v11, v11, {v(S[2]+5)}, {v(S[2]+6)}", f"v_or_b32 v11, v11, {v(S[2]+7)}",
          "s_nop 0", f"v_readfirstlane_b32 {s(ST)}, v11", "s_nop 1", f"s_cmp_lg_u32 {s(ST)}, 0", "s_cbranch_scc1 L_fallback")
    if after_barrier: after_barrier(a)
    a(f"s_and_b32 {s(ST)}, {s(SQB)}, 1", f"s_lshl_b32 {s(ST)}, {s(ST)}, 1", f"s_lshr_b32 {s(ST+1)}, {s(SW)}, 2", f"s_add_u32 {s(ST)}, {s(ST)}, {s(ST+1)}",
      f"s_lshl_b32 {s(ST+1)}, {s(SGRP)}, 2", f"s_add_u32 {s(ST)}, {s(ST)}, {s(ST+1)}", f"s_mul_i32 {s(ST)}, {s(ST)}, 36", f"s_mul_i32 {s(ST+1)}, {s(SHG)}, 9", f"s_add_u32 {s(ST)}, {s(ST)}, {s(ST+1)}",
      f"s_lshl_b32 {s(ST)}, {s(ST)}, 10", f"s_and_b32 {s(ST+1)}, {s(SW)}, 3", f"s_lshl_b32 {s(ST+2)}, {s(ST+1)}, 2", f"s_add_u32 {s(ST+2)}, {s(ST+2)}, {s(ST)}", f"s_add_u32 {s(ST+2)}, {s(ST+2)}, 8192",
      f"s_lshl_b32 {s(ST+1)}, {s(ST+1)}, 11", f"s_add_u32 {s(ST)}, {s(ST)}, {s(ST+1)}", f"v_lshlrev_b32 v15, 4, {L}")
    a(f"s_cmp_ge_u32 {s(SW)}, 4", f"s_cbranch_scc1 L_ep1{uid}")
    for kh in (0, 1):
        if kh: a.label(f"L_ep1{uid}")
        for hh in range(2):
            for q in range(3): a(f"ds_write_b128 v13, {v(O[2*(1-kh)+hh]+4*q,4)} offset:{hh*3072 + q*1024}")
        a("s_waitcnt lgkmcnt(0)", "s_barrier")
        for hh in range(2):
            for q in range(3): a(f"ds_read_b128 {v(S[hh]+4*q,4)}, v14 offset:{hh*3072 + q*1024}")
        for hh in range(2):
            T = O[2*kh+hh]
            a(f"s_waitcnt lgkmcnt({3-3*hh})")
            for r in (9, 0, 1, 2, 3, 4, 5, 6, 7, 8):
                a(f"v_add_f32 {v(T+r)}, {v(T+r)}, {v(S[hh]+r)}")
                if r == 0: a(f"v_rcp_f32 {v(T+9)}, {v(T+9)}")
            for r in range(9): a(f"v_mul_f32 {v(T+r)}, {v(T+r)}, {v(T+9)}")
            for r in range(4): a(f"v_cvt_pk_bf16_f32 {v(S[2]+4*hh+r)}, {v(T+2*r)}, {v(T+2*r+1)}")
            a(f"buffer_store_dwordx4 {v(S[2]+4*hh,4)}, v15, {s(RO,4)}, {s(ST)} offen offset:{1024*hh}{oflags}")
        a(f"v_cvt_pk_bf16_f32 {v(S[2]+8)}, {v(O[2*kh]+8)}, {v(O[2*kh+1]+8)}", f"buffer_store_dword {v(S[2]+8)}, v15, {s(RO,4)}, {s(ST+2)} offen{oflags}")
        if kh == 0: a(f"s_branch L_ep2{uid}")
    a.label(f"L_ep2{uid}")

def attention(a, kvflags, oflags, wait_kv=None, after_barrier=None, prio=None):
    stamp(a, 3)
    kv_dma_setup(a); attn_addr(a)
    if wait_kv: wait_kv(a)
    a("s_waitcnt lgkmcnt(0)", "s_barrier")
    kv_dma(a, 3, kvflags)
    q_fetch(a)
    zero_acc(a)
    a("s_waitcnt vmcnt(0) lgkmcnt(0)", "s_barrier")
    stamp(a, 4)
    attn_first_frags(a)
    kv_dma2(a, kvflags)
    wo_touch(a)
    if prio:
        a(f"s_cmp_ge_u32 {s(SW)}, 4", "s_cbranch_scc1 L_attB")
        attn_loop(a, "A", False, prio[0]); a("s_setprio 0", "s_branch L_attD")
        a.label("L_attB"); a("s_setprio 1")
        attn_loop(a, "B", False, prio[1]); a("s_setprio 0")
        a.label("L_attD")
    else:
        attn_loop(a, "A", False)
    stamp(a, 5)
    attn_epilogue(a, "f", True, oflags, after_barrier)
    stamp(a, 6)

def fallback(a, kvflags, oflags, after_barrier, back):
    a.label("L_fallback")
    a(f"v_subrev_u32 {v(AK1)}, {8*BLK}, {v(AK1)}", f"v_subrev_u32 {v(AK2)}, {8*BLK}, {v(AK2)}", f"v_subrev_u32 {v(AV)}, {8*BLK}, {v(AV)}")
    max_pass(a)
    zero_acc(a)
    attn_first_frags(a)
    attn_loop(a, "S", True)
    attn_epilogue(a, "s", False, oflags, after_barrier)
    a(f"s_branch {back}")

BF, AF, D0, DX = 16, 88, 136, 168
A0, A1, AXT = 2, 3, 4
def wo_dma(a):
    L = v(LANE)
    a(f"v_lshrrev_b32 v2, 3, {L}", f"v_and_b32 v3, 7, {L}", f"v_bfe_u32 v4, {L}, 4, 1", "v_lshlrev_b32 v4, 2, v4", "v_xor_b32 v3, v3, v4", "v_lshlrev_b32 v3, 4, v3",
      f"s_movk_i32 {s(ST+4)}, 1152", f"s_movk_i32 {s(ST+5)}, {18*1152}", f"v_mad_u32_u24 v4, v2, {s(ST+5)}, v3", f"v_mad_u32_u24 v3, v2, {s(ST+4)}, v3")
    a(f"s_lshr_b32 {s(ST+2)}, {s(SW)}, 1", f"s_and_b32 {s(ST+3)}, {s(SW)}, 1", f"s_mul_i32 {s(ST+6)}, {s(ST+2)}, {144*1152}", f"s_lshl_b32 {s(ST)}, {s(SJJ)}, 7", f"s_add_u32 {s(ST+7)}, {s(ST+6)}, {s(ST)}",
      f"s_mul_i32 {s(ST)}, {s(ST+3)}, {8*1152}", f"s_add_u32 {s(ST)}, {s(ST)}, {s(ST+7)}",
      f"s_mul_i32 {s(ST+1)}, {s(ST+2)}, {9*2048}", f"s_lshl_b32 {s(ST+8)}, {s(ST+3)}, 10", f"s_add_u32 {s(ST+1)}, {s(ST+1)}, {s(ST+8)}", f"s_add_u32 {s(ST+1)}, {s(ST+1)}, {WOM}")
    for ff in range(8):
        dma(a, 3, RW, s(ST), ldsaddr_s=ST+1)
        a(f"s_add_u32 {s(ST)}, {s(ST)}, {18*1152}", f"s_add_u32 {s(ST+1)}, {s(ST+1)}, 2048")
    a(f"s_mul_i32 {s(ST)}, {s(ST+3)}, 1152", f"s_add_u32 {s(ST)}, {s(ST)}, {s(ST+7)}", f"s_add_u32 {s(ST)}, {s(ST)}, {16*1152}")
    dma(a, 4, RW, s(ST), ldsaddr_s=ST+1)
    a(f"v_lshrrev_b32 v2, 2, {L}", f"v_and_b32 v3, 3, {L}", "v_lshlrev_b32 v3, 4, v3", "v_and_b32 v4, 7, v2", f"v_mad_u32_u24 v4, v4, {s(ST+5)}, v3", f"v_lshrrev_b32 v5, 5, {L}",
      f"v_mad_u32_u24 v4, v5, {s(ST+4)}, v4", f"v_mad_u32_u24 v3, v2, {s(ST+4)}, v3")
    a(f"s_lshr_b32 {s(ST)}, {s(SJJ)}, 2", f"s_lshl_b32 {s(ST)}, {s(ST)}, 6", f"s_add_u32 {s(ST+6)}, {s(ST+6)}, {s(ST)}", f"s_add_u32 {s(ST+6)}, {s(ST+6)}, 1024",
      f"s_mul_i32 {s(ST)}, {s(ST+3)}, {18*1152}", f"s_add_u32 {s(ST)}, {s(ST)}, {s(ST+6)}",
      f"s_mul_i32 {s(ST+7)}, {s(ST+2)}, {9*1024}", f"s_add_u32 {s(ST+7)}, {s(ST+7)}, {WOX}", f"s_add_u32 {s(ST+1)}, {s(ST+7)}, {s(ST+8)}")
    for n in range(4):
        dma(a, 3, RW, s(ST), ldsaddr_s=ST+1)
        if n < 3: a(f"s_add_u32 {s(ST)}, {s(ST)}, {36*1152}", f"s_add_u32 {s(ST+1)}, {s(ST+1)}, 2048")
    a(f"s_cmp_eq_u32 {s(ST+3)}, 0", f"s_cbranch_scc0 L_wox{a.uid}", f"s_add_u32 {s(ST)}, {s(ST+6)}, {16*1152}", f"s_add_u32 {s(ST+1)}, {s(ST+7)}, 8192")
    dma(a, 4, RW, s(ST), ldsaddr_s=ST+1)
    a.label(f"L_wox{a.uid}"); a.uid += 1

def oproj(a, oflags, wait_o=None):
    L = v(LANE)
    a(f"s_lshr_b32 {s(ST+2)}, {s(SW)}, 1", f"s_and_b32 {s(ST+3)}, {s(SW)}, 1")
    a(f"s_lshl_b32 {s(ST)}, {s(SGRP)}, 2", f"s_add_u32 {s(ST)}, {s(ST)}, {s(ST+2)}", f"s_mul_i32 {s(ST)}, {s(ST)}, 36", f"s_mul_i32 {s(ST+1)}, {s(ST+3)}, 18", f"s_add_u32 {s(ST)}, {s(ST)}, {s(ST+1)}",
      f"s_lshl_b32 {s(ST)}, {s(ST)}, 10", f"v_lshlrev_b32 v15, 4, {L}")
    a(f"s_mov_b32 {s(ST+9)}, {s(ST)}")
    lane_fields(a)
    a("v_and_b32 v11, 1, v9", "v_lshlrev_b32 v11, 5, v11", "v_lshl_add_u32 v11, v7, 4, v11", "v_lshrrev_b32 v12, 1, v9", "v_lshl_add_u32 v11, v12, 3, v11", "v_lshl_add_u32 v12, v6, 3, v8")
    a(f"s_mul_i32 {s(ST)}, {s(ST+3)}, {18*1024}", f"s_add_u32 {s(ST+1)}, {s(ST)}, {WOX}", f"v_lshl_add_u32 v13, v12, 6, v11", f"v_add_u32 {v(AXT)}, {s(ST+1)}, v13",
      f"s_lshl_b32 {s(ST)}, {s(ST)}, 1", f"s_add_u32 {s(ST)}, {s(ST)}, {WOM}", "v_lshl_add_u32 v13, v12, 7, v11", f"v_add_u32 v13, {s(ST)}, v13",
      "v_lshrrev_b32 v12, 1, v8", f"v_lshl_add_u32 {v(A0)}, v12, 6, v13", "v_xor_b32 v12, 1, v12", f"v_lshl_add_u32 {v(A1)}, v12, 6, v13")
    a(f"s_lshl_b32 {s(ST)}, {s(SW)}, 12", f"v_add_u32 v13, {s(ST)}, v15", f"s_xor_b32 {s(ST)}, {s(ST)}, 4096", f"v_add_u32 v14, {s(ST)}, v15")
    a(f"s_and_b32 {s(ST)}, {s(SGRP)}, 15", f"s_lshl_b32 {s(ST)}, {s(ST)}, 2", f"s_add_u32 {s(ST)}, {s(ST)}, {s(ST+2)}", f"s_mul_i32 {s(ST)}, {s(ST)}, {32*2304}", f"s_mul_i32 {s(ST+1)}, {s(SB)}, 1152",
      f"s_add_u32 {s(ST+4)}, {s(ST)}, {s(ST+1)}", f"s_movk_i32 {s(ST+1)}, 2304", "v_lshlrev_b32 v12, 5, v6", f"v_mad_u32_u24 v12, v10, {s(ST+1)}, v12",
      f"s_lshr_b32 {s(ST)}, {s(SJJ)}, 2", f"s_lshl_b32 {s(ST)}, {s(ST)}, 6", f"s_add_u32 {s(ST+5)}, {s(ST+4)}, {s(ST)}", f"s_add_u32 {s(ST+5)}, {s(ST+5)}, 1024",
      f"s_lshl_b32 {s(ST)}, {s(SJJ)}, 7", f"s_add_u32 {s(ST+4)}, {s(ST+4)}, {s(ST)}", f"s_lshl_b32 {s(ST)}, {s(ST+3)}, 6", f"s_add_u32 {s(ST+4)}, {s(ST+4)}, {s(ST)}")
    a(f"s_mul_i32 {s(ST+6)}, {s(SJJ)}, 144", f"s_mul_i32 s3, {s(SW)}, 18", f"s_add_u32 {s(ST+6)}, {s(ST+6)}, s3", f"s_lshl_b32 {s(ST+6)}, {s(ST+6)}, 7", f"s_mul_i32 s3, {s(SGRP)}, {144*1024}", f"s_add_u32 {s(ST+6)}, {s(ST+6)}, s3",
      f"v_lshlrev_b32 v5, 7, {L}")
    wait_o(a)
    stamp(a, 7)
    a("s_mov_b32 exec_lo, 0x3ffff", "s_mov_b32 exec_hi, 0", f"buffer_load_dword {v(JUNK)}, v5, {s(RO,4)}, {s(ST+6)} offen{oflags}", "s_mov_b64 exec, -1")
    for fi in range(18):
        a(f"buffer_load_dwordx4 {v(BF+4*fi,4)}, v15, {s(RO,4)}, {s(ST+9)} offen offset:{1024*(fi&3)}{oflags}")
        if fi & 3 == 3: a(f"s_add_u32 {s(ST+9)}, {s(ST+9)}, 4096")
    a(f"s_and_b32 {s(ST)}, {s(SJJ)}, 3", f"s_cmp_eq_u32 {s(ST)}, {s(ST+2)}", "s_cbranch_scc1 L_opx")
    for ext in (0, 1):
        if ext: a.label("L_opx")
        nt = 3 if ext else 2; depth = 2 if ext else 3
        def reads(fi):
            bb = AF + 12*(fi % depth if ext else fi % depth)
            for c in range(2):
                a(f"ds_read_b64_tr_b16 {v(bb+4*c,2)}, {v(A0+c)} offset:{fi*2048}", f"ds_read_b64_tr_b16 {v(bb+4*c+2,2)}, {v(A0+c)} offset:{fi*2048+512}")
            if ext: a(f"ds_read_b64_tr_b16 {v(bb+8,2)}, {v(AXT)} offset:{fi*1024}", f"ds_read_b64_tr_b16 {v(bb+10,2)}, {v(AXT)} offset:{fi*1024+256}")
        for fi in range(depth): reads(fi)
        for fi in range(18):
            bb = AF + 12*(fi % depth)
            later = min(17, fi+depth-1) - fi
            a(f"s_waitcnt vmcnt({17-fi}) lgkmcnt({2*nt*later})")
            for c in range(nt):
                D = D0 + 16*c
                a(f"v_mfma_f32_32x32x16_bf16 {v(D,16)}, {v(bb+4*c,4)}, {v(BF+4*fi,4)}, {'0' if fi == 0 else v(D,16)}")
            if fi + depth < 18: reads(fi+depth)
        stamp(a, 8)
        a("s_nop 7", "s_nop 3")
        a(f"s_cmp_eq_u32 {s(ST+3)}, 0", f"s_cbranch_scc0 L_op1{ext}")
        for kh in (0, 1):
            if kh: a.label(f"L_op1{ext}")
            for q in range(4): a(f"ds_write_b128 v13, {v(D0+16*(1-kh)+4*q,4)} offset:{q*1024}")
            if ext and kh == 1:
                for q in range(4): a(f"ds_write_b128 v15, {v(DX+4*q,4)} offset:{32768 + q*1024}")
            a("s_waitcnt lgkmcnt(0)", "s_barrier")
            jobs = [(D0+16*kh, "v14", 0, ST+4)] + ([(DX, "v15", 32768, ST+5)] if (ext and kh == 0) else [])
            for n, (D, ad, of, so) in enumerate(jobs):
                for q in range(4): a(f"ds_read_b128 {v(BF+16*n+4*q,4)}, {ad} offset:{of + q*1024}")
            for n, (D, ad, of, so) in enumerate(jobs):
                for q in range(4):
                    a(f"s_waitcnt lgkmcnt({4*(len(jobs)-1-n) + 3 - q})")
                    for r in range(4): a(f"v_add_f32 {v(D+4*q+r)}, {v(D+4*q+r)}, {v(BF+16*n+4*q+r)}")
                    for r in range(2): a(f"v_cvt_pk_bf16_f32 {v(AF+8*n+2*q+r)}, {v(D+4*q+2*r)}, {v(D+4*q+2*r+1)}")
                    if q & 1: a(f"buffer_store_dwordx4 {v(AF+8*n+2*q-2,4)}, v12, {s(ROUT,4)}, {s(so)} offen offset:{16*(q>>1)}")
            if DIAG: a("s_waitcnt vmcnt(0)")
            stamp_out(a, a.kidx); a("s_endpgm")

def kernel(name, body, nvgpr=256):
    a = Asm(); a.uid = 0
    a.label(name)
    setup(a, f"L_end_{name}")
    body(a)
    a.label(f"L_end_{name}")
    a("s_endpgm")
    lines = []
    import re
    for l in a.lines:
        lines.append(re.sub(r"\bL_(\w+)", lambda m: f"L_{name[:3]}_{m.group(1)}", l))
    a.lines = lines
    n = check(a.lines)
    if n: print(f"{name}: {n} hazards"); sys.exit(1)
    head = f".globl {name}\n.p2align 8\n.type {name},@function\n"
    kd = f""".amdhsa_kernel {name}
  .amdhsa_next_free_vgpr {nvgpr}
  .amdhsa_next_free_sgpr 96
  .amdhsa_accum_offset {(nvgpr+3)//4*4}
  .amdhsa_group_segment_fixed_size 0
  .amdhsa_kernarg_size 104
  .amdhsa_user_sgpr_count 2
  .amdhsa_user_sgpr_kernarg_segment_ptr 1
  .amdhsa_system_sgpr_workgroup_id_x 1
.end_amdhsa_kernel
"""
    return head + a.text(), kd

def publish_o(a):
    wo_dma(a)
    a("s_waitcnt vmcnt(13)", "s_barrier")
    a(f"s_cmp_eq_u32 {s(SW)}, 0", "s_cbranch_scc0 L_noof", f"s_lshl_b32 s3, {s(SGRP)}, 3", f"s_add_u32 s3, s3, {s(SJJ)}", f"s_lshl_b32 {s(ST)}, s3, 7", f"s_add_u32 {s(ST)}, {s(ST)}, {FO}")
    flag_store(a, ST)
    a.label("L_noof")
def wait_o(a):
    a(f"s_cmp_eq_u32 {s(SW)}, 0", "s_cbranch_scc0 L_oseen", f"s_lshl_b32 {s(ST+7)}, {s(SGRP)}, 10", f"s_add_u32 {s(ST+7)}, {s(ST+7)}, {FO}",
      "v_mov_b32 v201, v11", "v_mov_b32 v202, v12", "v_mov_b32 v203, v13")
    poll(a, "o", ST+7, 1, mask=0xff)
    a("v_mov_b32 v11, v201", "v_mov_b32 v12, v202", "v_mov_b32 v13, v203")
    a.label("L_oseen")
    a("s_waitcnt vmcnt(0)", "s_barrier")

def build(mode, prio=None):
    def k1(a):
        a.kidx = 0
        prologue(a); attention(a, " sc1", " sc1", wait_kv=wait_kv, prio=prio); a.label("L_fin")
        publish_o(a); oproj(a, " sc1", wait_o); fallback(a, " sc1", " sc1", None, "L_fin")
    ks = [(NAME + "_kernel", k1)]
    hdr = open(os.path.join(os.path.dirname(os.path.abspath(__file__)), "header.txt")).read()
    out = hdr
    out += f"; @launch grid=(256,1,1) block=(512,1,1) lds={LDS_TOTAL}\n"
    out += '.amdgcn_target "amdgcn-amd-amdhsa--gfx950"\n.text\n'
    kds = ""
    for n, f in ks:
        t, kd = kernel(n, f)
        out += t; kds += ".p2align 6\n" + kd
    out += '.section .rodata,"a"\n' + kds
    return out

if __name__ == "__main__":
    if "diag" in sys.argv: DIAG = 1; sys.argv.remove("diag")
    if "diag2" in sys.argv: DIAG = 2; sys.argv.remove("diag2")
    mode = sys.argv[1] if len(sys.argv) > 1 else "one"
    dst = sys.argv[2] if len(sys.argv) > 2 else f"cdna_kernels/{NAME}.s"
    open(dst, "w").write(build(mode))
    print("wrote", dst)
```

```python
import sys, os, struct, math
from asmlib import Asm, v, s, check

NAME = "concat_heads__grouped_kv_mqa__grouped_kv_mqa__prompt"
VH = 304
STEPB = 1024 + 4*VH
BLK = 512 + 4*STEPB
KVB = 16*BLK
KVSTRIDE = 0x40000
OOFF = 0x100000
OBYTES = 2*2048*576*2
LDS_TOTAL = 163840
XKB = 0; WKVB = 36864; RB = WKVB + 27648; SLOT = 22528; QX = RB + 2*SLOT; QS = 296
assert RB + 4*SLOT <= LDS_TOTAL
FOFF = 0x80000
FKV, FO, FEP = 0, 0x8000, 0x10000
TAGC = 0x9E3779B1
SPIN = 1 << 20
WOM = 49152; WOX = WOM + 73728
assert WOX + 36864 <= LDS_TOTAL
SCALE = 18 ** -0.5 * math.log2(math.e)
def fbits(x): return struct.unpack("<I", struct.pack("<f", x))[0]
RX, RW, RKW, RKV, RO, ROUT, RDBG = 4, 8, 12, 16, 20, 24, 28
SB, SQB, SHG, SW = 32, 33, 34, 35
ST = 36
SEX = 48
SIT = 50; SFLAG = 51; SJJ = 52; SGRP = 53
PWO = 54
STAG = 74; SJ = 75; SWB, SXB, SLB, EXM = 56, 57, 58, 46
JUNK = 200
LANE = 1

DIAG = False
STAMP0 = 76
TIMER = "s_memtime" if os.environ.get("CLK") else "s_memrealtime"
STAMPS = {"start": 0, "issued": 1, "b0": 2, "qdone": 3, "kv1": 4, "loop": 5, "epi": 6, "oseen": 7, "omfma": 8}
if os.environ.get("STAMPS"):
    STAMPS = {"start": 0}
    for i, n in enumerate(os.environ["STAMPS"].split(",")): STAMPS[n] = i + 1
def stamp(a, n):
    if DIAG and n in STAMPS: a(f"{TIMER} {s(STAMP0 + 2*STAMPS[n], 2)}")
def stamp_out(a, kidx):
    if not DIAG: return
    a(f"{TIMER} s[94:95]", "s_waitcnt lgkmcnt(0)", "s_mov_b64 exec, -1")
    if DIAG == 2:
        srd(a, RDBG, 68, 256)
        a(f"v_lshlrev_b32 v250, 2, {v(LANE)}", f"s_not_b32 s3, {s(STAMP0)}", "v_mov_b32 v251, s3")
        for i in range(10): a(f"v_writelane_b32 v251, {s(STAMP0 + 2*i)}, {i+1}")
        for n, i in enumerate((2, 3, 4, 5, 7)): a(f"s_not_b32 s3, {s(STAMP0 + 2*i)}", f"v_writelane_b32 v251, s3, {11+n}")
        a(f"s_and_b32 s3, {s(SW)}, 3", "s_cmp_eq_u32 s3, 0", f"s_cbranch_scc0 L_dg{a.uid}", "s_mov_b32 exec_lo, 0xffff", "s_mov_b32 exec_hi, 0", f"buffer_atomic_umax v251, v250, {s(RDBG,4)}, 0 offen sc1")
        a.label(f"L_dg{a.uid}"); a.uid += 1
        return
    a(f"s_add_u32 s72, s70, {0x800000 + kidx*0x40000}", "s_addc_u32 s73, s71, 0")
    srd(a, RDBG, 72, 0x40000)
    a("s_lshl_b32 s3, s2, 3", f"s_add_u32 s3, s3, {s(SW)}", "s_lshl_b32 s3, s3, 6", "v_mov_b32 v250, 0")
    for i in range(10):
        a(f"v_mov_b32 v251, {s(STAMP0 + 2*i)}", f"buffer_store_dword v251, v250, {s(RDBG,4)}, s3 offen offset:{4*i}")

def srd(a, r, ptr, size):
    a(f"s_mov_b32 {s(r)}, {s(ptr)}", f"s_mov_b32 {s(r+1)}, {s(ptr+1)}", f"s_mov_b32 {s(r+2)}, {size}", f"s_mov_b32 {s(r+3)}, 0x20000")

CODE_LINES = 6
def setup(a, endlabel):
    a(f"s_cmp_ge_u32 s2, 256", f"s_cbranch_scc1 {endlabel}")
    if DIAG:
        for i in range(1, 10): a(f"s_mov_b32 {s(STAMP0+2*i)}, 0")
    stamp(a, "start")
    a(f"s_and_b32 {s(SB)}, s2, 1", f"s_mul_i32 s3, {s(SB)}, 40", "s_add_u32 s56, s0, s3", "s_addc_u32 s57, s1, 0")
    a("s_load_dwordx4 s[60:63], s[56:57], 0", "s_load_dwordx2 s[70:71], s[0:1], 96", "s_load_dwordx4 s[64:67], s[56:57], 16", f"s_load_dwordx2 {s(PWO,2)}, s[56:57], 32",
      "s_load_dwordx2 s[72:73], s[0:1], 80")
    if DIAG: a("s_load_dwordx2 s[68:69], s[0:1], 88")
    a(f"v_lshrrev_b32 v2, 6, v0", f"v_and_b32 {v(LANE)}, 63, v0")
    if CODE_LINES:
        a(f"s_getpc_b64 {s(ROUT,2)}")
        a.label("L_pc")
        a(f"s_mov_b32 {s(ROUT+2)}, L_code_end-L_pc", f"s_mov_b32 {s(ROUT+3)}, 0x20000", "s_lshr_b32 s3, s2, 3", f"s_mul_i32 s3, s3, {CODE_LINES*128}", "v_lshlrev_b32 v3, 7, v0",
          f"v_cmp_gt_u32 vcc, {CODE_LINES}, v0", f"v_readfirstlane_b32 {s(SW)}, v2", f"s_and_saveexec_b64 {s(SEX,2)}, vcc", "s_cbranch_execz L_nocode",
          f"buffer_load_dword {v(JUNK+1)}, v3, {s(ROUT,4)}, s3 offen")
        a.label("L_nocode")
        a("s_mov_b64 exec, -1")
    else: a("s_nop 0", f"v_readfirstlane_b32 {s(SW)}, v2")
    a(f"s_bfe_u32 s3, s2, 0x20001", f"s_lshl_b32 s3, s3, 3", f"s_lshr_b32 {s(SQB)}, s2, 5", f"s_add_u32 {s(SQB)}, {s(SQB)}, s3", f"s_bfe_u32 {s(SHG)}, s2, 0x20003")

def setup_srd_early(a):
    a("s_waitcnt lgkmcnt(0)")
    stamp(a, "args")
    srd(a, RX, 60, 2048*1152)
    a(f"s_add_u32 {s(RDBG)}, s70, {FOFF}", f"s_addc_u32 {s(RDBG+1)}, s71, 0", f"s_mov_b32 {s(RDBG+2)}, 0x10100", f"s_mov_b32 {s(RDBG+3)}, 0x20000")
def setup_srd_mid(a):
    srd(a, RW, 62, 576*1152)
    a(f"s_bitcmp1_b32 {s(SHG)}, 0", f"s_cselect_b64 {s(RKW,2)}, s[66:67], s[64:65]", f"s_mov_b32 {s(RKW+2)}, {576*36}", f"s_mov_b32 {s(RKW+3)}, 0x20000")
def setup_late(a):
    a(f"s_and_b32 s3, {s(SQB)}, 1", f"s_lshl_b32 s3, s3, 2", f"s_add_u32 {s(SJJ)}, s3, {s(SHG)}")
    a(f"s_lshr_b32 s3, {s(SQB)}, 1", f"s_lshl_b32 {s(SGRP)}, {s(SB)}, 4", f"s_add_u32 {s(SGRP)}, {s(SGRP)}, s3")
    a(f"s_lshl_b32 s3, {s(SB)}, 18", f"s_add_u32 {s(RKV)}, s70, s3", f"s_addc_u32 {s(RKV+1)}, s71, 0", f"s_mov_b32 {s(RKV+2)}, {KVB}", f"s_mov_b32 {s(RKV+3)}, 0x20000")
    a(f"s_add_u32 {s(RO)}, s70, {OOFF}", f"s_addc_u32 {s(RO+1)}, s71, 0", f"s_mov_b32 {s(RO+2)}, {OBYTES}", f"s_mov_b32 {s(RO+3)}, 0x20000")
    srd(a, ROUT, 72, OBYTES)

def dma(a, vaddr, r, soff, ldsaddr_s=None, ldsaddr=None, flags=""):
    if ldsaddr_s is not None: a(f"s_mov_b32 m0, {s(ldsaddr_s)}")
    else: a(f"s_mov_b32 m0, {ldsaddr}")
    a("s_nop 0", f"buffer_load_dwordx4 {v(vaddr)}, {s(r,4)}, {soff} offen{flags} lds")

ACA, ACB, ACC2 = 16, 32, 48
FR = [64, 112]
XF, WF = 64, 80
X16, W16 = [96, 112], [104, 120]
AX, AXB, AW, AX16, AX16T, AWR, AWK, APT, DW, DX3, TAGV = 160, 164, 168, 169, 171, 173, 174, 175, 176, 179, 180
AXH, AWH, AWRH, AXK = 184, 188, 189, 192
WKVP = [0, 9216, 15360, 21504]

def swz_row(a, dst, row, sel, tmp):
    a(f"v_bfe_u32 {v(tmp)}, {v(row)}, 1, 3", f"v_xor_b32 {v(tmp)}, {v(tmp)}, {v(sel)}", f"v_lshlrev_b32 {v(tmp)}, 4, {v(tmp)}",
      f"v_lshl_add_u32 {v(dst)}, {v(row)}, 7, {v(tmp)}")

def wrap9(a, r):
    a(f"s_cmp_ge_u32 {s(r)}, 9", f"s_cselect_b32 s3, 9, 0", f"s_sub_u32 {s(r)}, {s(r)}, s3")

def chunk_dma(a, n):
    sl = RB + (n & 3)*SLOT
    ld = lambda vr, R, so: f"buffer_load_dwordx4 {v(vr)}, {s(R,4)}, {s(so)} offen lds"
    a(f"s_mul_i32 {s(ST+8)}, {s(SJ)}, {64*1152}", f"s_add_u32 m0, {s(SLB)}, {sl}", f"s_add_u32 {s(ST+8)}, {s(ST+8)}, {s(SWB)}", ld(DW, RW, ST+8))
    a(f"s_add_u32 m0, {s(SLB)}, {sl + 4096}", f"s_add_u32 {s(ST+9)}, {s(ST+8)}, {32*1152}", ld(DW+1, RW, ST+8))
    a(f"s_add_u32 m0, {s(SLB+1)}, {sl}", f"s_mov_b64 exec, {s(EXM,2)}", ld(DW+2, RW, ST+8), "s_mov_b64 exec, -1")
    a(f"s_add_u32 m0, {s(SLB)}, {sl + 9216}", f"s_lshl_b32 {s(ST+8)}, {s(SJ)}, 7", ld(DW, RW, ST+9))
    a(f"s_add_u32 m0, {s(SLB)}, {sl + 13312}", f"s_add_u32 {s(ST+8)}, {s(ST+8)}, {s(SXB)}", ld(DW+1, RW, ST+9))
    a(f"s_add_u32 m0, {s(SLB)}, {sl + 18432}", f"s_add_u32 {s(SJ)}, {s(SJ)}, 1", ld(DX3, RX, ST+8))
    a(f"s_cmp_ge_u32 {s(SJ)}, 9", f"s_cselect_b32 {s(SJ)}, 0, {s(SJ)}")

def w_pattern(a, dst, base_s):
    a(f"v_add_u32 v3, {s(base_s)}, {v(LANE)}", f"v_mul_u32_u24 v4, 3641, v3", "v_lshrrev_b32 v4, 16, v4", "v_mad_i32_i24 v3, v4, -16, v3", "v_mad_i32_i24 v3, v4, -2, v3",
      "v_bfe_u32 v5, v4, 1, 2", "v_and_or_b32 v5, v4, 56, v5", "v_and_b32 v4, 1, v4", "v_lshl_or_b32 v5, v4, 2, v5", "v_lshlrev_b32 v3, 4, v3", f"v_mad_u32_u24 {v(dst)}, v5, {s(ST+7)}, v3")

def x_pattern(a, dst, par):
    L = v(LANE)
    a(f"v_lshrrev_b32 v3, 3, {L}", f"v_lshrrev_b32 v4, 4, {L}", f"v_xor_b32 v4, {par}, v4", f"v_xor_b32 v4, v4, {L}", "v_and_b32 v4, 7, v4", "v_lshlrev_b32 v4, 4, v4", f"v_mad_u32_u24 {v(dst)}, v3, {s(ST+7)}, v4")

def rotation(a):
    a(f"s_and_b32 {s(SJ)}, {s(SQB)}, 7", f"s_and_b32 s3, {s(SHG)}, 1", "s_lshl_b32 s3, s3, 2", f"s_add_u32 {s(SJ)}, {s(SJ)}, s3"); wrap9(a, SJ)
    if os.environ.get("NOROT"): a(f"s_mov_b32 {s(SJ)}, 0")
    a(f"s_movk_i32 {s(ST+7)}, 1152", f"s_lshl_b32 {s(ST)}, {s(SB)}, 7", f"s_add_u32 {s(ST)}, {s(ST)}, {FEP}", f"v_mov_b32 {v(TAGV)}, 0")

def issue_role0(a):
    L = v(LANE)
    a("s_setprio 1")
    rotation(a)
    x_pattern(a, 14, "0"); a("v_xor_b32 v15, 64, v14")
    for i in range(3):
        a(f"v_add_u32 v3, {64*i}, {L}" if i else f"v_mov_b32 v3, {L}")
        a("v_mul_u32_u24 v4, 0x5556, v3", "v_lshrrev_b32 v4, 16, v4", "v_lshlrev_b32 v3, 4, v3", f"v_mad_i32_i24 {v(11+i)}, v4, -12, v3")
    a(f"s_lshr_b32 s3, {s(SHG)}, 1", f"s_lshl_b32 {s(ST+1)}, {s(SQB)}, 1", f"s_add_u32 {s(ST+1)}, {s(ST+1)}, s3", f"s_mul_i32 {s(ST+1)}, {s(ST+1)}, {32*1152}",
      f"s_lshl_b32 {s(ST+5)}, {s(SW)}, 1", f"s_add_u32 {s(ST+5)}, {s(ST+5)}, 1", f"s_cmp_eq_u32 {s(SW)}, 0", f"s_cselect_b32 {s(ST+5)}, 0, {s(ST+5)}", f"s_mul_i32 {s(ST+5)}, {s(ST+5)}, 3072",
      f"s_add_u32 {s(ST+5)}, {s(ST+5)}, {WKVB}", f"s_lshl_b32 {s(ST+6)}, {s(SW)}, 12")
    if TOUCH:
        a(f"s_lshl_b32 {s(ST+2)}, {s(SQB)}, 2", f"s_add_u32 {s(ST+2)}, {s(ST+2)}, {s(SHG)}", f"s_lshl_b32 {s(ST+2)}, {s(ST+2)}, 2", f"s_add_u32 {s(ST+2)}, {s(ST+2)}, {s(SW)}", f"s_mul_i32 {s(ST+2)}, {s(ST+2)}, {36*128}", f"v_lshlrev_b32 v2, 7, {L}")
    setup_srd_early(a)
    if TOUCH: a("s_mov_b32 exec_hi, 0xf", f"buffer_load_dword {v(JUNK)}, v2, {s(RX,4)}, {s(ST+2)} offen", "s_mov_b32 exec_hi, -1")
    setup_srd_mid(a)
    def pos(dn, xl, wl):
        a(f"s_add_u32 {s(ST+2)}, {s(SJ)}, {dn}"); wrap9(a, ST+2)
        a(f"s_lshl_b32 {s(ST+3)}, {s(ST+2)}, 7", f"s_add_u32 {s(ST+3)}, {s(ST+3)}, {s(ST+1)}", f"s_mul_i32 {s(ST+4)}, {s(ST+2)}, {64*36}")
        for g in range(4):
            a(f"s_add_u32 m0, {s(ST+6)}, {XKB + xl + g*1024}", f"s_add_u32 s3, {s(ST+3)}, {g*8*1152}", f"buffer_load_dwordx4 {v(14 + (g & 1))}, {s(RX,4)}, s3 offen lds")
        for i in range(3):
            a(f"s_add_u32 m0, {s(ST+5)}, {wl + i*1024}", "s_nop 0", f"buffer_load_dwordx4 {v(11+i)}, {s(RKW,4)}, {s(ST+4)} offen lds")
    a(f"buffer_load_dword {v(TAGV)}, {v(TAGV)}, {s(RDBG,4)}, {s(ST)} offen sc1")
    a(f"s_cmp_eq_u32 {s(SW)}, 0", "s_cbranch_scc0 L_nop8")
    pos(8, 8*4096, 6144)
    a.label("L_nop8")
    a(f"s_add_u32 {s(SJ)}, {s(SJ)}, {s(SW)}"); wrap9(a, SJ)
    pos(0, 0, 0); pos(4, 4*4096, 3072)
    a("s_setprio 0")

TOUCH = int(os.environ.get("TOUCH", 1)); PRE = int(os.environ.get("PRE", 2))
def issue_role1(a):
    rotation(a)
    if TOUCH:
        a(f"s_lshr_b32 {s(ST+2)}, s2, 3", f"s_mul_i32 {s(ST+2)}, {s(ST+2)}, 162", f"s_and_b32 s3, {s(SW)}, 3", "s_mul_i32 s3, s3, 41", f"s_add_u32 {s(ST+2)}, {s(ST+2)}, s3", f"s_lshl_b32 {s(ST+2)}, {s(ST+2)}, 7", f"v_lshlrev_b32 v2, 7, {v(LANE)}")
        setup_srd_early(a); setup_srd_mid(a)
        a("s_mov_b32 exec_hi, 0x1ff", f"buffer_load_dword {v(JUNK)}, v2, {s(RW,4)}, {s(ST+2)} offen", "s_mov_b32 exec_hi, -1")
    a(f"s_and_b32 {s(ST+6)}, {s(SW)}, 3", f"s_and_b32 {s(ST+5)}, {s(SW)}, 1", f"s_lshl_b32 {s(ST+4)}, {s(ST+5)}, 2")
    x_pattern(a, DX3, s(ST+4))
    a(f"s_lshr_b32 s3, {s(SHG)}, 1", "s_xor_b32 s3, s3, 1", f"s_lshl_b32 {s(ST+1)}, {s(SQB)}, 1", f"s_add_u32 {s(ST+1)}, {s(ST+1)}, s3", f"s_lshl_b32 {s(ST+1)}, {s(ST+1)}, 2",
      f"s_add_u32 {s(ST+1)}, {s(ST+1)}, {s(ST+6)}", f"s_lshl_b32 {s(ST+2)}, {s(ST+6)}, 6")
    w_pattern(a, DW, ST+2)
    a(f"s_add_u32 {s(ST+2)}, {s(ST+2)}, 256")
    w_pattern(a, DW+1, ST+2)
    a(f"s_mul_i32 {s(ST+2)}, {s(ST+5)}, 576", f"s_add_u32 {s(ST+2)}, {s(ST+2)}, 512")
    w_pattern(a, DW+2, ST+2)
    if not TOUCH: setup_srd_early(a); setup_srd_mid(a)
    a(f"s_mul_i32 {s(SXB)}, {s(ST+1)}, {8*1152}", f"s_mul_i32 {s(SWB)}, {s(SHG)}, 288", f"s_lshl_b32 {s(SLB)}, {s(ST+6)}, 10", f"s_lshl_b32 {s(SLB+1)}, {s(ST+2)}, 4",
      f"s_cmp_ge_u32 {s(SW)}, 6", f"s_cselect_b64 {s(EXM,2)}, 1, -1")
    a(f"buffer_load_dword {v(TAGV)}, {v(TAGV)}, {s(RDBG,4)}, {s(ST)} offen sc1")
    for n in range(PRE): chunk_dma(a, n)

def lane_fields(a):
    L = v(LANE)
    a(f"v_lshrrev_b32 v6, 5, {L}", f"v_bfe_u32 v7, {L}, 4, 1", f"v_bfe_u32 v8, {L}, 2, 2", f"v_and_b32 v9, 3, {L}", f"v_and_b32 v10, 31, {L}")

def addr_main(a):
    a(f"s_lshl_b32 {s(ST)}, {s(SW)}, 12")
    for r in range(4):
        a(f"v_add_u32 v11, {2*r}, v6")
        swz_row(a, AX+r, 10, 11, 12)
        a(f"v_add_u32 {v(AXK+r)}, {s(ST)}, {v(AX+r)}")
    a("v_lshlrev_b32 v11, 3, v9", "v_and_b32 v12, 1, v9", "v_lshlrev_b32 v12, 4, v12", "v_lshrrev_b32 v13, 1, v9", "v_lshl_add_u32 v12, v13, 3, v12")
    a(f"s_bitcmp1_b32 {s(SHG)}, 0", "s_cselect_b64 vcc, -1, 0", "v_cndmask_b32 v11, v12, v11, vcc")
    a("v_cmp_eq_u32 vcc, 1, v7", "v_lshl_add_u32 v12, v6, 3, v8", f"v_lshl_add_u32 {v(APT)}, {v(LANE)}, 4, {s(ST+5)}", "v_cndmask_b32 v11, v11, 32, vcc")
    a("v_mad_u32_u24 v11, v12, 48, v11", f"v_add_u32 {v(AWK)}, {s(ST+5)}, v11")
    for r in range(16): a(f"v_mov_b32 {v(ACA+r)}, 0")
def addr_main2(a):
    for r in range(4): a(f"v_add_u32 {v(AXB+r)}, {RB + 18432}, {v(AX+r)}", f"v_add_u32 {v(AXH+r)}, {RB + 18432 + 3*SLOT}, {v(AX+r)}")
    a(f"s_lshl_b32 s3, {s(SW)}, 6", f"s_add_u32 s3, s3, {RB}", "v_lshl_add_u32 v11, v7, 5, s3", "v_lshl_add_u32 v11, v9, 3, v11",
      "v_lshl_add_u32 v12, v6, 2, v8", f"s_movk_i32 s3, 576", f"v_mad_u32_u24 {v(AW)}, v12, s3, v11", f"v_add_u32 {v(AWH)}, {2*SLOT}, {v(AW)}")

def addr_rem(a):
    L = v(LANE)
    a(f"v_and_b32 v11, 15, {L}", f"s_and_b32 {s(ST)}, {s(SW)}, 1", f"s_lshl_b32 {s(ST)}, {s(ST)}, 4", f"v_add_u32 v11, {s(ST)}, v11", f"v_lshrrev_b32 v13, 4, {L}")
    for s2 in range(2):
        a(f"v_add_u32 v14, {4*s2}, v13")
        swz_row(a, AX16+s2, 11, 14, 12)
    a("v_lshl_add_u32 v12, v13, 2, v8", "v_lshlrev_b32 v14, 3, v9", f"v_add_u32 v14, {RB + 256}, v14", f"s_movk_i32 s3, 576", f"v_mad_u32_u24 {v(AWR)}, v12, s3, v14",
      f"v_add_u32 {v(AWRH)}, {2*SLOT}, {v(AWR)}")

def kv_compute(a):
    def block(typ, xl, wl, cnt, F):
        a(f"s_waitcnt vmcnt({cnt})")
        for st in range(4):
            a(f"ds_read_b128 {v(F+XF+4*st,4)}, {v(AXK+st)} offset:{XKB + xl}",
              f"ds_read_b64_tr_b16 {v(F+WF+4*st,2)}, {v(AWK)} offset:{wl + st*768}", f"ds_read_b64_tr_b16 {v(F+WF+4*st+2,2)}, {v(AWK)} offset:{wl + st*768 + 192}")
        for st in range(4):
            A, B = (F+WF+4*st, F+XF+4*st) if typ == "K" else (F+XF+4*st, F+WF+4*st)
            a(f"s_waitcnt lgkmcnt({9-3*st})", f"v_mfma_f32_32x32x16_bf16 {v(ACA,16)}, {v(A,4)}, {v(B,4)}, {v(ACA,16)}")
    for typ in ("K", "V"):
        if typ == "K": a(f"s_bitcmp1_b32 {s(SHG)}, 0", "s_cbranch_scc1 L_kvV")
        else: a.label("L_kvV")
        a(f"s_cmp_eq_u32 {s(SW)}, 0", f"s_cbranch_scc0 L_kv2{typ}")
        block(typ, 8*4096, 6144, 14, 64)
        a.label(f"L_kv2{typ}")
        block(typ, 0, 0, 7, 0); block(typ, 4*4096, 3072, 0, 32)
        if typ == "K": a("s_branch L_kvD")
    a.label("L_kvD")

def kv_finalize(a):
    L = v(LANE)
    a(f"s_lshl_b32 {s(ST)}, {s(SW)}, 10", f"s_add_u32 {s(ST)}, {s(ST)}, {WKVB}", f"v_lshl_add_u32 v11, {L}, 4, {s(ST)}")
    for p in range(4): a(f"ds_read_b128 {v(FR[1]+4*p,4)}, v11 offset:{WKVP[p]}")
    T = FR[1]
    a(f"s_lshr_b32 {s(ST)}, {s(SHG)}, 1", f"s_lshl_b32 {s(ST+1)}, {s(SQB)}, 1", f"s_add_u32 {s(ST)}, {s(ST)}, {s(ST+1)}",
      f"s_lshr_b32 {s(ST+1)}, {s(ST)}, 2", f"s_mul_i32 {s(ST+1)}, {s(ST+1)}, {BLK}", f"s_and_b32 {s(ST)}, {s(ST)}, 3",
      f"s_mul_i32 {s(ST+3)}, {s(ST)}, {STEPB}", f"s_add_u32 {s(ST+3)}, {s(ST+3)}, {s(ST+1)}", f"s_add_u32 {s(ST+3)}, {s(ST+3)}, 512",
      f"s_and_b32 {s(ST+4)}, {s(SW)}, 1", f"s_lshl_b32 {s(ST+4)}, {s(ST+4)}, 3", f"s_add_u32 {s(ST+3)}, {s(ST+3)}, {s(ST+4)}")
    a(f"s_bitcmp1_b32 {s(SHG)}, 0", "s_cbranch_scc1 L_kvFV")
    def red():
        a("s_waitcnt lgkmcnt(2)")
        for r in range(4): a(f"v_add_f32 {v(T+r)}, {v(T+r)}, {v(T+4+r)}")
        a("s_waitcnt lgkmcnt(0)")
        for r in range(4): a(f"v_add_f32 {v(T+8+r)}, {v(T+8+r)}, {v(T+12+r)}")
        for r in range(4): a(f"v_add_f32 {v(T+r)}, {v(T+r)}, {v(T+8+r)}")
    a("v_and_b32 v11, 0x13, v10", "v_bfe_u32 v12, v10, 2, 1", "v_lshl_or_b32 v11, v12, 3, v11", "v_bfe_u32 v12, v10, 3, 1", "v_lshl_or_b32 v11, v12, 2, v11", f"s_mov_b32 {s(ST+4)}, {fbits(SCALE)}")
    red()
    for r in range(4): a(f"v_mul_f32 {v(T+r)}, {s(ST+4)}, {v(T+r)}")
    for r in range(2): a(f"v_cvt_pk_bf16_f32 {v(T+4+r)}, {v(T+2*r)}, {v(T+2*r+1)}")
    a(f"s_cmp_ge_u32 {s(SW)}, 2", "s_cbranch_scc1 L_kvK2")
    a("v_lshl_add_u32 v11, v6, 5, v11", "v_lshlrev_b32 v11, 4, v11", f"buffer_store_dwordx2 {v(T+4,2)}, v11, {s(RKV,4)}, {s(ST+3)} offen sc1", "s_branch L_kvF")
    a.label("L_kvK2")
    a(f"s_cmp_eq_u32 {s(SW)}, 3", "s_cbranch_scc1 L_kvF", "v_lshlrev_b32 v11, 4, v11", f"s_lshl_b32 {s(ST)}, {s(ST)}, 2", f"s_add_u32 {s(ST+1)}, {s(ST+1)}, {s(ST)}",
      "s_mov_b32 exec_hi, 0", f"buffer_store_dword {v(T+4)}, v11, {s(RKV,4)}, {s(ST+1)} offen sc1", "s_mov_b64 exec, -1", "s_branch L_kvF")
    a.label("L_kvFV")
    a("v_cmp_eq_u32 vcc, 18, v10", "v_mov_b32 v12, 0x3f803f80", f"s_movk_i32 {s(ST)}, {VH}", "v_lshlrev_b32 v11, 4, v10", f"v_mad_u32_u24 v11, v6, {s(ST)}, v11",
      f"s_lshr_b32 {s(ST+2)}, {s(SW)}, 1", f"s_mul_i32 {s(ST+2)}, {s(ST+2)}, {2*VH}", f"s_add_u32 {s(ST+3)}, {s(ST+3)}, {s(ST+2)}")
    red()
    for r in range(2): a(f"v_cvt_pk_bf16_f32 {v(T+4+r)}, {v(T+2*r)}, {v(T+2*r+1)}")
    for r in range(2): a(f"v_cndmask_b32 {v(T+4+r)}, {v(T+4+r)}, v12, vcc")
    a("s_mov_b32 exec_lo, 0x7ffff", "s_mov_b32 exec_hi, 0x7ffff", f"buffer_store_dwordx2 {v(T+4,2)}, v11, {s(RKV,4)}, {s(ST+3)} offen offset:1024 sc1", "s_mov_b64 exec, -1")
    a.label("L_kvF")

def main_reads(n, st):
    F = FR[n & 1] + 12*st; sl = (n & 3)
    aw, o = (AW, sl*SLOT + st*4608) if sl < 2 else (AWH, (sl-2)*SLOT + st*4608)
    return [f"ds_read_b64_tr_b16 {v(F+8,2)}, {v(aw)} offset:{o}", f"ds_read_b64_tr_b16 {v(F+10,2)}, {v(aw)} offset:{o+288}",
            f"ds_read_b128 {v(F,4)}, {v(AX+st)} offset:{XKB + n*4096}",
            f"ds_read_b128 {v(F+4,4)}, {v(AXB+st)} offset:{sl*SLOT}" if sl < 3 else f"ds_read_b128 {v(F+4,4)}, {v(AXH+st)}"]
def main_mfma(n, st):
    F = FR[n & 1] + 12*st; z = (n == 0 and st == 0)
    return [f"v_mfma_f32_32x32x16_bf16 {v(ACA,16)}, {v(F+8,4)}, {v(F,4)}, {'0' if z else v(ACA,16)}", f"v_mfma_f32_32x32x16_bf16 {v(ACB,16)}, {v(F+8,4)}, {v(F+4,4)}, {'0' if z else v(ACB,16)}"]
def rem_reads(a, n):
    sl = n & 3
    a(f"s_mov_b32 s3, {XKB + n*4096}", f"s_cmp_ge_u32 {s(SW)}, 6", f"s_cselect_b32 s3, {RB + 18432 + sl*SLOT}, s3")
    for s2 in range(2): a(f"v_add_u32 {v(AX16T+s2)}, s3, {v(AX16+s2)}")
    aw, o = (AWR, sl*SLOT) if sl < 2 else (AWRH, (sl-2)*SLOT)
    for s2 in range(2):
        a(f"ds_read_b128 {v(X16[n&1]+4*s2,4)}, {v(AX16T+s2)}",
          f"ds_read_b64_tr_b16 {v(W16[n&1]+4*s2,2)}, {v(aw)} offset:{o + s2*9216}", f"ds_read_b64_tr_b16 {v(W16[n&1]+4*s2+2,2)}, {v(aw)} offset:{o + s2*9216 + 288}")
def rem_mfma(a, n):
    for s2 in range(2):
        a(f"v_mfma_f32_16x16x32_bf16 {v(ACC2,4)}, {v(W16[n&1]+4*s2,4)}, {v(X16[n&1]+4*s2,4)}, {'0' if (n == 0 and s2 == 0) else v(ACC2,4)}")

def flag_store(a, base_s):
    a(f"v_mov_b32 v11, {s(STAG)}", "v_mov_b32 v12, 0", "s_mov_b32 exec_lo, 1", "s_mov_b32 exec_hi, 0", f"buffer_store_dword v11, v12, {s(RDBG,4)}, {s(base_s)} offen sc1", "s_mov_b64 exec, -1")

def poll(a, uid, base_s, nloads, mask=None):
    a(f"v_lshlrev_b32 v11, 7, {v(LANE)}", "v_add_u32 v12, 0x2000, v11", f"s_mov_b32 {s(SIT)}, 0")
    if mask: a(f"s_mov_b32 exec_lo, {mask}", "s_mov_b32 exec_hi, 0")
    a.label(f"L_poll{uid}")
    for i in range(nloads): a(f"buffer_load_dword {v(13+i)}, {v(11+i)}, {s(RDBG,4)}, {s(base_s)} offen sc1")
    a(f"s_add_u32 {s(SIT)}, {s(SIT)}, 1", f"s_cmp_gt_u32 {s(SIT)}, {SPIN}", f"s_cbranch_scc1 L_polld{uid}", "s_waitcnt vmcnt(0)")
    a(f"v_cmp_ne_u32 vcc, {s(STAG)}, v13")
    if nloads == 2: a(f"v_cmp_ne_u32 {s(SEX,2)}, {s(STAG)}, v14", "s_nop 0", f"s_or_b64 vcc, vcc, {s(SEX,2)}")
    else: a("s_nop 4")
    a(f"s_cbranch_vccnz L_poll{uid}")
    a.label(f"L_polld{uid}")
    a("s_waitcnt vmcnt(0)", "s_mov_b64 exec, -1")

KVFLAG_AT = int(os.environ.get("KVF", 3))
def prologue(a):
    a(f"s_cmp_ge_u32 {s(SW)}, 4", "s_cbranch_scc1 L_role1")
    for role in (0, 1):
        if role == 1: a.label("L_role1")
        (issue_role0 if role == 0 else issue_role1)(a)
        stamp(a, "issued")
        lane_fields(a)
        if role == 0:
            addr_main(a)
            kv_compute(a)
            stamp(a, "kvc")
            setup_late(a)
            for qd in range(4): a(f"ds_write_b128 {v(APT)}, {v(ACA+4*qd,4)} offset:{qd*1024}")
            addr_main2(a)
            a(f"v_readfirstlane_b32 {s(STAG)}, {v(TAGV)}", "s_waitcnt lgkmcnt(0)", "s_barrier")
        else:
            setup_late(a); addr_rem(a)
            a(f"s_waitcnt vmcnt({6*(PRE-1)})", f"v_readfirstlane_b32 {s(STAG)}, {v(TAGV)}", "s_barrier")
        a(f"s_add_u32 {s(STAG)}, {s(STAG)}, {TAGC}")
        stamp(a, "b0")
        for n in range(9):
            if role == 0:
                if n == KVFLAG_AT:
                    a(f"s_cmp_eq_u32 {s(SW)}, 0", "s_cbranch_scc0 L_nokvf", f"s_lshl_b32 {s(ST)}, {s(SQB)}, 2", f"s_add_u32 {s(ST)}, {s(ST)}, {s(SHG)}", f"s_lshl_b32 s3, {s(SB)}, 7", f"s_add_u32 {s(ST)}, {s(ST)}, s3", f"s_lshl_b32 {s(ST)}, {s(ST)}, 7")
                    flag_store(a, ST)
                    a.label("L_nokvf")
                    stamp(a, "kvflag")
                if n == 0:
                    kv_finalize(a)
                    stamp(a, "kvst")
                    for st in range(4):
                        if st == 3: a("s_waitcnt lgkmcnt(8)")
                        a(main_reads(n, st))
                else:
                    M = sum((main_mfma(n-1, st) for st in range(4)), [])
                    R = sum((main_reads(n, st) for st in range(4)), [])
                    a(M[0], R[0:3], M[1], R[3:6], M[2], R[6:9], M[3], R[9:12], M[4], "s_waitcnt lgkmcnt(8)", R[12:16], M[5], M[6], M[7])
                if n < 8:
                    stamp(a, f"w{n+1}")
                    a("s_waitcnt vmcnt(0) lgkmcnt(0)" if n == KVFLAG_AT - 1 else "s_waitcnt lgkmcnt(0)")
            else:
                if n == 0:
                    for m in range(PRE, 3): chunk_dma(a, m)
                if n <= 5: chunk_dma(a, n+3)
                rem_reads(a, n)
                if n: rem_mfma(a, n-1)
                if n < 8:
                    stamp(a, f"w{n+1}")
                    a(f"s_waitcnt vmcnt({ {7: 0, 6: 6}.get(n, 12) }) lgkmcnt(0)")
            if n < 8:
                stamp(a, f"x{n+1}")
                a("s_barrier")
                stamp(a, f"b{n+1}")
        a(f"s_movk_i32 {s(ST+2)}, {QS}", f"s_lshr_b32 {s(ST)}, {s(SHG)}, 1")
        if role == 0:
            for st in range(4): a(f"s_waitcnt lgkmcnt({12-4*st})" if st else "s_waitcnt lgkmcnt(8)", main_mfma(8, st))
            a(f"s_mul_i32 {s(ST)}, {s(ST)}, {32*QS}", f"s_lshl_b32 {s(ST+1)}, {s(SW)}, 6", f"s_add_u32 {s(ST+1)}, {s(ST+1)}, {QX}", f"v_lshl_add_u32 v11, v6, 3, {s(ST+1)}", f"v_mad_u32_u24 v11, v10, {s(ST+2)}, v11",
              f"s_sub_u32 {s(ST+1)}, {32*QS}, {s(ST)}", f"v_add_u32 v12, {s(ST+1)}, v11", f"v_add_u32 v11, {s(ST)}, v11", "s_nop 2")
            for t, (acc, ad) in enumerate(((ACA, 11), (ACB, 12))):
                for q in range(4):
                    for r in (2*q, 2*q+1): a(f"v_cvt_pk_bf16_f32 {v(FR[1]+8*t+r)}, {v(acc+2*r)}, {v(acc+2*r+1)}")
                    a(f"ds_write_b64 {v(ad)}, {v(FR[1]+8*t+2*q,2)} offset:{16*q}")
        else:
            a("s_waitcnt lgkmcnt(0)")
            rem_mfma(a, 8)
            a(f"s_bfe_u32 {s(ST+1)}, {s(SW)}, 0x10001", f"s_xor_b32 {s(ST)}, {s(ST)}, {s(ST+1)}", f"s_lshl_b32 {s(ST)}, {s(ST)}, 1", f"s_and_b32 {s(ST+1)}, {s(SW)}, 1", f"s_add_u32 {s(ST)}, {s(ST)}, {s(ST+1)}",
              f"s_mul_i32 {s(ST)}, {s(ST)}, {16*QS}", f"s_add_u32 {s(ST)}, {s(ST)}, {QX + 256}", f"v_lshrrev_b32 v12, 4, {v(LANE)}", f"v_lshl_add_u32 v12, v12, 3, {s(ST)}",
              f"v_and_b32 v13, 15, {v(LANE)}", f"v_mad_u32_u24 v12, v13, {s(ST+2)}, v12")
            for r in range(2): a(f"v_cvt_pk_bf16_f32 {v(XF+r)}, {v(ACC2+2*r)}, {v(ACC2+2*r+1)}")
            a(f"ds_write_b64 v12, {v(XF,2)}")
        if role == 0: a("s_branch L_pro_done")
    a.label("L_pro_done")

def wait_kv(a):
    a(f"s_cmp_eq_u32 {s(SW)}, 7", "s_cbranch_scc0 L_kvseen", f"s_lshl_b32 {s(ST+5)}, {s(SB)}, 14")
    poll(a, "kv", ST+5, 2)
    a(f"s_or_b32 s3, {s(SQB)}, {s(SHG)}", "s_cmp_eq_u32 s3, 0", "s_cbranch_scc0 L_kvseen", f"s_lshl_b32 {s(ST+5)}, {s(SB)}, 7", f"s_add_u32 {s(ST+5)}, {s(ST+5)}, {FEP}")
    flag_store(a, ST+5)
    a.label("L_kvseen")

IDX, AK1, AK2, AV = 2, 3, 4, 5
S = [16, 32, 48, 64]; O = [80, 96, 112, 128]; Q1 = [144, 148, 152, 156]; Q2 = [160, 164]
K1 = [168, 172]; K2 = 176; V = [[180, 184], [188, 192]]; MX = 196

def kv_dma_setup(a):
    a(f"v_lshlrev_b32 v15, 4, {v(LANE)}", f"s_lshr_b32 {s(ST)}, {s(SW)}, 2", f"s_mul_i32 {s(ST)}, {s(ST)}, {8*BLK}", f"s_and_b32 {s(ST+1)}, {s(SW)}, 3",
      f"s_lshl_b32 {s(ST+1)}, {s(ST+1)}, 10", f"s_add_u32 {s(ST)}, {s(ST)}, {s(ST+1)}")
def kv_dma(a, n, flags=""):
    for i in range(n):
        dma(a, 15, RKV, s(ST), ldsaddr_s=ST, flags=flags)
        a(f"s_add_u32 {s(ST)}, {s(ST)}, 4096")

def kv_dma2(a, flags):
    a(f"s_lshr_b32 {s(ST+1)}, s2, 3")
    for i in range(16):
        a(f"s_and_b32 {s(ST+1)}, {s(ST+1)}, 15", f"s_lshl_b32 s3, {s(ST+1)}, 12", f"s_add_u32 s3, s3, {s(ST)}", "s_mov_b32 m0, s3", f"s_add_u32 {s(ST+1)}, {s(ST+1)}, 1",
          f"buffer_load_dwordx4 v15, {s(RKV,4)}, s3 offen{flags} lds")
def wo_touch(a):
    srd(a, RW, PWO, 576*1152)
    a(f"s_lshr_b32 s3, s2, 3", "s_mul_i32 s3, s3, 162", f"s_mul_i32 {s(ST+1)}, {s(SW)}, 21", f"s_add_u32 s3, s3, {s(ST+1)}", "s_lshl_b32 s3, s3, 7", f"v_lshlrev_b32 v14, 7, {v(LANE)}",
      "s_mov_b32 exec_lo, 0x1fffff", "s_mov_b32 exec_hi, 0", f"buffer_load_dword {v(JUNK)}, v14, {s(RW,4)}, s3 offen", "s_mov_b64 exec, -1")

def attn_addr(a):
    L = v(LANE)
    a(f"s_lshr_b32 {s(ST+2)}, {s(SW)}, 2", f"s_mul_i32 {s(ST+2)}, {s(ST+2)}, {8*BLK}")
    a(f"v_lshl_add_u32 {v(AK1)}, {L}, 4, {s(ST+2)}", f"v_lshl_add_u32 {v(AK2)}, v10, 4, {s(ST+2)}")
    a("v_and_b32 v11, 0x13, v10", "v_bfe_u32 v12, v10, 2, 1", "v_lshl_or_b32 v11, v12, 3, v11", "v_bfe_u32 v12, v10, 3, 1", "v_lshl_or_b32 v11, v12, 2, v11")
    a("v_mov_b32 v12, 0x4000", "v_cmp_lt_u32 vcc, 16, v10", "s_nop 1", "v_cndmask_b32 v11, v11, v12, vcc")
    a("v_cmp_eq_u32 vcc, 20, v10", "s_nop 1", "v_cndmask_b32 v11, v11, 17, vcc")
    a("v_and_b32 v12, 0x1b, v10", "v_cmp_eq_u32 vcc, 17, v12", "s_nop 1", "v_cndmask_b32 v11, v11, 18, vcc")
    a(f"s_movk_i32 {s(ST+3)}, {VH}", f"v_lshl_add_u32 v11, v11, 4, {s(ST+2)}", f"v_mad_u32_u24 {v(AV)}, v6, {s(ST+3)}, v11", f"v_mov_b32 {v(IDX)}, 0xdddddddd")

def q_fetch(a):
    a(f"s_and_b32 {s(ST+3)}, {s(SW)}, 3", f"s_mul_i32 {s(ST+3)}, {s(ST+3)}, 72", f"s_add_u32 {s(ST+3)}, {s(ST+3)}, {QX}", f"s_movk_i32 {s(ST+4)}, {QS}",
      f"v_mov_b32 v12, {s(ST+3)}", f"v_mad_u32_u24 v12, v10, {s(ST+4)}, v12", "v_lshl_add_u32 v13, v6, 4, v12", f"v_add_u32 v14, {32*QS}, v13", "v_mad_u32_u24 v12, v6, 36, v12")
    for t in range(4):
        base = 13 + (t >> 1); o = 9*(t & 1)
        a(f"ds_read2_b32 {v(Q1[t],2)}, {v(base)} offset0:{o} offset1:{o+1}", f"ds_read2_b32 {v(Q1[t]+2,2)}, {v(base)} offset0:{o+2} offset1:{o+3}")
    for p in range(2):
        a(f"ds_read_b32 {v(Q2[p])}, v12 offset:{32 + p*32*QS}", f"ds_read_b32 {v(Q2[p]+3)}, v12 offset:{32 + p*32*QS}")
        a(f"v_mov_b32 {v(Q2[p]+1)}, 0", f"v_mov_b32 {v(Q2[p]+2)}, 0")

def E(t, x, y, sub):
    out = []
    for i in range(x, y):
        if sub: out.append(f"v_sub_f32 {v(S[t]+i)}, {v(S[t]+i)}, {v(MX+t)}")
        out.append(f"v_exp_f32 {v(S[t]+i)}, {v(S[t]+i)}")
    return out
pvhi = lambda t, vb: [f"v_smfmac_f32_32x32x32_bf16 {v(O[t],16)}, {v(V[vb][1],4)}, {v(S[t]+8,8)}, {v(IDX)}"]
pvlo = lambda t, vb: [f"v_smfmac_f32_32x32x32_bf16 {v(O[t],16)}, {v(V[vb][0],4)}, {v(S[t],8)}, {v(IDX)}"]
qk1 = lambda t, kb: [f"v_mfma_f32_32x32x16_bf16 {v(S[t],16)}, {v(K1[kb],4)}, {v(Q1[t],4)}, 0"]
q2b = lambda t, sg: [f"v_mfma_f32_32x32x4bf16_1k {v(S[t],32)}, {v(K2 + (sg & 2),2)}, {v(Q2[t>>1] + 2*(sg & 1),2)}, {v(S[t],32)}"]

def attn_step(sg, sub, prio=None):
    b = sg & 1; nb = b ^ 1
    off = 512 + (sg+1)*STEPB if sg < 3 else BLK + 512
    k1 = [f"ds_read_b128 {v(K1[nb],4)}, {v(AK1)} offset:{off}"]
    v0 = [f"ds_read_b128 {v(V[nb][0],4)}, {v(AV)} offset:{off+1024}"]
    v1 = [f"ds_read_b128 {v(V[nb][1],4)}, {v(AV)} offset:{off+1024+2*VH}"]
    k2 = []
    if sg == 0: k2 = [f"ds_read_b64 {v(K2+2,2)}, {v(AK2)} offset:8"]
    if sg == 2: k2 = [f"ds_read_b64 {v(K2,2)}, {v(AK2)} offset:{BLK}"]
    w = ["s_waitcnt lgkmcnt(0)"]
    P = (lambda k: [f"s_setprio {prio[k]}"] if prio and k in prio else [])
    L = P((sg, 0))
    L += E(0,0,2,sub) + pvhi(3, nb) + E(0,2,4,sub) + k1 + E(0,4,5,sub) + qk1(3, b) + E(0,5,8,sub) + v0 + E(0,8,10,sub) + pvlo(0, b) + E(0,10,12,sub) + v1 + E(0,12,14,sub) + q2b(2, sg) + E(0,14,16,sub) + k2
    L += P((sg, 1))
    L += E(1,0,6,sub) + pvhi(0, b) + E(1,6,9,sub) + w + qk1(0, nb) + E(1,9,12,sub) + pvlo(1, b) + E(1,12,16,sub)
    L += P((sg, 2))
    L += E(2,0,2,sub) + pvhi(1, b) + E(2,2,5,sub) + qk1(1, nb) + E(2,5,10,sub) + pvlo(2, b) + E(2,10,14,sub) + q2b(0, (sg+1) & 3) + E(2,14,16,sub)
    L += P((sg, 3))
    L += E(3,0,6,sub) + pvhi(2, b) + E(3,6,9,sub) + qk1(2, nb) + E(3,9,12,sub) + pvlo(3, b) + E(3,12,16,sub)
    return L

def attn_first_frags(a):
    a(f"ds_read_b128 {v(K1[0],4)}, {v(AK1)} offset:512", f"ds_read_b64 {v(K2,2)}, {v(AK2)}",
      f"ds_read_b128 {v(V[0][0],4)}, {v(AV)} offset:{512+1024}", f"ds_read_b128 {v(V[0][1],4)}, {v(AV)} offset:{512+1024+2*VH}")

def attn_loop(a, uid, sub, prio=None):
    a("s_waitcnt lgkmcnt(0)")
    a(qk1(0, 0), qk1(1, 0), qk1(2, 0), "s_nop 7", "s_nop 0", q2b(0, 0), f"s_mov_b32 {s(SIT)}, 0", "s_nop 15", "s_nop 2")
    a(".p2align 6")
    a.label(f"L_att{uid}")
    for sg in range(4): a(attn_step(sg, sub, prio))
    a(f"v_add_u32 {v(AK1)}, {BLK}, {v(AK1)}", f"v_add_u32 {v(AK2)}, {BLK}, {v(AK2)}", f"v_add_u32 {v(AV)}, {BLK}, {v(AV)}")
    a(f"s_add_u32 {s(SIT)}, {s(SIT)}, 1", f"s_cmp_eq_u32 {s(SIT)}, 1", f"s_cbranch_scc1 L_attb{uid}", f"s_cmp_lt_u32 {s(SIT)}, 8", f"s_cbranch_scc1 L_att{uid}", f"s_branch L_atte{uid}")
    a.label(f"L_attb{uid}")
    a("s_waitcnt vmcnt(0)", "s_barrier", f"s_branch L_att{uid}")
    a.label(f"L_atte{uid}")
    a(pvhi(3, 1))

def zero_acc(a):
    for r in range(64): a(f"v_mov_b32 {v(O[0]+r)}, 0")
    for r in range(8): a(f"v_mov_b32 {v(S[3]+8+r)}, 0")
    for r in range(4): a(f"v_mov_b32 {v(V[1][1]+r)}, 0")

def max_pass(a):
    a("s_waitcnt vmcnt(0)", "s_barrier")
    for t in range(4): a(f"v_mov_b32 {v(MX+t)}, 0xff800000")
    a(f"s_mov_b32 {s(SIT)}, 0")
    a.label("L_mx")
    a(f"ds_read_b128 {v(K2,4)}, {v(AK2)}")
    for sg in range(4):
        a(f"ds_read_b128 {v(K1[0],4)}, {v(AK1)} offset:{512 + sg*STEPB}", "s_waitcnt lgkmcnt(0)")
        for t in range(4): a(qk1(t, 0))
        a("s_nop 9", q2b(0, sg), q2b(2, sg), "s_nop 15", "s_nop 3")
        for t in range(4):
            for r in range(8): a(f"v_max3_f32 {v(MX+t)}, {v(S[t]+2*r)}, {v(S[t]+2*r+1)}, {v(MX+t)}")
    a(f"v_add_u32 {v(AK1)}, {BLK}, {v(AK1)}", f"v_add_u32 {v(AK2)}, {BLK}, {v(AK2)}")
    a(f"s_add_u32 {s(SIT)}, {s(SIT)}, 1", f"s_cmp_lt_u32 {s(SIT)}, 8", "s_cbranch_scc1 L_mx")
    a(f"v_subrev_u32 {v(AK1)}, {8*BLK}, {v(AK1)}", f"v_subrev_u32 {v(AK2)}, {8*BLK}, {v(AK2)}")
    a(f"v_lshlrev_b32 v11, 4, v0", f"v_add_u32 v11, {KVB + 2048}, v11", f"ds_write_b128 v11, {v(MX,4)}", "s_waitcnt lgkmcnt(0)", "s_barrier")
    a(f"v_xor_b32 v12, 32, v0", "v_xor_b32 v13, 0x100, v0", "v_xor_b32 v14, 0x120, v0")
    for i in range(3): a(f"v_lshlrev_b32 {v(12+i)}, 4, {v(12+i)}", f"v_add_u32 {v(12+i)}, {KVB + 2048}, {v(12+i)}", f"ds_read_b128 {v(S[0]+4*i,4)}, {v(12+i)}")
    a("s_waitcnt lgkmcnt(0)")
    for t in range(4): a(f"v_max3_f32 {v(MX+t)}, {v(MX+t)}, {v(S[0]+t)}, {v(S[0]+4+t)}", f"v_max_f32 {v(MX+t)}, {v(MX+t)}, {v(S[0]+8+t)}")

FLAGA = KVB + 10240
def attn_epilogue(a, uid, check_range, oflags, after_barrier=None):
    L = v(LANE)
    a("s_nop 7")
    if check_range:
        a(f"s_mov_b32 {s(ST)}, 0x21800000", f"s_mov_b32 {s(ST+1)}, 0x5d800000", f"s_mov_b32 {s(ST+2)}, 0x7e800000", "s_nop 0")
        a(f"v_min3_f32 v11, {v(O[0]+9)}, {v(O[1]+9)}, {v(O[2]+9)}", f"v_max3_f32 v12, {v(O[0]+9)}, {v(O[1]+9)}, {v(O[2]+9)}",
          f"v_min_f32 v11, v11, {v(O[3]+9)}", f"v_max_f32 v12, v12, {v(O[3]+9)}")
        a(f"v_add_f32 v13, abs({v(O[0])}), abs({v(O[1])})", f"v_add_f32 v14, abs({v(O[2])}), abs({v(O[3])})")
        for r in range(1, 10):
            for t in range(0, 4, 2):
                a(f"v_add_f32 v13, abs({v(O[t]+r)}), v13", f"v_add_f32 v14, abs({v(O[t+1]+r)}), v14")
        a("v_add_f32 v13, v13, v14", f"v_cmp_nle_f32 vcc, {s(ST)}, v11", f"v_cmp_nge_f32 {s(ST+4,2)}, {s(ST+1)}, v12", f"v_cmp_nge_f32 {s(ST+6,2)}, {s(ST+2)}, v13", "s_nop 0",
          f"s_or_b64 vcc, vcc, {s(ST+4,2)}", f"s_or_b64 vcc, vcc, {s(ST+6,2)}", "s_cmp_lg_u64 vcc, 0", f"s_cselect_b32 {s(ST)}, 1, 0", f"v_mov_b32 v11, {s(ST)}",
          f"s_lshl_b32 {s(ST+1)}, {s(SW)}, 2", f"s_add_u32 {s(ST+1)}, {s(ST+1)}, {FLAGA}", f"v_mov_b32 v12, {s(ST+1)}", "ds_write_b32 v12, v11")
    else: a("s_nop 3")
    a(f"s_mul_i32 {s(ST)}, {s(SW)}, 6144", f"v_lshl_add_u32 v13, {L}, 4, {s(ST)}", f"s_xor_b32 {s(ST+1)}, {s(SW)}, 4", f"s_mul_i32 {s(ST+1)}, {s(ST+1)}, 6144", f"v_lshl_add_u32 v14, {L}, 4, {s(ST+1)}")
    a("s_waitcnt lgkmcnt(0)", "s_barrier")
    if check_range:
        a(f"v_mov_b32 v12, {FLAGA}", f"ds_read_b128 {v(S[2],4)}, v12", f"ds_read_b128 {v(S[2]+4,4)}, v12 offset:16", "s_waitcnt lgkmcnt(0)",
          f"v_or3_b32 v11, {v(S[2])}, {v(S[2]+1)}, {v(S[2]+2)}", f"v_or3_b32 v11, v11, {v(S[2]+3)}, {v(S[2]+4)}", f"v_or3_b32 v11, v11, {v(S[2]+5)}, {v(S[2]+6)}", f"v_or_b32 v11, v11, {v(S[2]+7)}",
          "s_nop 0", f"v_readfirstlane_b32 {s(ST)}, v11", "s_nop 1", f"s_cmp_lg_u32 {s(ST)}, 0", "s_cbranch_scc1 L_fallback")
    if after_barrier: after_barrier(a)
    a(f"s_and_b32 {s(ST)}, {s(SQB)}, 1", f"s_lshl_b32 {s(ST)}, {s(ST)}, 1", f"s_lshr_b32 {s(ST+1)}, {s(SW)}, 2", f"s_add_u32 {s(ST)}, {s(ST)}, {s(ST+1)}",
      f"s_lshl_b32 {s(ST+1)}, {s(SGRP)}, 2", f"s_add_u32 {s(ST)}, {s(ST)}, {s(ST+1)}", f"s_mul_i32 {s(ST)}, {s(ST)}, 36", f"s_mul_i32 {s(ST+1)}, {s(SHG)}, 9", f"s_add_u32 {s(ST)}, {s(ST)}, {s(ST+1)}",
      f"s_lshl_b32 {s(ST)}, {s(ST)}, 10", f"s_and_b32 {s(ST+1)}, {s(SW)}, 3", f"s_lshl_b32 {s(ST+2)}, {s(ST+1)}, 2", f"s_add_u32 {s(ST+2)}, {s(ST+2)}, {s(ST)}", f"s_add_u32 {s(ST+2)}, {s(ST+2)}, 8192",
      f"s_lshl_b32 {s(ST+1)}, {s(ST+1)}, 11", f"s_add_u32 {s(ST)}, {s(ST)}, {s(ST+1)}", f"v_lshlrev_b32 v15, 4, {L}")
    a(f"s_cmp_ge_u32 {s(SW)}, 4", f"s_cbranch_scc1 L_ep1{uid}")
    for kh in (0, 1):
        if kh: a.label(f"L_ep1{uid}")
        for hh in range(2):
            for q in range(3): a(f"ds_write_b128 v13, {v(O[2*(1-kh)+hh]+4*q,4)} offset:{hh*3072 + q*1024}")
        a("s_waitcnt lgkmcnt(0)", "s_barrier")
        for hh in range(2):
            for q in range(3): a(f"ds_read_b128 {v(S[hh]+4*q,4)}, v14 offset:{hh*3072 + q*1024}")
        for hh in range(2):
            T = O[2*kh+hh]
            a(f"s_waitcnt lgkmcnt({3-3*hh})")
            for r in (9, 0, 1, 2, 3, 4, 5, 6, 7, 8):
                a(f"v_add_f32 {v(T+r)}, {v(T+r)}, {v(S[hh]+r)}")
                if r == 0: a(f"v_rcp_f32 {v(T+9)}, {v(T+9)}")
            for r in range(9): a(f"v_mul_f32 {v(T+r)}, {v(T+r)}, {v(T+9)}")
            for r in range(4): a(f"v_cvt_pk_bf16_f32 {v(S[2]+4*hh+r)}, {v(T+2*r)}, {v(T+2*r+1)}")
            a(f"buffer_store_dwordx4 {v(S[2]+4*hh,4)}, v15, {s(RO,4)}, {s(ST)} offen offset:{1024*hh}{oflags}")
        a(f"v_cvt_pk_bf16_f32 {v(S[2]+8)}, {v(O[2*kh]+8)}, {v(O[2*kh+1]+8)}", f"buffer_store_dword {v(S[2]+8)}, v15, {s(RO,4)}, {s(ST+2)} offen{oflags}")
        if kh == 0: a(f"s_branch L_ep2{uid}")
    a.label(f"L_ep2{uid}")

def attention(a, kvflags, oflags, wait_kv=None, after_barrier=None, prio=None):
    stamp(a, "qdone")
    kv_dma_setup(a); attn_addr(a)
    if wait_kv: wait_kv(a)
    a("s_waitcnt lgkmcnt(0)", "s_barrier")
    stamp(a, "kvseen")
    kv_dma(a, 3, kvflags)
    q_fetch(a)
    zero_acc(a)
    a("s_waitcnt vmcnt(0) lgkmcnt(0)", "s_barrier")
    stamp(a, "kv1")
    attn_first_frags(a)
    kv_dma2(a, kvflags)
    wo_touch(a)
    if prio:
        a(f"s_cmp_ge_u32 {s(SW)}, 4", "s_cbranch_scc1 L_attB")
        attn_loop(a, "A", False, prio[0]); a("s_setprio 0", "s_branch L_attD")
        a.label("L_attB"); a("s_setprio 1")
        attn_loop(a, "B", False, prio[1]); a("s_setprio 0")
        a.label("L_attD")
    else:
        attn_loop(a, "A", False)
    stamp(a, "loop")
    attn_epilogue(a, "f", True, oflags, after_barrier)
    stamp(a, "epi")

def fallback(a, kvflags, oflags, after_barrier, back):
    a.label("L_fallback")
    a(f"v_subrev_u32 {v(AK1)}, {8*BLK}, {v(AK1)}", f"v_subrev_u32 {v(AK2)}, {8*BLK}, {v(AK2)}", f"v_subrev_u32 {v(AV)}, {8*BLK}, {v(AV)}")
    max_pass(a)
    zero_acc(a)
    attn_first_frags(a)
    attn_loop(a, "S", True)
    attn_epilogue(a, "s", False, oflags, after_barrier)
    a(f"s_branch {back}")

BF, AF, D0, DX = 16, 88, 136, 168
A0, A1, AXT = 2, 3, 4
def wo_dma(a):
    L = v(LANE)
    a(f"v_lshrrev_b32 v2, 3, {L}", f"v_and_b32 v3, 7, {L}", f"v_bfe_u32 v4, {L}, 4, 1", "v_lshlrev_b32 v4, 2, v4", "v_xor_b32 v3, v3, v4", "v_lshlrev_b32 v3, 4, v3",
      f"s_movk_i32 {s(ST+4)}, 1152", f"s_movk_i32 {s(ST+5)}, {18*1152}", f"v_mad_u32_u24 v4, v2, {s(ST+5)}, v3", f"v_mad_u32_u24 v3, v2, {s(ST+4)}, v3")
    a(f"s_lshr_b32 {s(ST+2)}, {s(SW)}, 1", f"s_and_b32 {s(ST+3)}, {s(SW)}, 1", f"s_mul_i32 {s(ST+6)}, {s(ST+2)}, {144*1152}", f"s_lshl_b32 {s(ST)}, {s(SJJ)}, 7", f"s_add_u32 {s(ST+7)}, {s(ST+6)}, {s(ST)}",
      f"s_mul_i32 {s(ST)}, {s(ST+3)}, {8*1152}", f"s_add_u32 {s(ST)}, {s(ST)}, {s(ST+7)}",
      f"s_mul_i32 {s(ST+1)}, {s(ST+2)}, {9*2048}", f"s_lshl_b32 {s(ST+8)}, {s(ST+3)}, 10", f"s_add_u32 {s(ST+1)}, {s(ST+1)}, {s(ST+8)}", f"s_add_u32 {s(ST+1)}, {s(ST+1)}, {WOM}")
    for ff in range(8):
        dma(a, 3, RW, s(ST), ldsaddr_s=ST+1)
        a(f"s_add_u32 {s(ST)}, {s(ST)}, {18*1152}", f"s_add_u32 {s(ST+1)}, {s(ST+1)}, 2048")
    a(f"s_mul_i32 {s(ST)}, {s(ST+3)}, 1152", f"s_add_u32 {s(ST)}, {s(ST)}, {s(ST+7)}", f"s_add_u32 {s(ST)}, {s(ST)}, {16*1152}")
    dma(a, 4, RW, s(ST), ldsaddr_s=ST+1)
    a(f"v_lshrrev_b32 v2, 2, {L}", f"v_and_b32 v3, 3, {L}", "v_lshlrev_b32 v3, 4, v3", "v_and_b32 v4, 7, v2", f"v_mad_u32_u24 v4, v4, {s(ST+5)}, v3", f"v_lshrrev_b32 v5, 5, {L}",
      f"v_mad_u32_u24 v4, v5, {s(ST+4)}, v4", f"v_mad_u32_u24 v3, v2, {s(ST+4)}, v3")
    a(f"s_lshr_b32 {s(ST)}, {s(SJJ)}, 2", f"s_lshl_b32 {s(ST)}, {s(ST)}, 6", f"s_add_u32 {s(ST+6)}, {s(ST+6)}, {s(ST)}", f"s_add_u32 {s(ST+6)}, {s(ST+6)}, 1024",
      f"s_mul_i32 {s(ST)}, {s(ST+3)}, {18*1152}", f"s_add_u32 {s(ST)}, {s(ST)}, {s(ST+6)}",
      f"s_mul_i32 {s(ST+7)}, {s(ST+2)}, {9*1024}", f"s_add_u32 {s(ST+7)}, {s(ST+7)}, {WOX}", f"s_add_u32 {s(ST+1)}, {s(ST+7)}, {s(ST+8)}")
    for n in range(4):
        dma(a, 3, RW, s(ST), ldsaddr_s=ST+1)
        if n < 3: a(f"s_add_u32 {s(ST)}, {s(ST)}, {36*1152}", f"s_add_u32 {s(ST+1)}, {s(ST+1)}, 2048")
    a(f"s_cmp_eq_u32 {s(ST+3)}, 0", f"s_cbranch_scc0 L_wox{a.uid}", f"s_add_u32 {s(ST)}, {s(ST+6)}, {16*1152}", f"s_add_u32 {s(ST+1)}, {s(ST+7)}, 8192")
    dma(a, 4, RW, s(ST), ldsaddr_s=ST+1)
    a.label(f"L_wox{a.uid}"); a.uid += 1

def oproj(a, oflags, wait_o=None):
    L = v(LANE)
    a(f"s_lshr_b32 {s(ST+2)}, {s(SW)}, 1", f"s_and_b32 {s(ST+3)}, {s(SW)}, 1")
    a(f"s_lshl_b32 {s(ST)}, {s(SGRP)}, 2", f"s_add_u32 {s(ST)}, {s(ST)}, {s(ST+2)}", f"s_mul_i32 {s(ST)}, {s(ST)}, 36", f"s_mul_i32 {s(ST+1)}, {s(ST+3)}, 18", f"s_add_u32 {s(ST)}, {s(ST)}, {s(ST+1)}",
      f"s_lshl_b32 {s(ST)}, {s(ST)}, 10", f"v_lshlrev_b32 v15, 4, {L}")
    a(f"s_mov_b32 {s(ST+9)}, {s(ST)}")
    lane_fields(a)
    a("v_and_b32 v11, 1, v9", "v_lshlrev_b32 v11, 5, v11", "v_lshl_add_u32 v11, v7, 4, v11", "v_lshrrev_b32 v12, 1, v9", "v_lshl_add_u32 v11, v12, 3, v11", "v_lshl_add_u32 v12, v6, 3, v8")
    a(f"s_mul_i32 {s(ST)}, {s(ST+3)}, {18*1024}", f"s_add_u32 {s(ST+1)}, {s(ST)}, {WOX}", f"v_lshl_add_u32 v13, v12, 6, v11", f"v_add_u32 {v(AXT)}, {s(ST+1)}, v13",
      f"s_lshl_b32 {s(ST)}, {s(ST)}, 1", f"s_add_u32 {s(ST)}, {s(ST)}, {WOM}", "v_lshl_add_u32 v13, v12, 7, v11", f"v_add_u32 v13, {s(ST)}, v13",
      "v_lshrrev_b32 v12, 1, v8", f"v_lshl_add_u32 {v(A0)}, v12, 6, v13", "v_xor_b32 v12, 1, v12", f"v_lshl_add_u32 {v(A1)}, v12, 6, v13")
    a(f"s_lshl_b32 {s(ST)}, {s(SW)}, 12", f"v_add_u32 v13, {s(ST)}, v15", f"s_xor_b32 {s(ST)}, {s(ST)}, 4096", f"v_add_u32 v14, {s(ST)}, v15")
    a(f"s_and_b32 {s(ST)}, {s(SGRP)}, 15", f"s_lshl_b32 {s(ST)}, {s(ST)}, 2", f"s_add_u32 {s(ST)}, {s(ST)}, {s(ST+2)}", f"s_mul_i32 {s(ST)}, {s(ST)}, {32*2304}", f"s_mul_i32 {s(ST+1)}, {s(SB)}, 1152",
      f"s_add_u32 {s(ST+4)}, {s(ST)}, {s(ST+1)}", f"s_movk_i32 {s(ST+1)}, 2304", "v_lshlrev_b32 v12, 5, v6", f"v_mad_u32_u24 v12, v10, {s(ST+1)}, v12",
      f"s_lshr_b32 {s(ST)}, {s(SJJ)}, 2", f"s_lshl_b32 {s(ST)}, {s(ST)}, 6", f"s_add_u32 {s(ST+5)}, {s(ST+4)}, {s(ST)}", f"s_add_u32 {s(ST+5)}, {s(ST+5)}, 1024",
      f"s_lshl_b32 {s(ST)}, {s(SJJ)}, 7", f"s_add_u32 {s(ST+4)}, {s(ST+4)}, {s(ST)}", f"s_lshl_b32 {s(ST)}, {s(ST+3)}, 6", f"s_add_u32 {s(ST+4)}, {s(ST+4)}, {s(ST)}")
    a(f"s_mul_i32 {s(ST+6)}, {s(SJJ)}, 144", f"s_mul_i32 s3, {s(SW)}, 18", f"s_add_u32 {s(ST+6)}, {s(ST+6)}, s3", f"s_lshl_b32 {s(ST+6)}, {s(ST+6)}, 7", f"s_mul_i32 s3, {s(SGRP)}, {144*1024}", f"s_add_u32 {s(ST+6)}, {s(ST+6)}, s3",
      f"v_lshlrev_b32 v5, 7, {L}")
    wait_o(a)
    stamp(a, "oseen")
    a("s_mov_b32 exec_lo, 0x3ffff", "s_mov_b32 exec_hi, 0", f"buffer_load_dword {v(JUNK)}, v5, {s(RO,4)}, {s(ST+6)} offen{oflags}", "s_mov_b64 exec, -1")
    for fi in range(18):
        a(f"buffer_load_dwordx4 {v(BF+4*fi,4)}, v15, {s(RO,4)}, {s(ST+9)} offen offset:{1024*(fi&3)}{oflags}")
        if fi & 3 == 3: a(f"s_add_u32 {s(ST+9)}, {s(ST+9)}, 4096")
    a(f"s_and_b32 {s(ST)}, {s(SJJ)}, 3", f"s_cmp_eq_u32 {s(ST)}, {s(ST+2)}", "s_cbranch_scc1 L_opx")
    for ext in (0, 1):
        if ext: a.label("L_opx")
        nt = 3 if ext else 2; depth = 2 if ext else 3
        def reads(fi):
            bb = AF + 12*(fi % depth if ext else fi % depth)
            for c in range(2):
                a(f"ds_read_b64_tr_b16 {v(bb+4*c,2)}, {v(A0+c)} offset:{fi*2048}", f"ds_read_b64_tr_b16 {v(bb+4*c+2,2)}, {v(A0+c)} offset:{fi*2048+512}")
            if ext: a(f"ds_read_b64_tr_b16 {v(bb+8,2)}, {v(AXT)} offset:{fi*1024}", f"ds_read_b64_tr_b16 {v(bb+10,2)}, {v(AXT)} offset:{fi*1024+256}")
        for fi in range(depth): reads(fi)
        for fi in range(18):
            bb = AF + 12*(fi % depth)
            later = min(17, fi+depth-1) - fi
            a(f"s_waitcnt vmcnt({17-fi}) lgkmcnt({2*nt*later})")
            for c in range(nt):
                D = D0 + 16*c
                a(f"v_mfma_f32_32x32x16_bf16 {v(D,16)}, {v(bb+4*c,4)}, {v(BF+4*fi,4)}, {'0' if fi == 0 else v(D,16)}")
            if fi + depth < 18: reads(fi+depth)
        stamp(a, "omfma")
        a("s_nop 7", "s_nop 3")
        a(f"s_cmp_eq_u32 {s(ST+3)}, 0", f"s_cbranch_scc0 L_op1{ext}")
        for kh in (0, 1):
            if kh: a.label(f"L_op1{ext}")
            for q in range(4): a(f"ds_write_b128 v13, {v(D0+16*(1-kh)+4*q,4)} offset:{q*1024}")
            if ext and kh == 1:
                for q in range(4): a(f"ds_write_b128 v15, {v(DX+4*q,4)} offset:{32768 + q*1024}")
            a("s_waitcnt lgkmcnt(0)", "s_barrier")
            jobs = [(D0+16*kh, "v14", 0, ST+4)] + ([(DX, "v15", 32768, ST+5)] if (ext and kh == 0) else [])
            for n, (D, ad, of, so) in enumerate(jobs):
                for q in range(4): a(f"ds_read_b128 {v(BF+16*n+4*q,4)}, {ad} offset:{of + q*1024}")
            for n, (D, ad, of, so) in enumerate(jobs):
                for q in range(4):
                    a(f"s_waitcnt lgkmcnt({4*(len(jobs)-1-n) + 3 - q})")
                    for r in range(4): a(f"v_add_f32 {v(D+4*q+r)}, {v(D+4*q+r)}, {v(BF+16*n+4*q+r)}")
                    for r in range(2): a(f"v_cvt_pk_bf16_f32 {v(AF+8*n+2*q+r)}, {v(D+4*q+2*r)}, {v(D+4*q+2*r+1)}")
                    if q & 1: a(f"buffer_store_dwordx4 {v(AF+8*n+2*q-2,4)}, v12, {s(ROUT,4)}, {s(so)} offen offset:{16*(q>>1)}")
            if DIAG: a("s_waitcnt vmcnt(0)")
            stamp_out(a, a.kidx); a("s_endpgm")

def kernel(name, body, nvgpr=256):
    a = Asm(); a.uid = 0
    a.label(name)
    setup(a, f"L_end_{name}")
    body(a)
    a.label(f"L_end_{name}")
    a("s_endpgm")
    a.label("L_code_end")
    lines = []
    import re
    for l in a.lines:
        lines.append(re.sub(r"\bL_(\w+)", lambda m: f"L_{name[:3]}_{m.group(1)}", l))
    a.lines = lines
    n = check(a.lines)
    if n: print(f"{name}: {n} hazards"); sys.exit(1)
    head = f".globl {name}\n.p2align 8\n.type {name},@function\n"
    kd = f""".amdhsa_kernel {name}
  .amdhsa_next_free_vgpr {nvgpr}
  .amdhsa_next_free_sgpr 96
  .amdhsa_accum_offset {(nvgpr+3)//4*4}
  .amdhsa_group_segment_fixed_size 0
  .amdhsa_kernarg_size 104
  .amdhsa_user_sgpr_count 2
  .amdhsa_user_sgpr_kernarg_segment_ptr 1
  .amdhsa_system_sgpr_workgroup_id_x 1
.end_amdhsa_kernel
"""
    return head + a.text(), kd

def publish_o(a):
    wo_dma(a)
    a("s_waitcnt vmcnt(13)", "s_barrier")
    a(f"s_cmp_eq_u32 {s(SW)}, 0", "s_cbranch_scc0 L_noof", f"s_lshl_b32 s3, {s(SGRP)}, 3", f"s_add_u32 s3, s3, {s(SJJ)}", f"s_lshl_b32 {s(ST)}, s3, 7", f"s_add_u32 {s(ST)}, {s(ST)}, {FO}")
    flag_store(a, ST)
    a.label("L_noof")
def wait_o(a):
    a(f"s_cmp_eq_u32 {s(SW)}, 0", "s_cbranch_scc0 L_oseen", f"s_lshl_b32 {s(ST+7)}, {s(SGRP)}, 10", f"s_add_u32 {s(ST+7)}, {s(ST+7)}, {FO}",
      "v_mov_b32 v201, v11", "v_mov_b32 v202, v12", "v_mov_b32 v203, v13")
    poll(a, "o", ST+7, 1, mask=0xff)
    a("v_mov_b32 v11, v201", "v_mov_b32 v12, v202", "v_mov_b32 v13, v203")
    a.label("L_oseen")
    a("s_waitcnt vmcnt(0)", "s_barrier")

def build(mode, prio=None):
    def k1(a):
        a.kidx = 0
        prologue(a); attention(a, " sc1", " sc1", wait_kv=wait_kv, prio=prio); a.label("L_fin")
        publish_o(a); oproj(a, " sc1", wait_o); fallback(a, " sc1", " sc1", None, "L_fin")
    ks = [(NAME + "_kernel", k1)]
    hdr = open(os.path.join(os.path.dirname(os.path.abspath(__file__)), "header.txt")).read()
    out = hdr
    out += f"; @launch grid=(256,1,1) block=(512,1,1) lds={LDS_TOTAL}\n"
    out += '.amdgcn_target "amdgcn-amd-amdhsa--gfx950"\n.text\n'
    kds = ""
    for n, f in ks:
        t, kd = kernel(n, f)
        out += t; kds += ".p2align 6\n" + kd
    out += '.section .rodata,"a"\n' + kds
    return out

if __name__ == "__main__":
    if "diag" in sys.argv: DIAG = 1; sys.argv.remove("diag")
    if "diag2" in sys.argv: DIAG = 2; sys.argv.remove("diag2")
    mode = sys.argv[1] if len(sys.argv) > 1 else "one"
    dst = sys.argv[2] if len(sys.argv) > 2 else f"cdna_kernels/{NAME}.s"
    open(dst, "w").write(build(mode))
    print("wrote", dst)
```

```python
import sys, os, struct, math
from asmlib import Asm, v, s, check

NAME = "concat_heads__grouped_kv_mqa__grouped_kv_mqa__prompt"
VH = 304
STEPB = 1024 + 4*VH
BLK = 512 + 4*STEPB
KVB = 16*BLK
KVSTRIDE = 0x40000
OOFF = 0x100000
OBYTES = 2*2048*576*2
LDS_TOTAL = 163840
HB = 8*BLK
XKB = 12288; SLOT = 22528; SLOTA = [49152, 91136, 113664, 136192]; QS = 296; QX = LDS_TOTAL - 64*QS
WKVP = [HB + 6144, 0, 6144, HB]
SEENA = 71680
FOFF = 0x80000
FKV, FO, FEP = 0, 0x8000, 0x10000
TAGC = 0x9E3779B1
SPIN = 1 << 20
WOX = 36864
SCR0, SCR1 = 55296, 131072
SCALE = 18 ** -0.5 * math.log2(math.e)
def fbits(x): return struct.unpack("<I", struct.pack("<f", x))[0]
RX, RW, RKW, RKV, RO, ROUT, RDBG = 4, 8, 12, 16, 20, 24, 28
SB, SQB, SHG, SW = 32, 33, 34, 35
ST = 36
SEX = 48
SIT = 50; SFLAG = 51; SJJ = 52; SGRP = 53
PWO = 54
STAG = 74; SJ = 75; SWB, SXB, SLB, EXM = 56, 57, 58, 46
JUNK = 204
LANE = 1

DIAG = False
STAMP0 = 76
TIMER = "s_memtime" if os.environ.get("CLK") else "s_memrealtime"
STAMPS = {"start": 0, "issued": 1, "b0": 2, "qdone": 3, "kv1": 4, "loop": 5, "epi": 6, "oseen": 7, "omfma": 8}
if os.environ.get("STAMPS"):
    STAMPS = {"start": 0}
    for i, n in enumerate(os.environ["STAMPS"].split(",")): STAMPS[n] = i + 1
def stamp(a, n):
    if DIAG and n in STAMPS: a(f"{TIMER} {s(STAMP0 + 2*STAMPS[n], 2)}")
def stamp_out(a, kidx):
    if not DIAG: return
    a(f"{TIMER} s[94:95]", "s_waitcnt lgkmcnt(0)", "s_mov_b64 exec, -1")
    if DIAG == 2:
        srd(a, RDBG, 68, 256)
        a(f"v_lshlrev_b32 v250, 2, {v(LANE)}", f"s_not_b32 s3, {s(STAMP0)}", "v_mov_b32 v251, s3")
        for i in range(10): a(f"v_writelane_b32 v251, {s(STAMP0 + 2*i)}, {i+1}")
        for n, i in enumerate((2, 3, 4, 5, 7)): a(f"s_not_b32 s3, {s(STAMP0 + 2*i)}", f"v_writelane_b32 v251, s3, {11+n}")
        a(f"s_and_b32 s3, {s(SW)}, 3", "s_cmp_eq_u32 s3, 0", f"s_cbranch_scc0 L_dg{a.uid}", "s_mov_b32 exec_lo, 0xffff", "s_mov_b32 exec_hi, 0", f"buffer_atomic_umax v251, v250, {s(RDBG,4)}, 0 offen sc1")
        a.label(f"L_dg{a.uid}"); a.uid += 1
        return
    a(f"s_add_u32 s72, s70, {0x800000 + kidx*0x40000}", "s_addc_u32 s73, s71, 0")
    srd(a, RDBG, 72, 0x40000)
    a("s_lshl_b32 s3, s2, 3", f"s_add_u32 s3, s3, {s(SW)}", "s_lshl_b32 s3, s3, 6", "v_mov_b32 v250, 0")
    for i in range(10):
        a(f"v_mov_b32 v251, {s(STAMP0 + 2*i)}", f"buffer_store_dword v251, v250, {s(RDBG,4)}, s3 offen offset:{4*i}")

def srd(a, r, ptr, size):
    a(f"s_mov_b32 {s(r)}, {s(ptr)}", f"s_mov_b32 {s(r+1)}, {s(ptr+1)}", f"s_mov_b32 {s(r+2)}, {size}", f"s_mov_b32 {s(r+3)}, 0x20000")

CODE_LINES = 6
def setup(a, endlabel):
    a(f"s_cmp_ge_u32 s2, 256", f"s_cbranch_scc1 {endlabel}")
    if DIAG:
        for i in range(1, 10): a(f"s_mov_b32 {s(STAMP0+2*i)}, 0")
    stamp(a, "start")
    a(f"s_and_b32 {s(SB)}, s2, 1", f"s_mul_i32 s3, {s(SB)}, 40", "s_add_u32 s56, s0, s3", "s_addc_u32 s57, s1, 0")
    a("s_load_dwordx4 s[60:63], s[56:57], 0", "s_load_dwordx2 s[70:71], s[0:1], 96", "s_load_dwordx4 s[64:67], s[56:57], 16", f"s_load_dwordx2 {s(PWO,2)}, s[56:57], 32",
      "s_load_dwordx2 s[72:73], s[0:1], 80")
    if DIAG: a("s_load_dwordx2 s[68:69], s[0:1], 88")
    a(f"v_lshrrev_b32 v2, 6, v0", f"v_and_b32 {v(LANE)}, 63, v0")
    if CODE_LINES:
        a(f"s_getpc_b64 {s(ROUT,2)}")
        a.label("L_pc")
        a(f"s_mov_b32 {s(ROUT+2)}, L_code_end-L_pc", f"s_mov_b32 {s(ROUT+3)}, 0x20000", "s_lshr_b32 s3, s2, 3", f"s_mul_i32 s3, s3, {CODE_LINES*128}", "v_lshlrev_b32 v3, 7, v0",
          f"v_cmp_gt_u32 vcc, {CODE_LINES}, v0", f"v_readfirstlane_b32 {s(SW)}, v2", f"s_and_saveexec_b64 {s(SEX,2)}, vcc", "s_cbranch_execz L_nocode",
          f"buffer_load_dword {v(JUNK+1)}, v3, {s(ROUT,4)}, s3 offen")
        a.label("L_nocode")
        a("s_mov_b64 exec, -1")
    else: a("s_nop 0", f"v_readfirstlane_b32 {s(SW)}, v2")
    a(f"s_bfe_u32 s3, s2, 0x20001", f"s_lshl_b32 s3, s3, 3", f"s_lshr_b32 {s(SQB)}, s2, 5", f"s_add_u32 {s(SQB)}, {s(SQB)}, s3", f"s_bfe_u32 {s(SHG)}, s2, 0x20003")

def setup_srd_early(a):
    a("s_waitcnt lgkmcnt(0)")
    stamp(a, "args")
    srd(a, RX, 60, 2048*1152)
    a(f"s_add_u32 {s(RDBG)}, s70, {FOFF}", f"s_addc_u32 {s(RDBG+1)}, s71, 0", f"s_mov_b32 {s(RDBG+2)}, 0x10100", f"s_mov_b32 {s(RDBG+3)}, 0x20000")
def setup_srd_mid(a):
    srd(a, RW, 62, 576*1152)
    a(f"s_bitcmp1_b32 {s(SHG)}, 0", f"s_cselect_b64 {s(RKW,2)}, s[66:67], s[64:65]", f"s_mov_b32 {s(RKW+2)}, {576*36}", f"s_mov_b32 {s(RKW+3)}, 0x20000")
def setup_late(a):
    a(f"s_and_b32 s3, {s(SQB)}, 1", f"s_lshl_b32 s3, s3, 2", f"s_add_u32 {s(SJJ)}, s3, {s(SHG)}")
    a(f"s_lshr_b32 s3, {s(SQB)}, 1", f"s_lshl_b32 {s(SGRP)}, {s(SB)}, 4", f"s_add_u32 {s(SGRP)}, {s(SGRP)}, s3")
    a(f"s_lshl_b32 s3, {s(SB)}, 18", f"s_add_u32 {s(RKV)}, s70, s3", f"s_addc_u32 {s(RKV+1)}, s71, 0", f"s_mov_b32 {s(RKV+2)}, {KVB}", f"s_mov_b32 {s(RKV+3)}, 0x20000")
    a(f"s_add_u32 {s(RO)}, s70, {OOFF}", f"s_addc_u32 {s(RO+1)}, s71, 0", f"s_mov_b32 {s(RO+2)}, {OBYTES}", f"s_mov_b32 {s(RO+3)}, 0x20000")
    srd(a, ROUT, 72, OBYTES)

def dma(a, vaddr, r, soff, ldsaddr_s=None, ldsaddr=None, flags=""):
    if ldsaddr_s is not None: a(f"s_mov_b32 m0, {s(ldsaddr_s)}")
    else: a(f"s_mov_b32 m0, {ldsaddr}")
    a("s_nop 0", f"buffer_load_dwordx4 {v(vaddr)}, {s(r,4)}, {soff} offen{flags} lds")

ACA, ACB, ACC2 = 16, 32, 48
FR = [64, 112]
XF, WF = 64, 80
X16, W16 = [96, 112], [104, 120]
AX, AXB, AW, AX16, AX16T, AWR, AWK, APT, DW, DX3, TAGV = 160, 164, 168, 169, 171, 173, 174, 175, 176, 179, 180
AXH, AWH, AWRH, AXK = 184, 188, 189, 192

def swz_row(a, dst, row, sel, tmp):
    a(f"v_bfe_u32 {v(tmp)}, {v(row)}, 1, 3", f"v_xor_b32 {v(tmp)}, {v(tmp)}, {v(sel)}", f"v_lshlrev_b32 {v(tmp)}, 4, {v(tmp)}",
      f"v_lshl_add_u32 {v(dst)}, {v(row)}, 7, {v(tmp)}")

def wrap9(a, r):
    a(f"s_cmp_ge_u32 {s(r)}, 9", f"s_cselect_b32 s3, 9, 0", f"s_sub_u32 {s(r)}, {s(r)}, s3")

def chunk_dma(a, n):
    sl = SLOTA[n & 3]
    ld = lambda vr, R, so: f"buffer_load_dwordx4 {v(vr)}, {s(R,4)}, {s(so)} offen lds"
    a(f"s_mul_i32 {s(ST+8)}, {s(SJ)}, {64*1152}", f"s_add_u32 m0, {s(SLB)}, {sl}", f"s_add_u32 {s(ST+8)}, {s(ST+8)}, {s(SWB)}", ld(DW, RW, ST+8))
    a(f"s_add_u32 m0, {s(SLB)}, {sl + 4096}", f"s_add_u32 {s(ST+9)}, {s(ST+8)}, {32*1152}", ld(DW+1, RW, ST+8))
    a(f"s_add_u32 m0, {s(SLB+1)}, {sl}", f"s_mov_b64 exec, {s(EXM,2)}", ld(DW+2, RW, ST+8), "s_mov_b64 exec, -1")
    a(f"s_add_u32 m0, {s(SLB)}, {sl + 9216}", f"s_lshl_b32 {s(ST+8)}, {s(SJ)}, 7", ld(DW, RW, ST+9))
    a(f"s_add_u32 m0, {s(SLB)}, {sl + 13312}", f"s_add_u32 {s(ST+8)}, {s(ST+8)}, {s(SXB)}", ld(DW+1, RW, ST+9))
    a(f"s_add_u32 m0, {s(SLB)}, {sl + 18432}", f"s_add_u32 {s(SJ)}, {s(SJ)}, 1", ld(DX3, RX, ST+8))
    a(f"s_cmp_ge_u32 {s(SJ)}, 9", f"s_cselect_b32 {s(SJ)}, 0, {s(SJ)}")

def w_pattern(a, dst, base_s):
    a(f"v_add_u32 v3, {s(base_s)}, {v(LANE)}", f"v_mul_u32_u24 v4, 3641, v3", "v_lshrrev_b32 v4, 16, v4", "v_mad_i32_i24 v3, v4, -16, v3", "v_mad_i32_i24 v3, v4, -2, v3",
      "v_bfe_u32 v5, v4, 1, 2", "v_and_or_b32 v5, v4, 56, v5", "v_and_b32 v4, 1, v4", "v_lshl_or_b32 v5, v4, 2, v5", "v_lshlrev_b32 v3, 4, v3", f"v_mad_u32_u24 {v(dst)}, v5, {s(ST+7)}, v3")

def x_pattern(a, dst, par):
    L = v(LANE)
    a(f"v_lshrrev_b32 v3, 3, {L}", f"v_lshrrev_b32 v4, 4, {L}", f"v_xor_b32 v4, {par}, v4", f"v_xor_b32 v4, v4, {L}", "v_and_b32 v4, 7, v4", "v_lshlrev_b32 v4, 4, v4", f"v_mad_u32_u24 {v(dst)}, v3, {s(ST+7)}, v4")

def rotation(a):
    a(f"s_and_b32 {s(SJ)}, {s(SQB)}, 7", f"s_and_b32 s3, {s(SHG)}, 1", "s_lshl_b32 s3, s3, 2", f"s_add_u32 {s(SJ)}, {s(SJ)}, s3"); wrap9(a, SJ)
    if os.environ.get("NOROT"): a(f"s_mov_b32 {s(SJ)}, 0")
    a(f"s_movk_i32 {s(ST+7)}, 1152", f"s_lshl_b32 {s(ST)}, {s(SB)}, 7", f"s_add_u32 {s(ST)}, {s(ST)}, {FEP}", f"v_mov_b32 {v(TAGV)}, 0")

def issue_role0(a):
    L = v(LANE)
    a("s_setprio 1")
    rotation(a)
    x_pattern(a, 14, "0"); a("v_xor_b32 v15, 64, v14")
    for i in range(3):
        a(f"v_add_u32 v3, {64*i}, {L}" if i else f"v_mov_b32 v3, {L}")
        a("v_mul_u32_u24 v4, 0x5556, v3", "v_lshrrev_b32 v4, 16, v4", "v_lshlrev_b32 v3, 4, v3", f"v_mad_i32_i24 {v(11+i)}, v4, -12, v3")
    a(f"s_lshr_b32 s3, {s(SHG)}, 1", f"s_lshl_b32 {s(ST+1)}, {s(SQB)}, 1", f"s_add_u32 {s(ST+1)}, {s(ST+1)}, s3", f"s_mul_i32 {s(ST+1)}, {s(ST+1)}, {32*1152}",
      f"s_add_u32 s3, {s(SW)}, 3", f"s_and_b32 {s(ST+5)}, s3, 1", f"s_mul_i32 {s(ST+5)}, {s(ST+5)}, 6144", "s_bitcmp1_b32 s3, 1", f"s_cselect_b32 s3, {HB}, 0",
      f"s_add_u32 {s(ST+5)}, {s(ST+5)}, s3", f"s_lshl_b32 {s(ST+6)}, {s(SW)}, 12")
    if TOUCH:
        a(f"s_lshl_b32 {s(ST+2)}, {s(SQB)}, 2", f"s_add_u32 {s(ST+2)}, {s(ST+2)}, {s(SHG)}", f"s_lshl_b32 {s(ST+2)}, {s(ST+2)}, 2", f"s_add_u32 {s(ST+2)}, {s(ST+2)}, {s(SW)}", f"s_mul_i32 {s(ST+2)}, {s(ST+2)}, {36*128}", f"v_lshlrev_b32 v2, 7, {L}")
    setup_srd_early(a)
    if TOUCH: a("s_mov_b32 exec_hi, 0xf", f"buffer_load_dword {v(JUNK)}, v2, {s(RX,4)}, {s(ST+2)} offen", "s_mov_b32 exec_hi, -1")
    setup_srd_mid(a)
    def pos(dn, xl, wl):
        a(f"s_add_u32 {s(ST+2)}, {s(SJ)}, {dn}"); wrap9(a, ST+2)
        a(f"s_lshl_b32 {s(ST+3)}, {s(ST+2)}, 7", f"s_add_u32 {s(ST+3)}, {s(ST+3)}, {s(ST+1)}", f"s_mul_i32 {s(ST+4)}, {s(ST+2)}, {64*36}")
        for g in range(4):
            a(f"s_add_u32 m0, {s(ST+6)}, {XKB + xl + g*1024}", f"s_add_u32 s3, {s(ST+3)}, {g*8*1152}", f"buffer_load_dwordx4 {v(14 + (g & 1))}, {s(RX,4)}, s3 offen lds")
        for i in range(3):
            a(f"s_add_u32 m0, {s(ST+5)}, {wl + i*1024}", "s_nop 0", f"buffer_load_dwordx4 {v(11+i)}, {s(RKW,4)}, {s(ST+4)} offen lds")
    a(f"buffer_load_dword {v(TAGV)}, {v(TAGV)}, {s(RDBG,4)}, {s(ST)} offen sc1")
    a(f"s_cmp_eq_u32 {s(SW)}, 0", "s_cbranch_scc0 L_nop8")
    pos(8, 8*4096, 6144)
    a.label("L_nop8")
    a(f"s_add_u32 {s(SJ)}, {s(SJ)}, {s(SW)}"); wrap9(a, SJ)
    pos(0, 0, 0); pos(4, 4*4096, 3072)
    a("s_setprio 0")

TOUCH = int(os.environ.get("TOUCH", 0)); PRE = int(os.environ.get("PRE", 1))
def issue_role1(a):
    rotation(a)
    if TOUCH:
        a(f"s_lshr_b32 {s(ST+2)}, s2, 3", f"s_mul_i32 {s(ST+2)}, {s(ST+2)}, 162", f"s_and_b32 s3, {s(SW)}, 3", "s_mul_i32 s3, s3, 41", f"s_add_u32 {s(ST+2)}, {s(ST+2)}, s3", f"s_lshl_b32 {s(ST+2)}, {s(ST+2)}, 7", f"v_lshlrev_b32 v2, 7, {v(LANE)}")
        setup_srd_early(a); setup_srd_mid(a)
        a("s_mov_b32 exec_hi, 0x1ff", f"buffer_load_dword {v(JUNK)}, v2, {s(RW,4)}, {s(ST+2)} offen", "s_mov_b32 exec_hi, -1")
    a(f"s_and_b32 {s(ST+6)}, {s(SW)}, 3", f"s_and_b32 {s(ST+5)}, {s(SW)}, 1", f"s_lshl_b32 {s(ST+4)}, {s(ST+5)}, 2")
    x_pattern(a, DX3, s(ST+4))
    a(f"s_lshr_b32 s3, {s(SHG)}, 1", "s_xor_b32 s3, s3, 1", f"s_lshl_b32 {s(ST+1)}, {s(SQB)}, 1", f"s_add_u32 {s(ST+1)}, {s(ST+1)}, s3", f"s_lshl_b32 {s(ST+1)}, {s(ST+1)}, 2",
      f"s_add_u32 {s(ST+1)}, {s(ST+1)}, {s(ST+6)}", f"s_lshl_b32 {s(ST+2)}, {s(ST+6)}, 6")
    w_pattern(a, DW, ST+2)
    a(f"s_add_u32 {s(ST+2)}, {s(ST+2)}, 256")
    w_pattern(a, DW+1, ST+2)
    a(f"s_mul_i32 {s(ST+2)}, {s(ST+5)}, 576", f"s_add_u32 {s(ST+2)}, {s(ST+2)}, 512")
    w_pattern(a, DW+2, ST+2)
    if not TOUCH: setup_srd_early(a); setup_srd_mid(a)
    a(f"s_mul_i32 {s(SXB)}, {s(ST+1)}, {8*1152}", f"s_mul_i32 {s(SWB)}, {s(SHG)}, 288", f"s_lshl_b32 {s(SLB)}, {s(ST+6)}, 10", f"s_lshl_b32 {s(SLB+1)}, {s(ST+2)}, 4",
      f"s_cmp_ge_u32 {s(SW)}, 6", f"s_cselect_b64 {s(EXM,2)}, 1, -1")
    a(f"buffer_load_dword {v(TAGV)}, {v(TAGV)}, {s(RDBG,4)}, {s(ST)} offen sc1")
    for n in range(PRE): chunk_dma(a, n)

def lane_fields(a):
    L = v(LANE)
    a(f"v_lshrrev_b32 v6, 5, {L}", f"v_bfe_u32 v7, {L}, 4, 1", f"v_bfe_u32 v8, {L}, 2, 2", f"v_and_b32 v9, 3, {L}", f"v_and_b32 v10, 31, {L}")

def addr_main(a):
    a(f"s_lshl_b32 {s(ST)}, {s(SW)}, 12")
    for r in range(4):
        a(f"v_add_u32 v11, {2*r}, v6")
        swz_row(a, AX+r, 10, 11, 12)
        a(f"v_add_u32 {v(AXK+r)}, {s(ST)}, {v(AX+r)}")
    a("v_lshlrev_b32 v11, 3, v9", "v_and_b32 v12, 1, v9", "v_lshlrev_b32 v12, 4, v12", "v_lshrrev_b32 v13, 1, v9", "v_lshl_add_u32 v12, v13, 3, v12")
    a(f"s_bitcmp1_b32 {s(SHG)}, 0", "s_cselect_b64 vcc, -1, 0", "v_cndmask_b32 v11, v12, v11, vcc")
    a("v_cmp_eq_u32 vcc, 1, v7", "v_lshl_add_u32 v12, v6, 3, v8", f"v_lshl_add_u32 {v(APT)}, {v(LANE)}, 4, {s(ST+5)}", "v_cndmask_b32 v11, v11, 32, vcc")
    a("v_mad_u32_u24 v11, v12, 48, v11", f"v_add_u32 {v(AWK)}, {s(ST+5)}, v11")
    for r in range(16): a(f"v_mov_b32 {v(ACA+r)}, 0")
def addr_main2(a):
    for r in range(4): a(f"v_add_u32 {v(AXB+r)}, {SLOTA[0] + 18432}, {v(AX+r)}", f"v_add_u32 {v(AXH+r)}, {SLOTA[3] + 18432}, {v(AX+r)}")
    a(f"s_lshl_b32 s3, {s(SW)}, 6", f"s_add_u32 s3, s3, {SLOTA[0]}", "v_lshl_add_u32 v11, v7, 5, s3", "v_lshl_add_u32 v11, v9, 3, v11",
      "v_lshl_add_u32 v12, v6, 2, v8", f"s_movk_i32 s3, 576", f"v_mad_u32_u24 {v(AW)}, v12, s3, v11", f"v_add_u32 {v(AWH)}, {SLOTA[2] - SLOTA[0]}, {v(AW)}")

def addr_rem(a):
    L = v(LANE)
    a(f"v_and_b32 v11, 15, {L}", f"s_and_b32 {s(ST)}, {s(SW)}, 1", f"s_lshl_b32 {s(ST)}, {s(ST)}, 4", f"v_add_u32 v11, {s(ST)}, v11", f"v_lshrrev_b32 v13, 4, {L}")
    for s2 in range(2):
        a(f"v_add_u32 v14, {4*s2}, v13")
        swz_row(a, AX16+s2, 11, 14, 12)
    a("v_lshl_add_u32 v12, v13, 2, v8", "v_lshlrev_b32 v14, 3, v9", f"v_add_u32 v14, {SLOTA[0] + 256}, v14", f"s_movk_i32 s3, 576", f"v_mad_u32_u24 {v(AWR)}, v12, s3, v14",
      f"v_add_u32 {v(AWRH)}, {SLOTA[2] - SLOTA[0]}, {v(AWR)}")

def kv_compute(a):
    def block(typ, xl, wl, cnt, F):
        a(f"s_waitcnt vmcnt({cnt})")
        for st in range(4):
            a(f"ds_read_b128 {v(F+XF+4*st,4)}, {v(AXK+st)} offset:{XKB + xl}",
              f"ds_read_b64_tr_b16 {v(F+WF+4*st,2)}, {v(AWK)} offset:{wl + st*768}", f"ds_read_b64_tr_b16 {v(F+WF+4*st+2,2)}, {v(AWK)} offset:{wl + st*768 + 192}")
        for st in range(4):
            A, B = (F+WF+4*st, F+XF+4*st) if typ == "K" else (F+XF+4*st, F+WF+4*st)
            a(f"s_waitcnt lgkmcnt({9-3*st})", f"v_mfma_f32_32x32x16_bf16 {v(ACA,16)}, {v(A,4)}, {v(B,4)}, {v(ACA,16)}")
    for typ in ("K", "V"):
        if typ == "K": a(f"s_bitcmp1_b32 {s(SHG)}, 0", "s_cbranch_scc1 L_kvV")
        else: a.label("L_kvV")
        a(f"s_cmp_eq_u32 {s(SW)}, 0", f"s_cbranch_scc0 L_kv2{typ}")
        block(typ, 8*4096, 6144, 14, 64)
        a.label(f"L_kv2{typ}")
        block(typ, 0, 0, 7, 0); block(typ, 4*4096, 3072, 0, 32)
        if typ == "K": a("s_branch L_kvD")
    a.label("L_kvD")

def kv_finalize(a):
    L = v(LANE)
    a(f"s_lshl_b32 {s(ST)}, {s(SW)}, 10", f"v_lshl_add_u32 v11, {L}, 4, {s(ST)}", f"v_add_u32 v12, {HB}, v11")
    for p in range(4): a(f"ds_read_b128 {v(FR[1]+4*p,4)}, {'v12' if WKVP[p] >= HB else 'v11'} offset:{WKVP[p] % HB}")
    T = FR[1]
    a(f"s_lshr_b32 {s(ST)}, {s(SHG)}, 1", f"s_lshl_b32 {s(ST+1)}, {s(SQB)}, 1", f"s_add_u32 {s(ST)}, {s(ST)}, {s(ST+1)}",
      f"s_lshr_b32 {s(ST+1)}, {s(ST)}, 2", f"s_mul_i32 {s(ST+1)}, {s(ST+1)}, {BLK}", f"s_and_b32 {s(ST)}, {s(ST)}, 3",
      f"s_mul_i32 {s(ST+3)}, {s(ST)}, {STEPB}", f"s_add_u32 {s(ST+3)}, {s(ST+3)}, {s(ST+1)}", f"s_add_u32 {s(ST+3)}, {s(ST+3)}, 512",
      f"s_and_b32 {s(ST+4)}, {s(SW)}, 1", f"s_lshl_b32 {s(ST+4)}, {s(ST+4)}, 3", f"s_add_u32 {s(ST+3)}, {s(ST+3)}, {s(ST+4)}")
    a(f"s_bitcmp1_b32 {s(SHG)}, 0", "s_cbranch_scc1 L_kvFV")
    def red():
        a("s_waitcnt lgkmcnt(2)")
        for r in range(4): a(f"v_add_f32 {v(T+r)}, {v(T+r)}, {v(T+4+r)}")
        a("s_waitcnt lgkmcnt(0)")
        for r in range(4): a(f"v_add_f32 {v(T+8+r)}, {v(T+8+r)}, {v(T+12+r)}")
        for r in range(4): a(f"v_add_f32 {v(T+r)}, {v(T+r)}, {v(T+8+r)}")
    a("v_and_b32 v11, 0x13, v10", "v_bfe_u32 v12, v10, 2, 1", "v_lshl_or_b32 v11, v12, 3, v11", "v_bfe_u32 v12, v10, 3, 1", "v_lshl_or_b32 v11, v12, 2, v11", f"s_mov_b32 {s(ST+4)}, {fbits(SCALE)}")
    red()
    for r in range(4): a(f"v_mul_f32 {v(T+r)}, {s(ST+4)}, {v(T+r)}")
    for r in range(2): a(f"v_cvt_pk_bf16_f32 {v(T+4+r)}, {v(T+2*r)}, {v(T+2*r+1)}")
    a(f"s_cmp_ge_u32 {s(SW)}, 2", "s_cbranch_scc1 L_kvK2")
    a("v_lshl_add_u32 v11, v6, 5, v11", "v_lshlrev_b32 v11, 4, v11", f"buffer_store_dwordx2 {v(T+4,2)}, v11, {s(RKV,4)}, {s(ST+3)} offen sc1", "s_branch L_kvF")
    a.label("L_kvK2")
    a(f"s_cmp_eq_u32 {s(SW)}, 3", "s_cbranch_scc1 L_kvF", "v_lshlrev_b32 v11, 4, v11", f"s_lshl_b32 {s(ST)}, {s(ST)}, 2", f"s_add_u32 {s(ST+1)}, {s(ST+1)}, {s(ST)}",
      "s_mov_b32 exec_hi, 0", f"buffer_store_dword {v(T+4)}, v11, {s(RKV,4)}, {s(ST+1)} offen sc1", "s_mov_b64 exec, -1", "s_branch L_kvF")
    a.label("L_kvFV")
    a("v_cmp_eq_u32 vcc, 18, v10", "v_mov_b32 v12, 0x3f803f80", f"s_movk_i32 {s(ST)}, {VH}", "v_lshlrev_b32 v11, 4, v10", f"v_mad_u32_u24 v11, v6, {s(ST)}, v11",
      f"s_lshr_b32 {s(ST+2)}, {s(SW)}, 1", f"s_mul_i32 {s(ST+2)}, {s(ST+2)}, {2*VH}", f"s_add_u32 {s(ST+3)}, {s(ST+3)}, {s(ST+2)}")
    red()
    for r in range(2): a(f"v_cvt_pk_bf16_f32 {v(T+4+r)}, {v(T+2*r)}, {v(T+2*r+1)}")
    for r in range(2): a(f"v_cndmask_b32 {v(T+4+r)}, {v(T+4+r)}, v12, vcc")
    a("s_mov_b32 exec_lo, 0x7ffff", "s_mov_b32 exec_hi, 0x7ffff", f"buffer_store_dwordx2 {v(T+4,2)}, v11, {s(RKV,4)}, {s(ST+3)} offen offset:1024 sc1", "s_mov_b64 exec, -1")
    a.label("L_kvF")

def main_reads(n, st):
    F = FR[n & 1] + 12*st; sl = (n & 3)
    aw, o = (AW, SLOTA[sl] - SLOTA[0] + st*4608) if sl < 2 else (AWH, SLOTA[sl] - SLOTA[2] + st*4608)
    return [f"ds_read_b64_tr_b16 {v(F+8,2)}, {v(aw)} offset:{o}", f"ds_read_b64_tr_b16 {v(F+10,2)}, {v(aw)} offset:{o+288}",
            f"ds_read_b128 {v(F,4)}, {v(AX+st)} offset:{XKB + n*4096}",
            f"ds_read_b128 {v(F+4,4)}, {v(AXB+st)} offset:{SLOTA[sl] - SLOTA[0]}" if sl < 3 else f"ds_read_b128 {v(F+4,4)}, {v(AXH+st)}"]
def main_mfma(n, st):
    F = FR[n & 1] + 12*st; z = (n == 0 and st == 0)
    return [f"v_mfma_f32_32x32x16_bf16 {v(ACA,16)}, {v(F+8,4)}, {v(F,4)}, {'0' if z else v(ACA,16)}", f"v_mfma_f32_32x32x16_bf16 {v(ACB,16)}, {v(F+8,4)}, {v(F+4,4)}, {'0' if z else v(ACB,16)}"]
def rem_reads(a, n):
    sl = n & 3
    a(f"s_mov_b32 s3, {XKB + n*4096}", f"s_cmp_ge_u32 {s(SW)}, 6", f"s_cselect_b32 s3, {SLOTA[sl] + 18432}, s3")
    for s2 in range(2): a(f"v_add_u32 {v(AX16T+s2)}, s3, {v(AX16+s2)}")
    aw, o = (AWR, SLOTA[sl] - SLOTA[0]) if sl < 2 else (AWRH, SLOTA[sl] - SLOTA[2])
    for s2 in range(2):
        a(f"ds_read_b128 {v(X16[n&1]+4*s2,4)}, {v(AX16T+s2)}",
          f"ds_read_b64_tr_b16 {v(W16[n&1]+4*s2,2)}, {v(aw)} offset:{o + s2*9216}", f"ds_read_b64_tr_b16 {v(W16[n&1]+4*s2+2,2)}, {v(aw)} offset:{o + s2*9216 + 288}")
def rem_mfma(a, n):
    for s2 in range(2):
        a(f"v_mfma_f32_16x16x32_bf16 {v(ACC2,4)}, {v(W16[n&1]+4*s2,4)}, {v(X16[n&1]+4*s2,4)}, {'0' if (n == 0 and s2 == 0) else v(ACC2,4)}")

def flag_store(a, base_s):
    a(f"v_mov_b32 v11, {s(STAG)}", "v_mov_b32 v12, 0", "s_mov_b32 exec_lo, 1", "s_mov_b32 exec_hi, 0", f"buffer_store_dword v11, v12, {s(RDBG,4)}, {s(base_s)} offen sc1", "s_mov_b64 exec, -1")

def poll(a, uid, base_s, nloads, mask=None):
    a(f"v_lshlrev_b32 v11, 7, {v(LANE)}", "v_add_u32 v12, 0x2000, v11", f"s_mov_b32 {s(SIT)}, 0")
    if mask: a(f"s_mov_b32 exec_lo, {mask}", "s_mov_b32 exec_hi, 0")
    a.label(f"L_poll{uid}")
    for i in range(nloads): a(f"buffer_load_dword {v(13+i)}, {v(11+i)}, {s(RDBG,4)}, {s(base_s)} offen sc1")
    a(f"s_add_u32 {s(SIT)}, {s(SIT)}, 1", f"s_cmp_gt_u32 {s(SIT)}, {SPIN}", f"s_cbranch_scc1 L_polld{uid}", "s_waitcnt vmcnt(0)")
    a(f"v_cmp_ne_u32 vcc, {s(STAG)}, v13")
    if nloads == 2: a(f"v_cmp_ne_u32 {s(SEX,2)}, {s(STAG)}, v14", "s_nop 0", f"s_or_b64 vcc, vcc, {s(SEX,2)}")
    else: a("s_nop 4")
    a(f"s_cbranch_vccnz L_poll{uid}")
    a.label(f"L_polld{uid}")
    a("s_waitcnt vmcnt(0)", "s_mov_b64 exec, -1")

KVFLAG_AT = int(os.environ.get("KVF", 2))
SEENV = 196
def seen_to_sgpr(a):
    a(f"v_and_b32 {v(SEENV)}, {v(SEENV)}, {v(SEENV+1)}", f"v_and_b32 {v(SEENV+2)}, {v(SEENV+2)}, {v(SEENV+3)}", f"v_and_b32 {v(SEENV)}, {v(SEENV)}, {v(SEENV+2)}", "s_nop 0",
      f"v_readfirstlane_b32 {s(SFLAG)}, {v(SEENV)}", "s_nop 0")
def kv_stage1(a):
    a(f"v_lshlrev_b32 v15, 4, {v(LANE)}")
    for hh in range(2):
        for i in range(3): a(f"s_add_u32 s3, {s(SLB)}, {hh*HB + i*4096}", "s_mov_b32 m0, s3", "s_nop 0", f"buffer_load_dwordx4 v15, {s(RKV,4)}, s3 offen sc1 lds")

def prologue(a):
    a(f"s_cmp_ge_u32 {s(SW)}, 4", "s_cbranch_scc1 L_role1")
    for role in (0, 1):
        if role == 1: a.label("L_role1")
        (issue_role0 if role == 0 else issue_role1)(a)
        stamp(a, "issued")
        lane_fields(a)
        if role == 0:
            addr_main(a)
            kv_compute(a)
            stamp(a, "kvc")
            setup_late(a)
            for qd in range(4): a(f"ds_write_b128 {v(APT)}, {v(ACA+4*qd,4)} offset:{qd*1024}")
            a(f"v_readfirstlane_b32 {s(STAG)}, {v(TAGV)}", "s_waitcnt lgkmcnt(0)", "s_barrier")
            stamp(a, "bk")
            kv_finalize(a)
            stamp(a, "kvst")
            addr_main2(a)
            a("s_barrier")
        else:
            setup_late(a); addr_rem(a)
            a("s_barrier")
            stamp(a, "bk")
            for m in range(PRE, 3): chunk_dma(a, m)
            a(f"s_waitcnt vmcnt(12)", f"v_readfirstlane_b32 {s(STAG)}, {v(TAGV)}", "s_barrier")
        a(f"s_add_u32 {s(STAG)}, {s(STAG)}, {TAGC}")
        stamp(a, "b0")
        for n in range(9):
            if role == 0:
                if n == KVFLAG_AT:
                    a(f"s_cmp_eq_u32 {s(SW)}, 0", "s_cbranch_scc0 L_nokvf", f"s_lshl_b32 {s(ST)}, {s(SQB)}, 2", f"s_add_u32 {s(ST)}, {s(ST)}, {s(SHG)}", f"s_lshl_b32 s3, {s(SB)}, 7", f"s_add_u32 {s(ST)}, {s(ST)}, s3", f"s_lshl_b32 {s(ST)}, {s(ST)}, 7")
                    flag_store(a, ST)
                    a.label("L_nokvf")
                    stamp(a, "kvflag")
                if n == 8: a(f"v_mov_b32 v13, {SEENA}", f"ds_read_b128 {v(SEENV,4)}, v13")
                if n == 0:
                    for st in range(4):
                        if st == 3: a("s_waitcnt lgkmcnt(8)")
                        a(main_reads(n, st))
                else:
                    M = sum((main_mfma(n-1, st) for st in range(4)), [])
                    R = sum((main_reads(n, st) for st in range(4)), [])
                    a(M[0], R[0:3], M[1], R[3:6], M[2], R[6:9], M[3], R[9:12], M[4], "s_waitcnt lgkmcnt(8)", R[12:16], M[5], M[6], M[7])
                    if n == 8: seen_to_sgpr(a)
                if n < 8:
                    stamp(a, f"w{n+1}")
                    a("s_waitcnt vmcnt(0) lgkmcnt(0)" if n == KVFLAG_AT - 1 else "s_waitcnt lgkmcnt(0)")
            else:
                if n <= 5: chunk_dma(a, n+3)
                if n == 7:
                    a(f"s_lshl_b32 {s(ST+5)}, {s(SB)}, 2", f"s_add_u32 {s(ST+5)}, {s(ST+5)}, {s(SW)}", f"s_sub_u32 {s(ST+5)}, {s(ST+5)}, 4", f"s_lshl_b32 {s(ST+5)}, {s(ST+5)}, 12",
                      "v_lshlrev_b32 v11, 7, v10", f"buffer_load_dword v13, v11, {s(RDBG,4)}, {s(ST+5)} offen sc1")
                if n == 8:
                    a(f"v_mov_b32 v13, {SEENA}", f"ds_read_b128 {v(SEENV,4)}, v13", "s_waitcnt lgkmcnt(0)")
                    seen_to_sgpr(a)
                    a(f"s_cmp_eq_u32 {s(SFLAG)}, 0", "s_cbranch_scc1 L_nost1")
                    kv_stage1(a)
                    a.label("L_nost1")
                rem_reads(a, n)
                if n: rem_mfma(a, n-1)
                if n < 8:
                    stamp(a, f"w{n+1}")
                    a(f"s_waitcnt vmcnt({ {7: 0, 6: 6}.get(n, 12) }) lgkmcnt(0)")
                if n == 7:
                    a(f"v_cmp_ne_u32 vcc, {s(STAG)}, v13", f"s_lshl_b32 s3, {s(SW)}, 2", f"s_add_u32 s3, s3, {SEENA - 16}", "v_mov_b32 v12, s3", "s_cmp_eq_u64 vcc, 0", "s_cselect_b32 s3, 1, 0",
                      "v_mov_b32 v13, s3", "ds_write_b32 v12, v13", "s_waitcnt lgkmcnt(0)")
            if n < 8:
                stamp(a, f"x{n+1}")
                a("s_barrier")
                stamp(a, f"b{n+1}")
        a(f"s_movk_i32 {s(ST+2)}, {QS}", f"s_lshr_b32 {s(ST)}, {s(SHG)}, 1")
        if role == 0:
            for st in range(4): a(f"s_waitcnt lgkmcnt({12-4*st})" if st else "s_waitcnt lgkmcnt(8)", main_mfma(8, st))
            a(f"s_mul_i32 {s(ST)}, {s(ST)}, {32*QS}", f"s_lshl_b32 {s(ST+1)}, {s(SW)}, 6", f"s_add_u32 {s(ST+1)}, {s(ST+1)}, {QX}", f"v_lshl_add_u32 v11, v6, 3, {s(ST+1)}", f"v_mad_u32_u24 v11, v10, {s(ST+2)}, v11",
              f"s_sub_u32 {s(ST+1)}, {32*QS}, {s(ST)}", f"v_add_u32 v12, {s(ST+1)}, v11", f"v_add_u32 v11, {s(ST)}, v11", "s_nop 2")
            for t, (acc, ad) in enumerate(((ACA, 11), (ACB, 12))):
                for q in range(4):
                    for r in (2*q, 2*q+1): a(f"v_cvt_pk_bf16_f32 {v(FR[1]+8*t+r)}, {v(acc+2*r)}, {v(acc+2*r+1)}")
                    a(f"ds_write_b64 {v(ad)}, {v(FR[1]+8*t+2*q,2)} offset:{16*q}")
        else:
            a("s_waitcnt lgkmcnt(0)")
            rem_mfma(a, 8)
            a(f"s_bfe_u32 {s(ST+1)}, {s(SW)}, 0x10001", f"s_xor_b32 {s(ST)}, {s(ST)}, {s(ST+1)}", f"s_lshl_b32 {s(ST)}, {s(ST)}, 1", f"s_and_b32 {s(ST+1)}, {s(SW)}, 1", f"s_add_u32 {s(ST)}, {s(ST)}, {s(ST+1)}",
              f"s_mul_i32 {s(ST)}, {s(ST)}, {16*QS}", f"s_add_u32 {s(ST)}, {s(ST)}, {QX + 256}", f"v_lshrrev_b32 v12, 4, {v(LANE)}", f"v_lshl_add_u32 v12, v12, 3, {s(ST)}",
              f"v_and_b32 v13, 15, {v(LANE)}", f"v_mad_u32_u24 v12, v13, {s(ST+2)}, v12")
            for r in range(2): a(f"v_cvt_pk_bf16_f32 {v(XF+r)}, {v(ACC2+2*r)}, {v(ACC2+2*r+1)}")
            a(f"ds_write_b64 v12, {v(XF,2)}")
        if role == 0: a("s_branch L_pro_done")
    a.label("L_pro_done")

def wait_kv(a):
    a(f"s_cmp_eq_u32 {s(SFLAG)}, 0", "s_cbranch_scc0 L_kvfast")
    a(f"s_cmp_ge_u32 {s(SW)}, 4", "s_cbranch_scc0 L_kvw0")
    poll(a, "kv", ST+5, 1, mask=0xffffffff)
    a("s_barrier")
    kv_stage1(a)
    a("s_branch L_kvfast")
    a.label("L_kvw0")
    a("s_barrier")
    a.label("L_kvfast")
    a(f"s_or_b32 s3, {s(SQB)}, {s(SHG)}", f"s_xor_b32 {s(ST+5)}, {s(SW)}, 3", f"s_or_b32 s3, s3, {s(ST+5)}", "s_cmp_eq_u32 s3, 0", "s_cbranch_scc0 L_kvseen", f"s_lshl_b32 {s(ST+5)}, {s(SB)}, 7", f"s_add_u32 {s(ST+5)}, {s(ST+5)}, {FEP}")
    flag_store(a, ST+5)
    a.label("L_kvseen")

IDX, AK1, AK2, AV = 2, 3, 4, 5
S = [16, 32, 48, 64]; O = [80, 96, 112, 128]; Q1 = [144, 148, 152, 156]; Q2 = [160, 164]
K1 = [168, 172]; K2 = 176; V = [[180, 184], [188, 192]]; MX = 196

def kv_piece(a, base, i):
    return [f"s_add_u32 s3, {s(base)}, {i*4096}", "s_mov_b32 m0, s3", "s_nop 0", f"buffer_load_dwordx4 v15, {s(RKV,4)}, s3 offen sc1 lds"]
def kv_stage2(a):
    a(f"s_lshr_b32 {s(ST+1)}, s2, 3", f"s_add_u32 {s(ST)}, {s(SLB)}, 12288", f"s_add_u32 {s(ST+2)}, {s(ST)}, {HB}")
    for i in range(16):
        a(f"s_and_b32 {s(ST+1)}, {s(ST+1)}, 15", f"s_lshl_b32 {s(ST+3)}, {s(ST+1)}, 12", f"s_add_u32 s3, {s(ST+3)}, {s(ST)}", "s_mov_b32 m0, s3", f"s_cmp_ge_u32 {s(ST+1)}, 13",
          f"buffer_load_dwordx4 v15, {s(RKV,4)}, s3 offen sc1 lds", f"s_cbranch_scc1 L_s2{i}", f"s_add_u32 s3, {s(ST+3)}, {s(ST+2)}", "s_mov_b32 m0, s3", "s_nop 0",
          f"buffer_load_dwordx4 v15, {s(RKV,4)}, s3 offen sc1 lds")
        a.label(f"L_s2{i}")
        a(f"s_add_u32 {s(ST+1)}, {s(ST+1)}, 1")
def kv_stage3(a):
    a(f"s_add_u32 {s(ST)}, {s(SLB)}, {HB}")
    for i in (16, 17, 18): a(kv_piece(a, ST, i))
def wo_touch(a):
    srd(a, RW, PWO, 576*1152)
    a(f"s_lshr_b32 s3, s2, 3", "s_mul_i32 s3, s3, 162", f"s_mul_i32 {s(ST+1)}, {s(SW)}, 21", f"s_add_u32 s3, s3, {s(ST+1)}", "s_lshl_b32 s3, s3, 7", f"v_lshlrev_b32 v14, 7, {v(LANE)}",
      "s_mov_b32 exec_lo, 0x1fffff", "s_mov_b32 exec_hi, 0", f"buffer_load_dword {v(JUNK)}, v14, {s(RW,4)}, s3 offen", "s_mov_b64 exec, -1")

def attn_addr(a):
    L = v(LANE)
    a(f"s_lshr_b32 {s(ST+2)}, {s(SW)}, 2", f"s_mul_i32 {s(ST+2)}, {s(ST+2)}, {8*BLK}")
    a(f"v_lshl_add_u32 {v(AK1)}, {L}, 4, {s(ST+2)}", f"v_lshl_add_u32 {v(AK2)}, v10, 4, {s(ST+2)}")
    a("v_and_b32 v11, 0x13, v10", "v_bfe_u32 v12, v10, 2, 1", "v_lshl_or_b32 v11, v12, 3, v11", "v_bfe_u32 v12, v10, 3, 1", "v_lshl_or_b32 v11, v12, 2, v11")
    a("v_mov_b32 v12, 0x4000", "v_cmp_lt_u32 vcc, 16, v10", "s_nop 1", "v_cndmask_b32 v11, v11, v12, vcc")
    a("v_cmp_eq_u32 vcc, 20, v10", "s_nop 1", "v_cndmask_b32 v11, v11, 17, vcc")
    a("v_and_b32 v12, 0x1b, v10", "v_cmp_eq_u32 vcc, 17, v12", "s_nop 1", "v_cndmask_b32 v11, v11, 18, vcc")
    a(f"s_movk_i32 {s(ST+3)}, {VH}", f"v_lshl_add_u32 v11, v11, 4, {s(ST+2)}", f"v_mad_u32_u24 {v(AV)}, v6, {s(ST+3)}, v11", f"v_mov_b32 {v(IDX)}, 0xdddddddd", f"v_lshlrev_b32 v15, 4, {L}")

def q_fetch(a):
    a(f"s_and_b32 {s(ST+3)}, {s(SW)}, 3", f"s_mul_i32 {s(ST+3)}, {s(ST+3)}, 72", f"s_add_u32 {s(ST+3)}, {s(ST+3)}, {QX}", f"s_movk_i32 {s(ST+4)}, {QS}",
      f"v_mov_b32 v12, {s(ST+3)}", f"v_mad_u32_u24 v12, v10, {s(ST+4)}, v12", "v_lshl_add_u32 v13, v6, 4, v12", f"v_add_u32 v14, {32*QS}, v13", "v_mad_u32_u24 v12, v6, 36, v12")
    for t in range(4):
        base = 13 + (t >> 1); o = 9*(t & 1)
        a(f"ds_read2_b32 {v(Q1[t],2)}, {v(base)} offset0:{o} offset1:{o+1}", f"ds_read2_b32 {v(Q1[t]+2,2)}, {v(base)} offset0:{o+2} offset1:{o+3}")
    for p in range(2):
        a(f"ds_read_b32 {v(Q2[p])}, v12 offset:{32 + p*32*QS}", f"ds_read_b32 {v(Q2[p]+3)}, v12 offset:{32 + p*32*QS}")
        a(f"v_mov_b32 {v(Q2[p]+1)}, 0", f"v_mov_b32 {v(Q2[p]+2)}, 0")

def E(t, x, y, sub):
    out = []
    for i in range(x, y):
        if sub: out.append(f"v_sub_f32 {v(S[t]+i)}, {v(S[t]+i)}, {v(MX+t)}")
        out.append(f"v_exp_f32 {v(S[t]+i)}, {v(S[t]+i)}")
    return out
pvhi = lambda t, vb: [f"v_smfmac_f32_32x32x32_bf16 {v(O[t],16)}, {v(V[vb][1],4)}, {v(S[t]+8,8)}, {v(IDX)}"]
pvlo = lambda t, vb: [f"v_smfmac_f32_32x32x32_bf16 {v(O[t],16)}, {v(V[vb][0],4)}, {v(S[t],8)}, {v(IDX)}"]
qk1 = lambda t, kb: [f"v_mfma_f32_32x32x16_bf16 {v(S[t],16)}, {v(K1[kb],4)}, {v(Q1[t],4)}, 0"]
q2b = lambda t, sg: [f"v_mfma_f32_32x32x4bf16_1k {v(S[t],32)}, {v(K2 + (sg & 2),2)}, {v(Q2[t>>1] + 2*(sg & 1),2)}, {v(S[t],32)}"]

def attn_step(sg, sub, prio=None):
    b = sg & 1; nb = b ^ 1
    off = 512 + (sg+1)*STEPB if sg < 3 else BLK + 512
    k1 = [f"ds_read_b128 {v(K1[nb],4)}, {v(AK1)} offset:{off}"]
    v0 = [f"ds_read_b128 {v(V[nb][0],4)}, {v(AV)} offset:{off+1024}"]
    v1 = [f"ds_read_b128 {v(V[nb][1],4)}, {v(AV)} offset:{off+1024+2*VH}"]
    k2 = []
    if sg == 0: k2 = [f"ds_read_b64 {v(K2+2,2)}, {v(AK2)} offset:8"]
    if sg == 2: k2 = [f"ds_read_b64 {v(K2,2)}, {v(AK2)} offset:{BLK}"]
    w = ["s_waitcnt lgkmcnt(0)"]
    P = (lambda k: [f"s_setprio {prio[k]}"] if prio and k in prio else [])
    L = P((sg, 0))
    L += E(0,0,2,sub) + pvhi(3, nb) + E(0,2,4,sub) + k1 + E(0,4,5,sub) + qk1(3, b) + E(0,5,8,sub) + v0 + E(0,8,10,sub) + pvlo(0, b) + E(0,10,12,sub) + v1 + E(0,12,14,sub) + q2b(2, sg) + E(0,14,16,sub) + k2
    L += P((sg, 1))
    L += E(1,0,6,sub) + pvhi(0, b) + E(1,6,9,sub) + w + qk1(0, nb) + E(1,9,12,sub) + pvlo(1, b) + E(1,12,16,sub)
    L += P((sg, 2))
    L += E(2,0,2,sub) + pvhi(1, b) + E(2,2,5,sub) + qk1(1, nb) + E(2,5,10,sub) + pvlo(2, b) + E(2,10,14,sub) + q2b(0, (sg+1) & 3) + E(2,14,16,sub)
    L += P((sg, 3))
    L += E(3,0,6,sub) + pvhi(2, b) + E(3,6,9,sub) + qk1(2, nb) + E(3,9,12,sub) + pvlo(3, b) + E(3,12,16,sub)
    return L

def attn_first_frags(a):
    a(f"ds_read_b128 {v(K1[0],4)}, {v(AK1)} offset:512", f"ds_read_b64 {v(K2,2)}, {v(AK2)}",
      f"ds_read_b128 {v(V[0][0],4)}, {v(AV)} offset:{512+1024}", f"ds_read_b128 {v(V[0][1],4)}, {v(AV)} offset:{512+1024+2*VH}")

def attn_loop(a, uid, sub, prio=None, events={}):
    a("s_waitcnt lgkmcnt(0)")
    a(qk1(0, 0), qk1(1, 0), qk1(2, 0), "s_nop 7", "s_nop 0", q2b(0, 0), f"s_mov_b32 {s(SIT)}, 0", "s_nop 15", "s_nop 2")
    a(".p2align 6")
    a.label(f"L_att{uid}")
    for sg in range(4): a(attn_step(sg, sub, prio))
    mask = sum(1 << (i+1) for i in events) | (1 << 8)
    a(f"v_add_u32 {v(AK1)}, {BLK}, {v(AK1)}", f"v_add_u32 {v(AK2)}, {BLK}, {v(AK2)}", f"v_add_u32 {v(AV)}, {BLK}, {v(AV)}")
    a(f"s_add_u32 {s(SIT)}, {s(SIT)}, 1", f"s_bitcmp0_b32 {mask}, {s(SIT)}", f"s_cbranch_scc1 L_att{uid}")
    for i in events:
        if DIAG and f"it{i}" in STAMPS and uid != "S":
            a(f"s_cmp_eq_u32 {s(SIT)}, {i+1}", f"s_cbranch_scc0 L_st{uid}{i}"); stamp(a, f"it{i}"); a.label(f"L_st{uid}{i}")
    for i, ev in events.items():
        a(f"s_cmp_eq_u32 {s(SIT)}, {i+1}", f"s_cbranch_scc0 L_ev{uid}{i}")
        ev(a)
        a(f"s_branch L_att{uid}")
        a.label(f"L_ev{uid}{i}")
    a(pvhi(3, 1))

def zero_acc(a):
    for r in range(64): a(f"v_mov_b32 {v(O[0]+r)}, 0")
    for r in range(8): a(f"v_mov_b32 {v(S[3]+8+r)}, 0")
    for r in range(4): a(f"v_mov_b32 {v(V[1][1]+r)}, 0")

def max_pass(a):
    for t in range(4): a(f"v_mov_b32 {v(MX+t)}, 0xff800000")
    a(f"s_mov_b32 {s(SIT)}, 0")
    a.label("L_mx")
    a(f"ds_read_b128 {v(K2,4)}, {v(AK2)}")
    for sg in range(4):
        a(f"ds_read_b128 {v(K1[0],4)}, {v(AK1)} offset:{512 + sg*STEPB}", "s_waitcnt lgkmcnt(0)")
        for t in range(4): a(qk1(t, 0))
        a("s_nop 9", q2b(0, sg), q2b(2, sg), "s_nop 15", "s_nop 3")
        for t in range(4):
            for r in range(8): a(f"v_max3_f32 {v(MX+t)}, {v(S[t]+2*r)}, {v(S[t]+2*r+1)}, {v(MX+t)}")
    a(f"v_add_u32 {v(AK1)}, {BLK}, {v(AK1)}", f"v_add_u32 {v(AK2)}, {BLK}, {v(AK2)}")
    a(f"s_add_u32 {s(SIT)}, {s(SIT)}, 1", f"s_cmp_lt_u32 {s(SIT)}, 8", "s_cbranch_scc1 L_mx")
    a(f"v_subrev_u32 {v(AK1)}, {8*BLK}, {v(AK1)}", f"v_subrev_u32 {v(AK2)}, {8*BLK}, {v(AK2)}")
    a(f"v_lshlrev_b32 v11, 4, v0", f"v_add_u32 v11, {KVB + 2048}, v11", f"ds_write_b128 v11, {v(MX,4)}", "s_waitcnt lgkmcnt(0)", "s_barrier")
    a(f"v_xor_b32 v12, 32, v0", "v_xor_b32 v13, 0x100, v0", "v_xor_b32 v14, 0x120, v0")
    for i in range(3): a(f"v_lshlrev_b32 {v(12+i)}, 4, {v(12+i)}", f"v_add_u32 {v(12+i)}, {KVB + 2048}, {v(12+i)}", f"ds_read_b128 {v(S[0]+4*i,4)}, {v(12+i)}")
    a("s_waitcnt lgkmcnt(0)")
    for t in range(4): a(f"v_max3_f32 {v(MX+t)}, {v(MX+t)}, {v(S[0]+t)}, {v(S[0]+4+t)}", f"v_max_f32 {v(MX+t)}, {v(MX+t)}, {v(S[0]+8+t)}")

FLAGA = KVB + 10240
def scr_addr(a, dst, w_s, n0, stride):
    a(f"s_mul_i32 s3, {s(w_s)}, {stride}", f"s_cmp_ge_u32 {s(w_s)}, {n0}", f"s_cselect_b32 {s(ST+9)}, {SCR1 - n0*stride}, 0", f"s_cselect_b32 {s(ST+8)}, 0, {SCR0}", f"s_add_u32 s3, s3, {s(ST+9)}", f"s_add_u32 s3, s3, {s(ST+8)}",
      f"v_lshl_add_u32 {v(dst)}, {v(LANE)}, 4, s3")
def attn_epilogue(a, uid, check_range, oflags, after_barrier=None):
    L = v(LANE)
    scr_addr(a, 13, SW, 3, 6144)
    a(f"s_xor_b32 {s(ST+1)}, {s(SW)}, 4")
    scr_addr(a, 14, ST+1, 3, 6144)
    stamp(a, "e0" + uid)
    a("s_barrier")
    stamp(a, "e1" + uid)
    if after_barrier: after_barrier(a)
    a(f"s_cmp_ge_u32 {s(SW)}, 4", f"s_cbranch_scc1 L_ep1{uid}")
    for kh in (0, 1):
        if kh: a.label(f"L_ep1{uid}")
        for hh in range(2):
            T = O[2*(1-kh)+hh]
            a(f"ds_write_b128 v13, {v(T,4)} offset:{hh*3072}", f"ds_write_b128 v13, {v(T+4,4)} offset:{hh*3072 + 1024}", f"ds_write_b64 v13, {v(T+8,2)} offset:{hh*3072 + 2048}")
        if check_range:
            a(f"s_mov_b32 {s(ST)}, 0x21800000", f"s_mov_b32 {s(ST+1)}, 0x5d800000", f"s_mov_b32 {s(ST+2)}, 0x7e800000")
            a(f"v_minimum3_f32 v11, {v(O[0]+9)}, {v(O[1]+9)}, {v(O[2]+9)}", f"v_maximum3_f32 v12, {v(O[0]+9)}, {v(O[1]+9)}, {v(O[2]+9)}",
              f"v_minimum3_f32 v11, v11, {v(O[3]+9)}, {v(O[3]+9)}", f"v_maximum3_f32 v12, v12, {v(O[3]+9)}, {v(O[3]+9)}")
            regs = [O[t]+r for t in range(4) for r in range(9)]
            a(f"v_maximum3_f32 v15, abs({v(regs[0])}), abs({v(regs[1])}), abs({v(regs[2])})")
            for i in range(3, 36, 2): a(f"v_maximum3_f32 v15, abs({v(regs[i])}), abs({v(regs[min(i+1, 35)])}), v15")
            a(f"v_cmp_nle_f32 vcc, {s(ST)}, v11", f"v_cmp_nge_f32 {s(ST+4,2)}, {s(ST+1)}, v12", f"v_cmp_nge_f32 {s(ST+6,2)}, {s(ST+2)}, v15", f"s_lshl_b32 {s(ST+1)}, {s(SW)}, 2",
              f"s_or_b64 vcc, vcc, {s(ST+4,2)}", f"s_or_b64 vcc, vcc, {s(ST+6,2)}", "s_cmp_lg_u64 vcc, 0", f"s_cselect_b32 {s(ST)}, 1, 0", f"v_mov_b32 v11, {s(ST)}",
              f"s_add_u32 {s(ST+1)}, {s(ST+1)}, {FLAGA}", f"v_mov_b32 v12, {s(ST+1)}", "ds_write_b32 v12, v11", f"v_mov_b32 v12, {FLAGA}")
        a(f"s_and_b32 {s(ST)}, {s(SQB)}, 1", f"s_lshl_b32 {s(ST)}, {s(ST)}, 1", f"s_add_u32 {s(ST)}, {s(ST)}, {kh}",
          f"s_lshl_b32 {s(ST+1)}, {s(SGRP)}, 2", f"s_add_u32 {s(ST)}, {s(ST)}, {s(ST+1)}", f"s_mul_i32 {s(ST)}, {s(ST)}, 36", f"s_mul_i32 {s(ST+1)}, {s(SHG)}, 9", f"s_add_u32 {s(ST)}, {s(ST)}, {s(ST+1)}",
          f"s_lshl_b32 {s(ST)}, {s(ST)}, 10", f"s_and_b32 {s(ST+1)}, {s(SW)}, 3", f"s_lshl_b32 {s(ST+2)}, {s(ST+1)}, 2", f"s_add_u32 {s(ST+2)}, {s(ST+2)}, {s(ST)}", f"s_add_u32 {s(ST+2)}, {s(ST+2)}, 8192",
          f"s_lshl_b32 {s(ST+1)}, {s(ST+1)}, 11", f"s_add_u32 {s(ST)}, {s(ST)}, {s(ST+1)}", f"v_lshlrev_b32 v15, 4, {L}")
        stamp(a, "e2" + uid)
        a("s_waitcnt lgkmcnt(0)", "s_barrier")
        stamp(a, "e3" + uid)
        if check_range: a(f"ds_read_b128 {v(S[3],4)}, v12", f"ds_read_b128 {v(S[3]+4,4)}, v12 offset:16")
        for hh in range(2):
            a(f"ds_read_b64 {v(S[hh]+8,2)}, v14 offset:{hh*3072 + 2048}", f"ds_read_b128 {v(S[hh],4)}, v14 offset:{hh*3072}", f"ds_read_b128 {v(S[hh]+4,4)}, v14 offset:{hh*3072 + 1024}")
        if check_range:
            F = S[3]
            a("s_waitcnt lgkmcnt(6)", f"v_or3_b32 v11, {v(F)}, {v(F+1)}, {v(F+2)}", f"v_or3_b32 v11, v11, {v(F+3)}, {v(F+4)}", f"v_or3_b32 v11, v11, {v(F+5)}, {v(F+6)}", f"v_or_b32 v11, v11, {v(F+7)}",
              "s_nop 0", f"v_readfirstlane_b32 s3, v11", "s_nop 0", "s_cmp_lg_u32 s3, 0", "s_cbranch_scc1 L_fallback")
        for hh in range(2):
            T = O[2*kh+hh]; P = S[hh]
            a(f"s_waitcnt lgkmcnt({5-3*hh})", f"v_add_f32 {v(T+9)}, {v(T+9)}, {v(P+9)}", f"v_add_f32 {v(T+8)}, {v(T+8)}, {v(P+8)}", f"v_rcp_f32 {v(T+9)}, {v(T+9)}", f"s_waitcnt lgkmcnt({3-3*hh})")
            for r in range(0, 8, 2): a(f"v_pk_add_f32 {v(T+r,2)}, {v(T+r,2)}, {v(P+r,2)}")
            for r in range(0, 8, 2): a(f"v_pk_mul_f32 {v(T+r,2)}, {v(T+r,2)}, {v(T+8,2)} op_sel:[0,1] op_sel_hi:[1,1]")
            a(f"v_mul_f32 {v(T+8)}, {v(T+8)}, {v(T+9)}")
            for r in range(4): a(f"v_cvt_pk_bf16_f32 {v(S[2]+4*hh+r)}, {v(T+2*r)}, {v(T+2*r+1)}")
            if hh == 0: stamp(a, "e4" + uid)
            a(f"buffer_store_dwordx4 {v(S[2]+4*hh,4)}, v15, {s(RO,4)}, {s(ST)} offen offset:{1024*hh}{oflags}")
        a(f"v_cvt_pk_bf16_f32 {v(S[2]+8)}, {v(O[2*kh]+8)}, {v(O[2*kh+1]+8)}", f"buffer_store_dword {v(S[2]+8)}, v15, {s(RO,4)}, {s(ST+2)} offen{oflags}")
        if kh == 0: a(f"s_branch L_ep2{uid}")
    a.label(f"L_ep2{uid}")

def attention(a, oflags, prio):
    stamp(a, "qdone")
    attn_addr(a); zero_acc(a)
    wait_kv(a)
    a("s_waitcnt vmcnt(0) lgkmcnt(0)", "s_barrier")
    stamp(a, "kv1")
    q_fetch(a)
    attn_first_frags(a)
    bar = lambda a: a("s_waitcnt vmcnt(0)", "s_barrier")
    def evA5(a): bar(a); wo_dma(a)
    def evB0(a): bar(a); kv_stage3(a); wo_touch(a)
    a(f"s_cmp_ge_u32 {s(SW)}, 4", "s_cbranch_scc1 L_roleB")
    srd(a, RW, PWO, 576*1152)
    attn_loop(a, "A", False, prio[0], {0: bar, 5: evA5}); a("s_setprio 0", "s_branch L_attD")
    a.label("L_roleB"); a("s_setprio 1")
    kv_stage2(a)
    attn_loop(a, "B", False, prio[1], {0: evB0, 5: bar, 6: wo_dma}); a("s_setprio 0")
    a.label("L_attD")
    stamp(a, "loop")
    attn_epilogue(a, "", True, oflags)
    stamp(a, "epi")

def fallback(a, oflags, back):
    a.label("L_fallback")
    a(f"v_subrev_u32 {v(AK1)}, {HB}, {v(AK1)}", f"v_subrev_u32 {v(AK2)}, {HB}, {v(AK2)}", f"v_subrev_u32 {v(AV)}, {HB}, {v(AV)}")
    a(f"s_lshr_b32 {s(ST)}, {s(SW)}, 2", f"s_mul_i32 {s(ST)}, {s(ST)}, {HB}", f"s_and_b32 s3, {s(SW)}, 3", "s_lshl_b32 s3, s3, 10", f"s_add_u32 {s(ST)}, {s(ST)}, s3")
    a("s_waitcnt vmcnt(0) lgkmcnt(0)", "s_barrier")
    for i in range(19): a(kv_piece(a, ST, i))
    a("s_waitcnt vmcnt(0)", "s_barrier")
    max_pass(a)
    zero_acc(a)
    attn_first_frags(a)
    attn_loop(a, "S", True)
    attn_epilogue(a, "s", False, oflags, wo_dma)
    a(f"s_branch {back}")

BF, AF, D0, DX = 16, 88, 136, 168
A0, A1, AXT = 2, 3, 4
def wo_dma(a):
    L = v(LANE)
    a(f"v_lshrrev_b32 v200, 3, {L}", f"v_and_b32 v201, 7, {L}", f"v_bfe_u32 v202, {L}, 4, 1", "v_lshlrev_b32 v202, 2, v202", "v_xor_b32 v201, v201, v202", "v_lshlrev_b32 v201, 4, v201",
      f"s_movk_i32 {s(ST+4)}, 1152", f"s_movk_i32 {s(ST+5)}, {18*1152}", f"v_mad_u32_u24 v202, v200, {s(ST+5)}, v201", f"v_mad_u32_u24 v201, v200, {s(ST+4)}, v201")
    a(f"s_lshr_b32 {s(ST+2)}, {s(SW)}, 1", f"s_and_b32 {s(ST+3)}, {s(SW)}, 1", f"s_mul_i32 {s(ST+6)}, {s(ST+2)}, {144*1152}", f"s_lshl_b32 {s(ST)}, {s(SJJ)}, 7", f"s_add_u32 {s(ST+7)}, {s(ST+6)}, {s(ST)}",
      f"s_mul_i32 {s(ST)}, {s(ST+3)}, {8*1152}", f"s_add_u32 {s(ST)}, {s(ST)}, {s(ST+7)}",
      f"s_and_b32 {s(ST+9)}, {s(ST+2)}, 1", f"s_mul_i32 {s(ST+1)}, {s(ST+9)}, {9*2048}", f"s_lshl_b32 {s(ST+8)}, {s(ST+3)}, 10", f"s_add_u32 {s(ST+1)}, {s(ST+1)}, {s(ST+8)}",
      f"s_lshr_b32 {s(ST+2)}, {s(ST+2)}, 1", f"s_mul_i32 {s(ST+2)}, {s(ST+2)}, {HB}", f"s_add_u32 {s(ST+1)}, {s(ST+1)}, {s(ST+2)}")
    for ff in range(8):
        dma(a, 201, RW, s(ST), ldsaddr_s=ST+1)
        a(f"s_add_u32 {s(ST)}, {s(ST)}, {18*1152}", f"s_add_u32 {s(ST+1)}, {s(ST+1)}, 2048")
    a(f"s_mul_i32 {s(ST)}, {s(ST+3)}, 1152", f"s_add_u32 {s(ST)}, {s(ST)}, {s(ST+7)}", f"s_add_u32 {s(ST)}, {s(ST)}, {16*1152}")
    dma(a, 202, RW, s(ST), ldsaddr_s=ST+1)
    a(f"v_lshrrev_b32 v200, 2, {L}", f"v_and_b32 v201, 3, {L}", "v_lshlrev_b32 v201, 4, v201", "v_and_b32 v202, 7, v200", f"v_mad_u32_u24 v202, v202, {s(ST+5)}, v201", f"v_lshrrev_b32 v203, 5, {L}",
      f"v_mad_u32_u24 v202, v203, {s(ST+4)}, v202", f"v_mad_u32_u24 v201, v200, {s(ST+4)}, v201")
    a(f"s_lshr_b32 {s(ST)}, {s(SJJ)}, 2", f"s_lshl_b32 {s(ST)}, {s(ST)}, 6", f"s_add_u32 {s(ST+6)}, {s(ST+6)}, {s(ST)}", f"s_add_u32 {s(ST+6)}, {s(ST+6)}, 1024",
      f"s_mul_i32 {s(ST)}, {s(ST+3)}, {18*1152}", f"s_add_u32 {s(ST)}, {s(ST)}, {s(ST+6)}",
      f"s_mul_i32 {s(ST+7)}, {s(ST+9)}, {9*1024}", f"s_add_u32 {s(ST+7)}, {s(ST+7)}, {s(ST+2)}", f"s_add_u32 {s(ST+7)}, {s(ST+7)}, {WOX}", f"s_add_u32 {s(ST+1)}, {s(ST+7)}, {s(ST+8)}")
    for n in range(4):
        dma(a, 201, RW, s(ST), ldsaddr_s=ST+1)
        if n < 3: a(f"s_add_u32 {s(ST)}, {s(ST)}, {36*1152}", f"s_add_u32 {s(ST+1)}, {s(ST+1)}, 2048")
    a(f"s_cmp_eq_u32 {s(ST+3)}, 0", f"s_cbranch_scc0 L_wox{a.uid}", f"s_add_u32 {s(ST)}, {s(ST+6)}, {16*1152}", f"s_add_u32 {s(ST+1)}, {s(ST+7)}, 8192")
    dma(a, 202, RW, s(ST), ldsaddr_s=ST+1)
    a.label(f"L_wox{a.uid}"); a.uid += 1

OUTF = os.environ.get("OUTF", "")
OROT = int(os.environ.get("OROT", 1)); OTOUCH = int(os.environ.get("OTOUCH", 0))
def oproj(a, oflags, wait_o=None):
    L = v(LANE)
    a(f"s_add_u32 {s(SJ)}, {s(SW)}, {s(SJJ)}" if OROT else f"s_mov_b32 {s(SJ)}, {s(SW)}", f"s_and_b32 {s(SJ)}, {s(SJ)}, 7", f"s_lshr_b32 {s(ST+2)}, {s(SJ)}, 1", f"s_and_b32 {s(ST+3)}, {s(SJ)}, 1")
    a(f"s_lshl_b32 {s(ST)}, {s(SGRP)}, 2", f"s_add_u32 {s(ST)}, {s(ST)}, {s(ST+2)}", f"s_mul_i32 {s(ST)}, {s(ST)}, 36", f"s_mul_i32 {s(ST+1)}, {s(ST+3)}, 18", f"s_add_u32 {s(ST)}, {s(ST)}, {s(ST+1)}",
      f"s_lshl_b32 {s(ST)}, {s(ST)}, 10", f"v_lshlrev_b32 v15, 4, {L}")
    a(f"s_mov_b32 {s(SXB)}, {s(ST)}")
    lane_fields(a)
    a("v_and_b32 v11, 1, v9", "v_lshlrev_b32 v11, 5, v11", "v_lshl_add_u32 v11, v7, 4, v11", "v_lshrrev_b32 v12, 1, v9", "v_lshl_add_u32 v11, v12, 3, v11", "v_lshl_add_u32 v12, v6, 3, v8")
    a(f"s_mul_i32 {s(ST)}, {s(ST+3)}, {HB}", f"s_add_u32 {s(ST+1)}, {s(ST)}, {WOX}", f"v_lshl_add_u32 v13, v12, 6, v11", f"v_add_u32 {v(AXT)}, {s(ST+1)}, v13",
      "v_lshl_add_u32 v13, v12, 7, v11", f"v_add_u32 v13, {s(ST)}, v13",
      "v_lshrrev_b32 v12, 1, v8", f"v_lshl_add_u32 {v(A0)}, v12, 6, v13", "v_xor_b32 v12, 1, v12", f"v_lshl_add_u32 {v(A1)}, v12, 6, v13")
    scr_addr(a, 13, SJ, 5, 4096)
    a(f"s_xor_b32 {s(ST)}, {s(SJ)}, 1")
    scr_addr(a, 14, ST, 5, 4096)
    a(f"v_add_u32 v11, {SCR1 + 3*4096}, v15")
    a(f"s_and_b32 {s(ST)}, {s(SGRP)}, 15", f"s_lshl_b32 {s(ST)}, {s(ST)}, 2", f"s_add_u32 {s(ST)}, {s(ST)}, {s(ST+2)}", f"s_mul_i32 {s(ST)}, {s(ST)}, {32*2304}", f"s_mul_i32 {s(ST+1)}, {s(SB)}, 1152",
      f"s_add_u32 {s(ST+4)}, {s(ST)}, {s(ST+1)}", f"s_movk_i32 {s(ST+1)}, 2304", "v_lshlrev_b32 v12, 5, v6", f"v_mad_u32_u24 v12, v10, {s(ST+1)}, v12",
      f"s_lshr_b32 {s(ST)}, {s(SJJ)}, 2", f"s_lshl_b32 {s(ST)}, {s(ST)}, 6", f"s_add_u32 {s(ST+5)}, {s(ST+4)}, {s(ST)}", f"s_add_u32 {s(ST+5)}, {s(ST+5)}, 1024",
      f"s_lshl_b32 {s(ST)}, {s(SJJ)}, 7", f"s_add_u32 {s(ST+4)}, {s(ST+4)}, {s(ST)}", f"s_lshl_b32 {s(ST)}, {s(ST+3)}, 6", f"s_add_u32 {s(ST+4)}, {s(ST+4)}, {s(ST)}")
    a(f"s_mul_i32 {s(ST+6)}, {s(SJJ)}, 144", f"s_mul_i32 s3, {s(SW)}, 18", f"s_add_u32 {s(ST+6)}, {s(ST+6)}, s3", f"s_lshl_b32 {s(ST+6)}, {s(ST+6)}, 7", f"s_mul_i32 s3, {s(SGRP)}, {144*1024}", f"s_add_u32 {s(ST+6)}, {s(ST+6)}, s3",
      f"v_lshlrev_b32 v5, 7, {L}")
    wait_o(a)
    stamp(a, "oseen")
    if OTOUCH: a("s_mov_b32 exec_lo, 0x3ffff", "s_mov_b32 exec_hi, 0", f"buffer_load_dword {v(JUNK)}, v5, {s(RO,4)}, {s(ST+6)} offen{oflags}", "s_mov_b64 exec, -1")
    for fi in range(18):
        a(f"buffer_load_dwordx4 {v(BF+4*fi,4)}, v15, {s(RO,4)}, {s(SXB)} offen offset:{1024*(fi&3)}{oflags}")
        if fi & 3 == 3: a(f"s_add_u32 {s(SXB)}, {s(SXB)}, 4096")
    a(f"s_and_b32 {s(ST)}, {s(SJJ)}, 3", f"s_cmp_eq_u32 {s(ST)}, {s(ST+2)}", "s_cbranch_scc1 L_opx")
    for ext in (0, 1):
        if ext: a.label("L_opx")
        nt = 3 if ext else 2; depth = 2 if ext else 3
        def reads(fi):
            bb = AF + 12*(fi % depth if ext else fi % depth)
            for c in range(2):
                a(f"ds_read_b64_tr_b16 {v(bb+4*c,2)}, {v(A0+c)} offset:{fi*2048}", f"ds_read_b64_tr_b16 {v(bb+4*c+2,2)}, {v(A0+c)} offset:{fi*2048+512}")
            if ext: a(f"ds_read_b64_tr_b16 {v(bb+8,2)}, {v(AXT)} offset:{fi*1024}", f"ds_read_b64_tr_b16 {v(bb+10,2)}, {v(AXT)} offset:{fi*1024+256}")
        for fi in range(depth): reads(fi)
        for fi in range(18):
            bb = AF + 12*(fi % depth)
            later = min(17, fi+depth-1) - fi
            a(f"s_waitcnt vmcnt({17-fi}) lgkmcnt({2*nt*later})")
            for c in range(nt):
                D = D0 + 16*c
                a(f"v_mfma_f32_32x32x16_bf16 {v(D,16)}, {v(bb+4*c,4)}, {v(BF+4*fi,4)}, {'0' if fi == 0 else v(D,16)}")
            if fi + depth < 18: reads(fi+depth)
        stamp(a, "omfma")
        a("s_nop 7", "s_nop 3")
        a(f"s_cmp_eq_u32 {s(ST+3)}, 0", f"s_cbranch_scc0 L_op1{ext}")
        for kh in (0, 1):
            if kh: a.label(f"L_op1{ext}")
            for q in range(4): a(f"ds_write_b128 v13, {v(D0+16*(1-kh)+4*q,4)} offset:{q*1024}")
            if ext and kh == 1:
                for q in range(4): a(f"ds_write_b128 v11, {v(DX+4*q,4)} offset:{q*1024}")
            a("s_waitcnt lgkmcnt(0)", "s_barrier")
            jobs = [(D0+16*kh, "v14", 0, ST+4)] + ([(DX, "v11", 0, ST+5)] if (ext and kh == 0) else [])
            for n, (D, ad, of, so) in enumerate(jobs):
                for q in range(4): a(f"ds_read_b128 {v(BF+16*n+4*q,4)}, {ad} offset:{of + q*1024}")
            for n, (D, ad, of, so) in enumerate(jobs):
                for q in range(4):
                    a(f"s_waitcnt lgkmcnt({4*(len(jobs)-1-n) + 3 - q})")
                    for r in range(4): a(f"v_add_f32 {v(D+4*q+r)}, {v(D+4*q+r)}, {v(BF+16*n+4*q+r)}")
                    for r in range(2): a(f"v_cvt_pk_bf16_f32 {v(AF+8*n+2*q+r)}, {v(D+4*q+2*r)}, {v(D+4*q+2*r+1)}")
                    if q & 1: a(f"buffer_store_dwordx4 {v(AF+8*n+2*q-2,4)}, v12, {s(ROUT,4)}, {s(so)} offen offset:{16*(q>>1)}{OUTF}")
            if DIAG: a("s_waitcnt vmcnt(0)")
            stamp_out(a, a.kidx); a("s_endpgm")

def kernel(name, body, nvgpr=256):
    a = Asm(); a.uid = 0
    a.label(name)
    setup(a, f"L_end_{name}")
    body(a)
    a.label(f"L_end_{name}")
    a("s_endpgm")
    a.label("L_code_end")
    lines = []
    import re
    for l in a.lines:
        lines.append(re.sub(r"\bL_(\w+)", lambda m: f"L_{name[:3]}_{m.group(1)}", l))
    a.lines = lines
    n = check(a.lines)
    if n: print(f"{name}: {n} hazards"); sys.exit(1)
    head = f".globl {name}\n.p2align 8\n.type {name},@function\n"
    kd = f""".amdhsa_kernel {name}
  .amdhsa_next_free_vgpr {nvgpr}
  .amdhsa_next_free_sgpr 96
  .amdhsa_accum_offset {(nvgpr+3)//4*4}
  .amdhsa_group_segment_fixed_size 0
  .amdhsa_kernarg_size 104
  .amdhsa_user_sgpr_count 2
  .amdhsa_user_sgpr_kernarg_segment_ptr 1
  .amdhsa_system_sgpr_workgroup_id_x 1
.end_amdhsa_kernel
"""
    return head + a.text(), kd

def publish_o(a):
    stamp(a, "p0")
    a("s_waitcnt vmcnt(0)")
    stamp(a, "p1")
    a("s_barrier")
    a(f"s_cmp_eq_u32 {s(SW)}, 0", "s_cbranch_scc0 L_noof", f"s_lshl_b32 s3, {s(SGRP)}, 3", f"s_add_u32 s3, s3, {s(SJJ)}", f"s_lshl_b32 {s(ST)}, s3, 7", f"s_add_u32 {s(ST)}, {s(ST)}, {FO}")
    flag_store(a, ST)
    a.label("L_noof")
def wait_o(a):
    a(f"s_cmp_eq_u32 {s(SW)}, 0", "s_cbranch_scc0 L_oseen", f"s_lshl_b32 {s(ST+7)}, {s(SGRP)}, 10", f"s_add_u32 {s(ST+7)}, {s(ST+7)}, {FO}",
      "v_mov_b32 v200, v11", "v_mov_b32 v201, v12", "v_mov_b32 v202, v13")
    poll(a, "o", ST+7, 1, mask=0xff)
    a("v_mov_b32 v11, v200", "v_mov_b32 v12, v201", "v_mov_b32 v13, v202")
    a.label("L_oseen")
    a("s_barrier")

def build(mode, prio=None):
    def k1(a):
        a.kidx = 0
        prologue(a); attention(a, " sc1", prio); a.label("L_fin")
        publish_o(a); oproj(a, " sc1", wait_o); fallback(a, " sc1", "L_fin")
    ks = [(NAME + "_kernel", k1)]
    hdr = open(os.path.join(os.path.dirname(os.path.abspath(__file__)), "header.txt")).read()
    out = hdr
    out += f"; @launch grid=(256,1,1) block=(512,1,1) lds={LDS_TOTAL}\n"
    out += '.amdgcn_target "amdgcn-amd-amdhsa--gfx950"\n.text\n'
    kds = ""
    for n, f in ks:
        t, kd = kernel(n, f)
        out += t; kds += ".p2align 6\n" + kd
    out += '.section .rodata,"a"\n' + kds
    return out

if __name__ == "__main__":
    if "diag" in sys.argv: DIAG = 1; sys.argv.remove("diag")
    if "diag2" in sys.argv: DIAG = 2; sys.argv.remove("diag2")
    mode = sys.argv[1] if len(sys.argv) > 1 else "one"
    dst = sys.argv[2] if len(sys.argv) > 2 else f"cdna_kernels/{NAME}.s"
    lo, hi = [int(x) for x in os.environ.get("PRIO", "13,0").split(",")]
    prio = [{(lo >> 2, lo & 3): 0, (hi >> 2, hi & 3): 2}, {}]
    open(dst, "w").write(build(mode, prio))
    print("wrote", dst)
```

```python
import sys, os, struct, math
from asmlib import Asm, v, s, check

NAME = "concat_heads__grouped_kv_mqa__grouped_kv_mqa__prompt"
VH = 304
STEPB = 1024 + 4*VH
BLK = 512 + 4*STEPB
KVB = 16*BLK
KVSTRIDE = 0x40000
OOFF = 0x100000
OBYTES = 2*2048*576*2
LDS_TOTAL = 163840
HB = 8*BLK
XKB = 12288; SLOT = 22528; SLOTA = [49152, 91136, 113664, 136192]; QS = 296; QX = LDS_TOTAL - 64*QS
WKVP = [HB + 6144, 0, 6144, HB]
SEENA = 71680
FOFF = 0x80000
FKV, FO, FEP = 0, 0x8000, 0x10000
TAGC = 0x9E3779B1
SPIN = 1 << 20
WOX = 36864
SCR0, SCR1 = 55296, 131072
SCALE = 18 ** -0.5 * math.log2(math.e)
def fbits(x): return struct.unpack("<I", struct.pack("<f", x))[0]
RX, RW, RKW, RKV, RO, ROUT, RDBG = 4, 8, 12, 16, 20, 24, 28
SB, SQB, SHG, SW = 32, 33, 34, 35
ST = 36
SEX = 48
SIT = 50; SFLAG = 51; SJJ = 52; SGRP = 53
PWO = 54
STAG = 74; SJ = 75; SWB, SXB, SLB, EXM = 56, 57, 58, 46
JUNK = 204
LANE = 1

DIAG = False
STAMP0 = 76
TIMER = "s_memtime" if os.environ.get("CLK") else "s_memrealtime"
STAMPS = {"start": 0, "issued": 1, "b0": 2, "qdone": 3, "kv1": 4, "loop": 5, "epi": 6, "oseen": 7, "omfma": 8}
if os.environ.get("STAMPS"):
    STAMPS = {"start": 0}
    for i, n in enumerate(os.environ["STAMPS"].split(",")): STAMPS[n] = i + 1
def stamp(a, n):
    if DIAG and n in STAMPS: a(f"{TIMER} {s(STAMP0 + 2*STAMPS[n], 2)}")
def stamp_out(a, kidx):
    if not DIAG: return
    a(f"{TIMER} s[94:95]", "s_waitcnt lgkmcnt(0)", "s_mov_b64 exec, -1")
    if DIAG == 2:
        srd(a, RDBG, 68, 256)
        a(f"v_lshlrev_b32 v250, 2, {v(LANE)}", f"s_not_b32 s3, {s(STAMP0)}", "v_mov_b32 v251, s3")
        for i in range(10): a(f"v_writelane_b32 v251, {s(STAMP0 + 2*i)}, {i+1}")
        for n, i in enumerate((2, 3, 4, 5, 7)): a(f"s_not_b32 s3, {s(STAMP0 + 2*i)}", f"v_writelane_b32 v251, s3, {11+n}")
        a(f"s_and_b32 s3, {s(SW)}, 3", "s_cmp_eq_u32 s3, 0", f"s_cbranch_scc0 L_dg{a.uid}", "s_mov_b32 exec_lo, 0xffff", "s_mov_b32 exec_hi, 0", f"buffer_atomic_umax v251, v250, {s(RDBG,4)}, 0 offen sc1")
        a.label(f"L_dg{a.uid}"); a.uid += 1
        return
    a(f"s_add_u32 s72, s70, {0x800000 + kidx*0x40000}", "s_addc_u32 s73, s71, 0")
    srd(a, RDBG, 72, 0x40000)
    a("s_lshl_b32 s3, s2, 3", f"s_add_u32 s3, s3, {s(SW)}", "s_lshl_b32 s3, s3, 6", "v_mov_b32 v250, 0")
    for i in range(10):
        a(f"v_mov_b32 v251, {s(STAMP0 + 2*i)}", f"buffer_store_dword v251, v250, {s(RDBG,4)}, s3 offen offset:{4*i}")

def srd(a, r, ptr, size):
    a(f"s_mov_b32 {s(r)}, {s(ptr)}", f"s_mov_b32 {s(r+1)}, {s(ptr+1)}", f"s_mov_b32 {s(r+2)}, {size}", f"s_mov_b32 {s(r+3)}, 0x20000")

CODE_LINES = 6
def setup(a, endlabel):
    a(f"s_cmp_ge_u32 s2, 256", f"s_cbranch_scc1 {endlabel}")
    if DIAG:
        for i in range(1, 10): a(f"s_mov_b32 {s(STAMP0+2*i)}, 0")
    stamp(a, "start")
    a(f"s_and_b32 {s(SB)}, s2, 1", f"s_mul_i32 s3, {s(SB)}, 40", "s_add_u32 s56, s0, s3", "s_addc_u32 s57, s1, 0")
    a("s_load_dwordx4 s[60:63], s[56:57], 0", "s_load_dwordx2 s[70:71], s[0:1], 96", "s_load_dwordx4 s[64:67], s[56:57], 16", f"s_load_dwordx2 {s(PWO,2)}, s[56:57], 32",
      "s_load_dwordx2 s[72:73], s[0:1], 80")
    if DIAG: a("s_load_dwordx2 s[68:69], s[0:1], 88")
    a(f"v_lshrrev_b32 v2, 6, v0", f"v_and_b32 {v(LANE)}, 63, v0")
    if CODE_LINES:
        a(f"s_getpc_b64 {s(ROUT,2)}")
        a.label("L_pc")
        a(f"s_mov_b32 {s(ROUT+2)}, L_code_end-L_pc", f"s_mov_b32 {s(ROUT+3)}, 0x20000", "s_lshr_b32 s3, s2, 3", f"s_mul_i32 s3, s3, {CODE_LINES*128}", "v_lshlrev_b32 v3, 7, v0",
          f"v_cmp_gt_u32 vcc, {CODE_LINES}, v0", f"v_readfirstlane_b32 {s(SW)}, v2", f"s_and_saveexec_b64 {s(SEX,2)}, vcc", "s_cbranch_execz L_nocode",
          f"buffer_load_dword {v(JUNK+1)}, v3, {s(ROUT,4)}, s3 offen")
        a.label("L_nocode")
        a("s_mov_b64 exec, -1")
    else: a("s_nop 0", f"v_readfirstlane_b32 {s(SW)}, v2")
    a(f"s_bfe_u32 s3, s2, 0x20001", f"s_lshl_b32 s3, s3, 3", f"s_lshr_b32 {s(SQB)}, s2, 5", f"s_add_u32 {s(SQB)}, {s(SQB)}, s3", f"s_bfe_u32 {s(SHG)}, s2, 0x20003")

def setup_srd_early(a):
    a("s_waitcnt lgkmcnt(0)")
    stamp(a, "args")
    srd(a, RX, 60, 2048*1152)
    a(f"s_add_u32 {s(RDBG)}, s70, {FOFF}", f"s_addc_u32 {s(RDBG+1)}, s71, 0", f"s_mov_b32 {s(RDBG+2)}, 0x10100", f"s_mov_b32 {s(RDBG+3)}, 0x20000")
def setup_srd_mid(a):
    srd(a, RW, 62, 576*1152)
    a(f"s_bitcmp1_b32 {s(SHG)}, 0", f"s_cselect_b64 {s(RKW,2)}, s[66:67], s[64:65]", f"s_mov_b32 {s(RKW+2)}, {576*36}", f"s_mov_b32 {s(RKW+3)}, 0x20000")
def setup_late(a):
    a(f"s_and_b32 s3, {s(SQB)}, 1", f"s_lshl_b32 s3, s3, 2", f"s_add_u32 {s(SJJ)}, s3, {s(SHG)}")
    a(f"s_lshr_b32 s3, {s(SQB)}, 1", f"s_lshl_b32 {s(SGRP)}, {s(SB)}, 4", f"s_add_u32 {s(SGRP)}, {s(SGRP)}, s3")
    a(f"s_lshl_b32 s3, {s(SB)}, 18", f"s_add_u32 {s(RKV)}, s70, s3", f"s_addc_u32 {s(RKV+1)}, s71, 0", f"s_mov_b32 {s(RKV+2)}, {KVB}", f"s_mov_b32 {s(RKV+3)}, 0x20000")
    a(f"s_add_u32 {s(RO)}, s70, {OOFF}", f"s_addc_u32 {s(RO+1)}, s71, 0", f"s_mov_b32 {s(RO+2)}, {OBYTES}", f"s_mov_b32 {s(RO+3)}, 0x20000")
    srd(a, ROUT, 72, OBYTES)

def dma(a, vaddr, r, soff, ldsaddr_s=None, ldsaddr=None, flags=""):
    if ldsaddr_s is not None: a(f"s_mov_b32 m0, {s(ldsaddr_s)}")
    else: a(f"s_mov_b32 m0, {ldsaddr}")
    a("s_nop 0", f"buffer_load_dwordx4 {v(vaddr)}, {s(r,4)}, {soff} offen{flags} lds")

ACA, ACB, ACC2 = 16, 32, 48
FR = [64, 112]
XF, WF = 64, 80
X16, W16 = [96, 112], [104, 120]
AX, AXB, AW, AX16, AX16T, AWR, AWK, APT, DW, DX3, TAGV = 160, 164, 168, 169, 171, 173, 174, 175, 176, 179, 180
AXH, AWH, AWRH, AXK = 184, 188, 189, 192

def swz_row(a, dst, row, sel, tmp):
    a(f"v_bfe_u32 {v(tmp)}, {v(row)}, 1, 3", f"v_xor_b32 {v(tmp)}, {v(tmp)}, {v(sel)}", f"v_lshlrev_b32 {v(tmp)}, 4, {v(tmp)}",
      f"v_lshl_add_u32 {v(dst)}, {v(row)}, 7, {v(tmp)}")

def wrap9(a, r):
    a(f"s_cmp_ge_u32 {s(r)}, 9", f"s_cselect_b32 s3, 9, 0", f"s_sub_u32 {s(r)}, {s(r)}, s3")

def chunk_dma(a, n):
    sl = SLOTA[n & 3]
    ld = lambda vr, R, so: f"buffer_load_dwordx4 {v(vr)}, {s(R,4)}, {s(so)} offen lds"
    a(f"s_mul_i32 {s(ST+8)}, {s(SJ)}, {64*1152}", f"s_add_u32 m0, {s(SLB)}, {sl}", f"s_add_u32 {s(ST+8)}, {s(ST+8)}, {s(SWB)}", ld(DW, RW, ST+8))
    a(f"s_add_u32 m0, {s(SLB)}, {sl + 4096}", f"s_add_u32 {s(ST+9)}, {s(ST+8)}, {32*1152}", ld(DW+1, RW, ST+8))
    a(f"s_add_u32 m0, {s(SLB+1)}, {sl}", f"s_mov_b64 exec, {s(EXM,2)}", ld(DW+2, RW, ST+8), "s_mov_b64 exec, -1")
    a(f"s_add_u32 m0, {s(SLB)}, {sl + 9216}", f"s_lshl_b32 {s(ST+8)}, {s(SJ)}, 7", ld(DW, RW, ST+9))
    a(f"s_add_u32 m0, {s(SLB)}, {sl + 13312}", f"s_add_u32 {s(ST+8)}, {s(ST+8)}, {s(SXB)}", ld(DW+1, RW, ST+9))
    a(f"s_add_u32 m0, {s(SLB)}, {sl + 18432}", f"s_add_u32 {s(SJ)}, {s(SJ)}, 1", ld(DX3, RX, ST+8))
    a(f"s_cmp_ge_u32 {s(SJ)}, 9", f"s_cselect_b32 {s(SJ)}, 0, {s(SJ)}")

def w_pattern(a, dst, base_s):
    a(f"v_add_u32 v3, {s(base_s)}, {v(LANE)}", f"v_mul_u32_u24 v4, 3641, v3", "v_lshrrev_b32 v4, 16, v4", "v_mad_i32_i24 v3, v4, -16, v3", "v_mad_i32_i24 v3, v4, -2, v3",
      "v_bfe_u32 v5, v4, 1, 2", "v_and_or_b32 v5, v4, 56, v5", "v_and_b32 v4, 1, v4", "v_lshl_or_b32 v5, v4, 2, v5", "v_lshlrev_b32 v3, 4, v3", f"v_mad_u32_u24 {v(dst)}, v5, {s(ST+7)}, v3")

def x_pattern(a, dst, par):
    L = v(LANE)
    a(f"v_lshrrev_b32 v3, 3, {L}", f"v_lshrrev_b32 v4, 4, {L}", f"v_xor_b32 v4, {par}, v4", f"v_xor_b32 v4, v4, {L}", "v_and_b32 v4, 7, v4", "v_lshlrev_b32 v4, 4, v4", f"v_mad_u32_u24 {v(dst)}, v3, {s(ST+7)}, v4")

def rotation(a):
    a(f"s_and_b32 {s(SJ)}, {s(SQB)}, 7", f"s_and_b32 s3, {s(SHG)}, 1", "s_lshl_b32 s3, s3, 2", f"s_add_u32 {s(SJ)}, {s(SJ)}, s3"); wrap9(a, SJ)
    if os.environ.get("NOROT"): a(f"s_mov_b32 {s(SJ)}, 0")
    a(f"s_movk_i32 {s(ST+7)}, 1152", f"s_lshl_b32 {s(ST)}, {s(SB)}, 7", f"s_add_u32 {s(ST)}, {s(ST)}, {FEP}", f"v_mov_b32 {v(TAGV)}, 0")

def issue_role0(a):
    L = v(LANE)
    a("s_setprio 1")
    rotation(a)
    x_pattern(a, 14, "0"); a("v_xor_b32 v15, 64, v14")
    for i in range(3):
        a(f"v_add_u32 v3, {64*i}, {L}" if i else f"v_mov_b32 v3, {L}")
        a("v_mul_u32_u24 v4, 0x5556, v3", "v_lshrrev_b32 v4, 16, v4", "v_lshlrev_b32 v3, 4, v3", f"v_mad_i32_i24 {v(11+i)}, v4, -12, v3")
    a(f"s_lshr_b32 s3, {s(SHG)}, 1", f"s_lshl_b32 {s(ST+1)}, {s(SQB)}, 1", f"s_add_u32 {s(ST+1)}, {s(ST+1)}, s3", f"s_mul_i32 {s(ST+1)}, {s(ST+1)}, {32*1152}",
      f"s_add_u32 s3, {s(SW)}, 3", f"s_and_b32 {s(ST+5)}, s3, 1", f"s_mul_i32 {s(ST+5)}, {s(ST+5)}, 6144", "s_bitcmp1_b32 s3, 1", f"s_cselect_b32 s3, {HB}, 0",
      f"s_add_u32 {s(ST+5)}, {s(ST+5)}, s3", f"s_lshl_b32 {s(ST+6)}, {s(SW)}, 12")
    if TOUCH:
        a(f"s_lshl_b32 {s(ST+2)}, {s(SQB)}, 2", f"s_add_u32 {s(ST+2)}, {s(ST+2)}, {s(SHG)}", f"s_lshl_b32 {s(ST+2)}, {s(ST+2)}, 2", f"s_add_u32 {s(ST+2)}, {s(ST+2)}, {s(SW)}", f"s_mul_i32 {s(ST+2)}, {s(ST+2)}, {36*128}", f"v_lshlrev_b32 v2, 7, {L}")
    setup_srd_early(a)
    if TOUCH: a("s_mov_b32 exec_hi, 0xf", f"buffer_load_dword {v(JUNK)}, v2, {s(RX,4)}, {s(ST+2)} offen", "s_mov_b32 exec_hi, -1")
    setup_srd_mid(a)
    def pos(dn, xl, wl):
        a(f"s_add_u32 {s(ST+2)}, {s(SJ)}, {dn}"); wrap9(a, ST+2)
        a(f"s_lshl_b32 {s(ST+3)}, {s(ST+2)}, 7", f"s_add_u32 {s(ST+3)}, {s(ST+3)}, {s(ST+1)}", f"s_mul_i32 {s(ST+4)}, {s(ST+2)}, {64*36}")
        for g in range(4):
            a(f"s_add_u32 m0, {s(ST+6)}, {XKB + xl + g*1024}", f"s_add_u32 s3, {s(ST+3)}, {g*8*1152}", f"buffer_load_dwordx4 {v(14 + (g & 1))}, {s(RX,4)}, s3 offen lds")
        for i in range(3):
            a(f"s_add_u32 m0, {s(ST+5)}, {wl + i*1024}", "s_nop 0", f"buffer_load_dwordx4 {v(11+i)}, {s(RKW,4)}, {s(ST+4)} offen lds")
    a(f"buffer_load_dword {v(TAGV)}, {v(TAGV)}, {s(RDBG,4)}, {s(ST)} offen sc1")
    a(f"s_cmp_eq_u32 {s(SW)}, 0", "s_cbranch_scc0 L_nop8")
    pos(8, 8*4096, 6144)
    a.label("L_nop8")
    a(f"s_add_u32 {s(SJ)}, {s(SJ)}, {s(SW)}"); wrap9(a, SJ)
    pos(0, 0, 0); pos(4, 4*4096, 3072)
    a("s_setprio 0")

TOUCH = int(os.environ.get("TOUCH", 0)); PRE = int(os.environ.get("PRE", 2))
def issue_role1(a):
    rotation(a)
    if TOUCH:
        a(f"s_lshr_b32 {s(ST+2)}, s2, 3", f"s_mul_i32 {s(ST+2)}, {s(ST+2)}, 162", f"s_and_b32 s3, {s(SW)}, 3", "s_mul_i32 s3, s3, 41", f"s_add_u32 {s(ST+2)}, {s(ST+2)}, s3", f"s_lshl_b32 {s(ST+2)}, {s(ST+2)}, 7", f"v_lshlrev_b32 v2, 7, {v(LANE)}")
        setup_srd_early(a); setup_srd_mid(a)
        a("s_mov_b32 exec_hi, 0x1ff", f"buffer_load_dword {v(JUNK)}, v2, {s(RW,4)}, {s(ST+2)} offen", "s_mov_b32 exec_hi, -1")
    a(f"s_and_b32 {s(ST+6)}, {s(SW)}, 3", f"s_and_b32 {s(ST+5)}, {s(SW)}, 1", f"s_lshl_b32 {s(ST+4)}, {s(ST+5)}, 2")
    x_pattern(a, DX3, s(ST+4))
    a(f"s_lshr_b32 s3, {s(SHG)}, 1", "s_xor_b32 s3, s3, 1", f"s_lshl_b32 {s(ST+1)}, {s(SQB)}, 1", f"s_add_u32 {s(ST+1)}, {s(ST+1)}, s3", f"s_lshl_b32 {s(ST+1)}, {s(ST+1)}, 2",
      f"s_add_u32 {s(ST+1)}, {s(ST+1)}, {s(ST+6)}", f"s_lshl_b32 {s(ST+2)}, {s(ST+6)}, 6")
    w_pattern(a, DW, ST+2)
    a(f"s_add_u32 {s(ST+2)}, {s(ST+2)}, 256")
    w_pattern(a, DW+1, ST+2)
    a(f"s_mul_i32 {s(ST+2)}, {s(ST+5)}, 576", f"s_add_u32 {s(ST+2)}, {s(ST+2)}, 512")
    w_pattern(a, DW+2, ST+2)
    if not TOUCH: setup_srd_early(a); setup_srd_mid(a)
    a(f"s_mul_i32 {s(SXB)}, {s(ST+1)}, {8*1152}", f"s_mul_i32 {s(SWB)}, {s(SHG)}, 288", f"s_lshl_b32 {s(SLB)}, {s(ST+6)}, 10", f"s_lshl_b32 {s(SLB+1)}, {s(ST+2)}, 4",
      f"s_cmp_ge_u32 {s(SW)}, 6", f"s_cselect_b64 {s(EXM,2)}, 1, -1")
    a(f"buffer_load_dword {v(TAGV)}, {v(TAGV)}, {s(RDBG,4)}, {s(ST)} offen sc1")
    for n in range(PRE): chunk_dma(a, n)

def lane_fields(a):
    L = v(LANE)
    a(f"v_lshrrev_b32 v6, 5, {L}", f"v_bfe_u32 v7, {L}, 4, 1", f"v_bfe_u32 v8, {L}, 2, 2", f"v_and_b32 v9, 3, {L}", f"v_and_b32 v10, 31, {L}")

def addr_main(a):
    a(f"s_lshl_b32 {s(ST)}, {s(SW)}, 12")
    for r in range(4):
        a(f"v_add_u32 v11, {2*r}, v6")
        swz_row(a, AX+r, 10, 11, 12)
        a(f"v_add_u32 {v(AXK+r)}, {s(ST)}, {v(AX+r)}")
    a("v_lshlrev_b32 v11, 3, v9", "v_and_b32 v12, 1, v9", "v_lshlrev_b32 v12, 4, v12", "v_lshrrev_b32 v13, 1, v9", "v_lshl_add_u32 v12, v13, 3, v12")
    a(f"s_bitcmp1_b32 {s(SHG)}, 0", "s_cselect_b64 vcc, -1, 0", "v_cndmask_b32 v11, v12, v11, vcc")
    a("v_cmp_eq_u32 vcc, 1, v7", "v_lshl_add_u32 v12, v6, 3, v8", f"v_lshl_add_u32 {v(APT)}, {v(LANE)}, 4, {s(ST+5)}", "v_cndmask_b32 v11, v11, 32, vcc")
    a("v_mad_u32_u24 v11, v12, 48, v11", f"v_add_u32 {v(AWK)}, {s(ST+5)}, v11")
    for r in range(16): a(f"v_mov_b32 {v(ACA+r)}, 0")
def addr_main2(a):
    for r in range(4): a(f"v_add_u32 {v(AXB+r)}, {SLOTA[0] + 18432}, {v(AX+r)}", f"v_add_u32 {v(AXH+r)}, {SLOTA[3] + 18432}, {v(AX+r)}")
    a(f"s_lshl_b32 s3, {s(SW)}, 6", f"s_add_u32 s3, s3, {SLOTA[0]}", "v_lshl_add_u32 v11, v7, 5, s3", "v_lshl_add_u32 v11, v9, 3, v11",
      "v_lshl_add_u32 v12, v6, 2, v8", f"s_movk_i32 s3, 576", f"v_mad_u32_u24 {v(AW)}, v12, s3, v11", f"v_add_u32 {v(AWH)}, {SLOTA[2] - SLOTA[0]}, {v(AW)}")

def addr_rem(a):
    L = v(LANE)
    a(f"v_and_b32 v11, 15, {L}", f"s_and_b32 {s(ST)}, {s(SW)}, 1", f"s_lshl_b32 {s(ST)}, {s(ST)}, 4", f"v_add_u32 v11, {s(ST)}, v11", f"v_lshrrev_b32 v13, 4, {L}")
    for s2 in range(2):
        a(f"v_add_u32 v14, {4*s2}, v13")
        swz_row(a, AX16+s2, 11, 14, 12)
    a("v_lshl_add_u32 v12, v13, 2, v8", "v_lshlrev_b32 v14, 3, v9", f"v_add_u32 v14, {SLOTA[0] + 256}, v14", f"s_movk_i32 s3, 576", f"v_mad_u32_u24 {v(AWR)}, v12, s3, v14",
      f"v_add_u32 {v(AWRH)}, {SLOTA[2] - SLOTA[0]}, {v(AWR)}")

def kv_compute(a):
    def block(typ, xl, wl, cnt, F):
        a(f"s_waitcnt vmcnt({cnt})")
        for st in range(4):
            a(f"ds_read_b128 {v(F+XF+4*st,4)}, {v(AXK+st)} offset:{XKB + xl}",
              f"ds_read_b64_tr_b16 {v(F+WF+4*st,2)}, {v(AWK)} offset:{wl + st*768}", f"ds_read_b64_tr_b16 {v(F+WF+4*st+2,2)}, {v(AWK)} offset:{wl + st*768 + 192}")
        for st in range(4):
            A, B = (F+WF+4*st, F+XF+4*st) if typ == "K" else (F+XF+4*st, F+WF+4*st)
            a(f"s_waitcnt lgkmcnt({9-3*st})", f"v_mfma_f32_32x32x16_bf16 {v(ACA,16)}, {v(A,4)}, {v(B,4)}, {v(ACA,16)}")
    for typ in ("K", "V"):
        if typ == "K": a(f"s_bitcmp1_b32 {s(SHG)}, 0", "s_cbranch_scc1 L_kvV")
        else: a.label("L_kvV")
        a(f"s_cmp_eq_u32 {s(SW)}, 0", f"s_cbranch_scc0 L_kv2{typ}")
        block(typ, 8*4096, 6144, 14, 64)
        a.label(f"L_kv2{typ}")
        block(typ, 0, 0, 7, 0); block(typ, 4*4096, 3072, 0, 32)
        if typ == "K": a("s_branch L_kvD")
    a.label("L_kvD")

def kv_finalize(a):
    L = v(LANE); T = FR[1]
    a(f"s_cmp_ge_u32 {s(SW)}, 2", "s_cbranch_scc1 L_kvF")
    a(f"s_lshl_b32 {s(ST)}, {s(SW)}, 11", f"v_lshl_add_u32 v11, {L}, 4, {s(ST)}", f"v_add_u32 v12, {HB}, v11")
    for q in range(2):
        for p in range(4): a(f"ds_read_b128 {v(T+16*q+4*p,4)}, {'v12' if WKVP[p] >= HB else 'v11'} offset:{WKVP[p] % HB + q*1024}")
    a(f"s_lshr_b32 {s(ST)}, {s(SHG)}, 1", f"s_lshl_b32 {s(ST+1)}, {s(SQB)}, 1", f"s_add_u32 {s(ST)}, {s(ST)}, {s(ST+1)}",
      f"s_lshr_b32 {s(ST+1)}, {s(ST)}, 2", f"s_mul_i32 {s(ST+1)}, {s(ST+1)}, {BLK}", f"s_and_b32 {s(ST)}, {s(ST)}, 3",
      f"s_mul_i32 {s(ST+3)}, {s(ST)}, {STEPB}", f"s_add_u32 {s(ST+3)}, {s(ST+3)}, {s(ST+1)}", f"s_add_u32 {s(ST+3)}, {s(ST+3)}, 512")
    a(f"s_bitcmp1_b32 {s(SHG)}, 0", "s_cbranch_scc1 L_kvFV")
    def red(scale):
        for q in range(2):
            B = T + 16*q
            a(f"s_waitcnt lgkmcnt({6-4*q})")
            for r in (0, 2): a(f"v_pk_add_f32 {v(B+r,2)}, {v(B+r,2)}, {v(B+4+r,2)}")
            a(f"s_waitcnt lgkmcnt({4-4*q})")
            for r in (0, 2): a(f"v_pk_add_f32 {v(B+8+r,2)}, {v(B+8+r,2)}, {v(B+12+r,2)}")
            for r in (0, 2): a(f"v_pk_add_f32 {v(B+r,2)}, {v(B+r,2)}, {v(B+8+r,2)}")
            if scale:
                for r in range(4): a(f"v_mul_f32 {v(B+r)}, {s(ST+4)}, {v(B+r)}")
            for r in range(2): a(f"v_cvt_pk_bf16_f32 {v(T+32+2*q+r)}, {v(B+2*r)}, {v(B+2*r+1)}")
    a("v_and_b32 v11, 0x13, v10", "v_bfe_u32 v12, v10, 2, 1", "v_lshl_or_b32 v11, v12, 3, v11", "v_bfe_u32 v12, v10, 3, 1", "v_lshl_or_b32 v11, v12, 2, v11", f"s_mov_b32 {s(ST+4)}, {fbits(SCALE)}")
    red(True)
    a(f"s_cmp_eq_u32 {s(SW)}, 1", "s_cbranch_scc1 L_kvK2")
    a("v_lshl_add_u32 v11, v6, 5, v11", "v_lshlrev_b32 v11, 4, v11", f"buffer_store_dwordx4 {v(T+32,4)}, v11, {s(RKV,4)}, {s(ST+3)} offen sc1", "s_branch L_kvF")
    a.label("L_kvK2")
    a("v_lshlrev_b32 v11, 2, v11", f"s_lshl_b32 {s(ST)}, {s(ST)}, 7", f"s_add_u32 {s(ST+1)}, {s(ST+1)}, {s(ST)}",
      "s_mov_b32 exec_hi, 0", f"buffer_store_dword {v(T+32)}, v11, {s(RKV,4)}, {s(ST+1)} offen sc1", "s_mov_b64 exec, -1", "s_branch L_kvF")
    a.label("L_kvFV")
    a("v_cmp_eq_u32 vcc, 18, v10", "v_mov_b32 v12, 0x3f803f80", f"s_movk_i32 {s(ST)}, {VH}", "v_lshlrev_b32 v11, 4, v10", f"v_mad_u32_u24 v11, v6, {s(ST)}, v11",
      f"s_mul_i32 {s(ST+2)}, {s(SW)}, {2*VH}", f"s_add_u32 {s(ST+3)}, {s(ST+3)}, {s(ST+2)}")
    red(False)
    for r in range(4): a(f"v_cndmask_b32 {v(T+32+r)}, {v(T+32+r)}, v12, vcc")
    a("s_mov_b32 exec_lo, 0x7ffff", "s_mov_b32 exec_hi, 0x7ffff", f"buffer_store_dwordx4 {v(T+32,4)}, v11, {s(RKV,4)}, {s(ST+3)} offen offset:1024 sc1", "s_mov_b64 exec, -1")
    a.label("L_kvF")

def main_reads(n, st):
    F = FR[n & 1] + 12*st; sl = (n & 3)
    aw, o = (AW, SLOTA[sl] - SLOTA[0] + st*4608) if sl < 2 else (AWH, SLOTA[sl] - SLOTA[2] + st*4608)
    return [f"ds_read_b64_tr_b16 {v(F+8,2)}, {v(aw)} offset:{o}", f"ds_read_b64_tr_b16 {v(F+10,2)}, {v(aw)} offset:{o+288}",
            f"ds_read_b128 {v(F,4)}, {v(AX+st)} offset:{XKB + n*4096}",
            f"ds_read_b128 {v(F+4,4)}, {v(AXB+st)} offset:{SLOTA[sl] - SLOTA[0]}" if sl < 3 else f"ds_read_b128 {v(F+4,4)}, {v(AXH+st)}"]
def main_mfma(n, st):
    F = FR[n & 1] + 12*st; z = (n == 0 and st == 0)
    return [f"v_mfma_f32_32x32x16_bf16 {v(ACA,16)}, {v(F+8,4)}, {v(F,4)}, {'0' if z else v(ACA,16)}", f"v_mfma_f32_32x32x16_bf16 {v(ACB,16)}, {v(F+8,4)}, {v(F+4,4)}, {'0' if z else v(ACB,16)}"]
def rem_reads(a, n):
    sl = n & 3
    a(f"s_mov_b32 s3, {XKB + n*4096}", f"s_cmp_ge_u32 {s(SW)}, 6", f"s_cselect_b32 s3, {SLOTA[sl] + 18432}, s3")
    for s2 in range(2): a(f"v_add_u32 {v(AX16T+s2)}, s3, {v(AX16+s2)}")
    aw, o = (AWR, SLOTA[sl] - SLOTA[0]) if sl < 2 else (AWRH, SLOTA[sl] - SLOTA[2])
    for s2 in range(2):
        a(f"ds_read_b128 {v(X16[n&1]+4*s2,4)}, {v(AX16T+s2)}",
          f"ds_read_b64_tr_b16 {v(W16[n&1]+4*s2,2)}, {v(aw)} offset:{o + s2*9216}", f"ds_read_b64_tr_b16 {v(W16[n&1]+4*s2+2,2)}, {v(aw)} offset:{o + s2*9216 + 288}")
def rem_mfma(a, n):
    for s2 in range(2):
        a(f"v_mfma_f32_16x16x32_bf16 {v(ACC2,4)}, {v(W16[n&1]+4*s2,4)}, {v(X16[n&1]+4*s2,4)}, {'0' if (n == 0 and s2 == 0) else v(ACC2,4)}")

def flag_store(a, base_s):
    a(f"v_mov_b32 v11, {s(STAG)}", "v_mov_b32 v12, 0", "s_mov_b32 exec_lo, 1", "s_mov_b32 exec_hi, 0", f"buffer_store_dword v11, v12, {s(RDBG,4)}, {s(base_s)} offen sc1", "s_mov_b64 exec, -1")

def poll(a, uid, base_s, nloads, mask=None):
    a(f"v_lshlrev_b32 v11, 7, {v(LANE)}", "v_add_u32 v12, 0x2000, v11", f"s_mov_b32 {s(SIT)}, 0")
    if mask: a(f"s_mov_b32 exec_lo, {mask}", "s_mov_b32 exec_hi, 0")
    a.label(f"L_poll{uid}")
    for i in range(nloads): a(f"buffer_load_dword {v(13+i)}, {v(11+i)}, {s(RDBG,4)}, {s(base_s)} offen sc1")
    a(f"s_add_u32 {s(SIT)}, {s(SIT)}, 1", f"s_cmp_gt_u32 {s(SIT)}, {SPIN}", f"s_cbranch_scc1 L_polld{uid}", "s_waitcnt vmcnt(0)")
    a(f"v_cmp_ne_u32 vcc, {s(STAG)}, v13")
    if nloads == 2: a(f"v_cmp_ne_u32 {s(SEX,2)}, {s(STAG)}, v14", "s_nop 0", f"s_or_b64 vcc, vcc, {s(SEX,2)}")
    else: a("s_nop 4")
    a(f"s_cbranch_vccnz L_poll{uid}")
    a.label(f"L_polld{uid}")
    a("s_waitcnt vmcnt(0)", "s_mov_b64 exec, -1")

KVFLAG_AT = int(os.environ.get("KVF", 2))
SEENV = 196
def seen_to_sgpr(a):
    a(f"v_and_b32 {v(SEENV)}, {v(SEENV)}, {v(SEENV+1)}", f"v_and_b32 {v(SEENV+2)}, {v(SEENV+2)}, {v(SEENV+3)}", f"v_and_b32 {v(SEENV)}, {v(SEENV)}, {v(SEENV+2)}", "s_nop 0",
      f"v_readfirstlane_b32 {s(SFLAG)}, {v(SEENV)}", "s_nop 0")
def kv_stage1(a):
    a(f"v_lshlrev_b32 v15, 4, {v(LANE)}")
    for hh in range(2):
        for i in range(3): a(f"s_add_u32 s3, {s(SLB)}, {hh*HB + i*4096}", "s_mov_b32 m0, s3", "s_nop 0", f"buffer_load_dwordx4 v15, {s(RKV,4)}, s3 offen sc1 lds")

def prologue(a):
    a(f"s_cmp_ge_u32 {s(SW)}, 4", "s_cbranch_scc1 L_role1")
    for role in (0, 1):
        if role == 1: a.label("L_role1")
        (issue_role0 if role == 0 else issue_role1)(a)
        stamp(a, "issued")
        lane_fields(a)
        if role == 0:
            addr_main(a)
            kv_compute(a)
            stamp(a, "kvc")
            setup_late(a)
            for qd in range(4): a(f"ds_write_b128 {v(APT)}, {v(ACA+4*qd,4)} offset:{qd*1024}")
            a(f"v_readfirstlane_b32 {s(STAG)}, {v(TAGV)}", "s_waitcnt lgkmcnt(0)", "s_barrier")
            stamp(a, "bk")
            kv_finalize(a)
            stamp(a, "kvst")
            addr_main2(a)
            a("s_barrier")
        else:
            setup_late(a); addr_rem(a)
            a("s_barrier")
            stamp(a, "bk")
            for m in range(PRE, 3): chunk_dma(a, m)
            a(f"s_waitcnt vmcnt(12)", f"v_readfirstlane_b32 {s(STAG)}, {v(TAGV)}", "s_barrier")
        a(f"s_add_u32 {s(STAG)}, {s(STAG)}, {TAGC}")
        stamp(a, "b0")
        for n in range(9):
            if role == 0:
                if n == KVFLAG_AT:
                    a(f"s_cmp_eq_u32 {s(SW)}, 0", "s_cbranch_scc0 L_nokvf", f"s_lshl_b32 {s(ST)}, {s(SQB)}, 2", f"s_add_u32 {s(ST)}, {s(ST)}, {s(SHG)}", f"s_lshl_b32 s3, {s(SB)}, 7", f"s_add_u32 {s(ST)}, {s(ST)}, s3", f"s_lshl_b32 {s(ST)}, {s(ST)}, 7")
                    flag_store(a, ST)
                    a.label("L_nokvf")
                    stamp(a, "kvflag")
                if n == 8: a(f"v_mov_b32 v13, {SEENA}", f"ds_read_b128 {v(SEENV,4)}, v13")
                if n == 0:
                    for st in range(4):
                        if st == 3: a("s_waitcnt lgkmcnt(8)")
                        a(main_reads(n, st))
                else:
                    M = sum((main_mfma(n-1, st) for st in range(4)), [])
                    R = sum((main_reads(n, st) for st in range(4)), [])
                    a(M[0], R[0:3], M[1], R[3:6], M[2], R[6:9], M[3], R[9:12], M[4], "s_waitcnt lgkmcnt(8)", R[12:16], M[5], M[6], M[7])
                    if n == 8: seen_to_sgpr(a)
                if n < 8:
                    stamp(a, f"w{n+1}")
                    a("s_waitcnt vmcnt(0) lgkmcnt(0)" if n == KVFLAG_AT - 1 else "s_waitcnt lgkmcnt(0)")
            else:
                if n <= 5: chunk_dma(a, n+3)
                if n == 7:
                    a(f"s_lshl_b32 {s(ST+5)}, {s(SB)}, 2", f"s_add_u32 {s(ST+5)}, {s(ST+5)}, {s(SW)}", f"s_sub_u32 {s(ST+5)}, {s(ST+5)}, 4", f"s_lshl_b32 {s(ST+5)}, {s(ST+5)}, 12",
                      "v_lshlrev_b32 v11, 7, v10", f"buffer_load_dword v13, v11, {s(RDBG,4)}, {s(ST+5)} offen sc1")
                if n == 8:
                    a(f"v_mov_b32 v13, {SEENA}", f"ds_read_b128 {v(SEENV,4)}, v13", "s_waitcnt lgkmcnt(0)")
                    seen_to_sgpr(a)
                    a(f"s_cmp_eq_u32 {s(SFLAG)}, 0", "s_cbranch_scc1 L_nost1")
                    kv_stage1(a)
                    a.label("L_nost1")
                rem_reads(a, n)
                if n: rem_mfma(a, n-1)
                if n < 8:
                    stamp(a, f"w{n+1}")
                    a(f"s_waitcnt vmcnt({ {7: 0, 6: 6}.get(n, 12) }) lgkmcnt(0)")
                if n == 7:
                    a(f"v_cmp_ne_u32 vcc, {s(STAG)}, v13", f"s_lshl_b32 s3, {s(SW)}, 2", f"s_add_u32 s3, s3, {SEENA - 16}", "v_mov_b32 v12, s3", "s_cmp_eq_u64 vcc, 0", "s_cselect_b32 s3, 1, 0",
                      "v_mov_b32 v13, s3", "ds_write_b32 v12, v13", "s_waitcnt lgkmcnt(0)")
            if n < 8:
                stamp(a, f"x{n+1}")
                a("s_barrier")
                stamp(a, f"b{n+1}")
        a(f"s_movk_i32 {s(ST+2)}, {QS}", f"s_lshr_b32 {s(ST)}, {s(SHG)}, 1")
        if role == 0:
            for st in range(4): a(f"s_waitcnt lgkmcnt({12-4*st})" if st else "s_waitcnt lgkmcnt(8)", main_mfma(8, st))
            a(f"s_mul_i32 {s(ST)}, {s(ST)}, {32*QS}", f"s_lshl_b32 {s(ST+1)}, {s(SW)}, 6", f"s_add_u32 {s(ST+1)}, {s(ST+1)}, {QX}", f"v_lshl_add_u32 v11, v6, 3, {s(ST+1)}", f"v_mad_u32_u24 v11, v10, {s(ST+2)}, v11",
              f"s_sub_u32 {s(ST+1)}, {32*QS}, {s(ST)}", f"v_add_u32 v12, {s(ST+1)}, v11", f"v_add_u32 v11, {s(ST)}, v11", "s_nop 2")
            for t, (acc, ad) in enumerate(((ACA, 11), (ACB, 12))):
                for q in range(4):
                    for r in (2*q, 2*q+1): a(f"v_cvt_pk_bf16_f32 {v(FR[1]+8*t+r)}, {v(acc+2*r)}, {v(acc+2*r+1)}")
                    a(f"ds_write_b64 {v(ad)}, {v(FR[1]+8*t+2*q,2)} offset:{16*q}")
        else:
            a("s_waitcnt lgkmcnt(0)")
            rem_mfma(a, 8)
            a(f"s_bfe_u32 {s(ST+1)}, {s(SW)}, 0x10001", f"s_xor_b32 {s(ST)}, {s(ST)}, {s(ST+1)}", f"s_lshl_b32 {s(ST)}, {s(ST)}, 1", f"s_and_b32 {s(ST+1)}, {s(SW)}, 1", f"s_add_u32 {s(ST)}, {s(ST)}, {s(ST+1)}",
              f"s_mul_i32 {s(ST)}, {s(ST)}, {16*QS}", f"s_add_u32 {s(ST)}, {s(ST)}, {QX + 256}", f"v_lshrrev_b32 v12, 4, {v(LANE)}", f"v_lshl_add_u32 v12, v12, 3, {s(ST)}",
              f"v_and_b32 v13, 15, {v(LANE)}", f"v_mad_u32_u24 v12, v13, {s(ST+2)}, v12")
            for r in range(2): a(f"v_cvt_pk_bf16_f32 {v(XF+r)}, {v(ACC2+2*r)}, {v(ACC2+2*r+1)}")
            a(f"ds_write_b64 v12, {v(XF,2)}")
        if role == 0: a("s_branch L_pro_done")
    a.label("L_pro_done")

def wait_kv(a):
    a(f"s_cmp_eq_u32 {s(SFLAG)}, 0", "s_cbranch_scc0 L_kvfast")
    a(f"s_cmp_ge_u32 {s(SW)}, 4", "s_cbranch_scc0 L_kvw0")
    poll(a, "kv", ST+5, 1, mask=0xffffffff)
    a("s_barrier")
    kv_stage1(a)
    a("s_branch L_kvfast")
    a.label("L_kvw0")
    a("s_barrier")
    a.label("L_kvfast")
    a(f"s_or_b32 s3, {s(SQB)}, {s(SHG)}", f"s_xor_b32 {s(ST+5)}, {s(SW)}, 3", f"s_or_b32 s3, s3, {s(ST+5)}", "s_cmp_eq_u32 s3, 0", "s_cbranch_scc0 L_kvseen", f"s_lshl_b32 {s(ST+5)}, {s(SB)}, 7", f"s_add_u32 {s(ST+5)}, {s(ST+5)}, {FEP}")
    flag_store(a, ST+5)
    a.label("L_kvseen")

IDX, AK1, AK2, AV = 2, 3, 4, 5
S = [16, 32, 48, 64]; O = [80, 96, 112, 128]; Q1 = [144, 148, 152, 156]; Q2 = [160, 164]
K1 = [168, 172]; K2 = 176; V = [[180, 184], [188, 192]]; MX = 196

def kv_piece(a, base, i):
    return [f"s_add_u32 s3, {s(base)}, {i*4096}", "s_mov_b32 m0, s3", "s_nop 0", f"buffer_load_dwordx4 v15, {s(RKV,4)}, s3 offen sc1 lds"]
def kv_stage2(a):
    a(f"s_lshr_b32 {s(ST+1)}, s2, 3", f"s_add_u32 {s(ST)}, {s(SLB)}, 12288", f"s_add_u32 {s(ST+2)}, {s(ST)}, {HB}")
    for i in range(16):
        a(f"s_and_b32 {s(ST+1)}, {s(ST+1)}, 15", f"s_lshl_b32 {s(ST+3)}, {s(ST+1)}, 12", f"s_add_u32 s3, {s(ST+3)}, {s(ST)}", "s_mov_b32 m0, s3", f"s_cmp_ge_u32 {s(ST+1)}, 13",
          f"buffer_load_dwordx4 v15, {s(RKV,4)}, s3 offen sc1 lds", f"s_cbranch_scc1 L_s2{i}", f"s_add_u32 s3, {s(ST+3)}, {s(ST+2)}", "s_mov_b32 m0, s3", "s_nop 0",
          f"buffer_load_dwordx4 v15, {s(RKV,4)}, s3 offen sc1 lds")
        a.label(f"L_s2{i}")
        a(f"s_add_u32 {s(ST+1)}, {s(ST+1)}, 1")
def kv_stage3(a):
    a(f"s_add_u32 {s(ST)}, {s(SLB)}, {HB}")
    for i in (16, 17, 18): a(kv_piece(a, ST, i))
def wo_touch(a):
    srd(a, RW, PWO, 576*1152)
    a(f"s_lshr_b32 s3, s2, 3", "s_mul_i32 s3, s3, 162", f"s_mul_i32 {s(ST+1)}, {s(SW)}, 21", f"s_add_u32 s3, s3, {s(ST+1)}", "s_lshl_b32 s3, s3, 7", f"v_lshlrev_b32 v14, 7, {v(LANE)}",
      "s_mov_b32 exec_lo, 0x1fffff", "s_mov_b32 exec_hi, 0", f"buffer_load_dword {v(JUNK)}, v14, {s(RW,4)}, s3 offen", "s_mov_b64 exec, -1")

def attn_addr(a):
    L = v(LANE)
    a(f"s_lshr_b32 {s(ST+2)}, {s(SW)}, 2", f"s_mul_i32 {s(ST+2)}, {s(ST+2)}, {8*BLK}")
    a(f"v_lshl_add_u32 {v(AK1)}, {L}, 4, {s(ST+2)}", f"v_lshl_add_u32 {v(AK2)}, v10, 2, {s(ST+2)}")
    a("v_and_b32 v11, 0x13, v10", "v_bfe_u32 v12, v10, 2, 1", "v_lshl_or_b32 v11, v12, 3, v11", "v_bfe_u32 v12, v10, 3, 1", "v_lshl_or_b32 v11, v12, 2, v11")
    a("v_mov_b32 v12, 0x4000", "v_cmp_lt_u32 vcc, 16, v10", "s_nop 1", "v_cndmask_b32 v11, v11, v12, vcc")
    a("v_cmp_eq_u32 vcc, 20, v10", "s_nop 1", "v_cndmask_b32 v11, v11, 17, vcc")
    a("v_and_b32 v12, 0x1b, v10", "v_cmp_eq_u32 vcc, 17, v12", "s_nop 1", "v_cndmask_b32 v11, v11, 18, vcc")
    a(f"s_movk_i32 {s(ST+3)}, {VH}", f"v_lshl_add_u32 v11, v11, 4, {s(ST+2)}", f"v_mad_u32_u24 {v(AV)}, v6, {s(ST+3)}, v11", f"v_mov_b32 {v(IDX)}, 0xdddddddd", f"v_lshlrev_b32 v15, 4, {L}")

QA = 196
def q_addr(a):
    a(f"s_and_b32 {s(ST+3)}, {s(SW)}, 3", f"s_mul_i32 {s(ST+3)}, {s(ST+3)}, 72", f"s_add_u32 {s(ST+3)}, {s(ST+3)}, {QX}", f"s_movk_i32 {s(ST+4)}, {QS}",
      f"v_mov_b32 {v(QA)}, {s(ST+3)}", f"v_mad_u32_u24 {v(QA)}, v10, {s(ST+4)}, {v(QA)}", f"v_lshl_add_u32 {v(QA+1)}, v6, 4, {v(QA)}", f"v_add_u32 {v(QA+2)}, {32*QS}, {v(QA+1)}", f"v_mad_u32_u24 {v(QA)}, v6, 36, {v(QA)}")
    for p in range(2): a(f"v_mov_b32 {v(Q2[p]+1)}, 0", f"v_mov_b32 {v(Q2[p]+2)}, 0")
def q_tile(t):
    base = QA + 1 + (t >> 1); o = 9*(t & 1)
    return [f"ds_read2_b32 {v(Q1[t],2)}, {v(base)} offset0:{o} offset1:{o+1}", f"ds_read2_b32 {v(Q1[t]+2,2)}, {v(base)} offset0:{o+2} offset1:{o+3}"]
def q_extra(p, odd): return [f"ds_read_b32 {v(Q2[p] + 3*odd)}, {v(QA)} offset:{32 + p*32*QS}"]

def E(t, x, y, sub):
    out = []
    for i in range(x, y):
        if sub: out.append(f"v_sub_f32 {v(S[t]+i)}, {v(S[t]+i)}, {v(MX+t)}")
        out.append(f"v_exp_f32 {v(S[t]+i)}, {v(S[t]+i)}")
    return out
pvhi = lambda t, vb: [f"v_smfmac_f32_32x32x32_bf16 {v(O[t],16)}, {v(V[vb][1],4)}, {v(S[t]+8,8)}, {v(IDX)}"]
pvlo = lambda t, vb: [f"v_smfmac_f32_32x32x32_bf16 {v(O[t],16)}, {v(V[vb][0],4)}, {v(S[t],8)}, {v(IDX)}"]
qk1 = lambda t, kb: [f"v_mfma_f32_32x32x16_bf16 {v(S[t],16)}, {v(K1[kb],4)}, {v(Q1[t],4)}, 0"]
q2b = lambda t, sg: [f"v_mfma_f32_32x32x4bf16_1k {v(S[t],32)}, {v(K2 + (sg & 2),2)}, {v(Q2[t>>1] + 2*(sg & 1),2)}, {v(S[t],32)}"]

def attn_step(sg, sub, prio=None):
    b = sg & 1; nb = b ^ 1
    off = 512 + (sg+1)*STEPB if sg < 3 else BLK + 512
    k1 = [f"ds_read_b128 {v(K1[nb],4)}, {v(AK1)} offset:{off}"]
    v0 = [f"ds_read_b128 {v(V[nb][0],4)}, {v(AV)} offset:{off+1024}"]
    v1 = [f"ds_read_b128 {v(V[nb][1],4)}, {v(AV)} offset:{off+1024+2*VH}"]
    k2 = []
    if sg == 0: k2 = [f"ds_read2_b32 {v(K2+2,2)}, {v(AK2)} offset0:64 offset1:96"]
    if sg == 1: k2 = [f"v_add_u32 {v(AK2)}, {BLK}, {v(AK2)}"]
    if sg == 2: k2 = [f"ds_read2_b32 {v(K2,2)}, {v(AK2)} offset0:0 offset1:32"]
    w = ["s_waitcnt lgkmcnt(0)"]
    P = (lambda k: [f"s_setprio {prio[k]}"] if prio and k in prio else [])
    L = P((sg, 0))
    L += E(0,0,2,sub) + pvhi(3, nb) + E(0,2,4,sub) + k1 + E(0,4,5,sub) + qk1(3, b) + E(0,5,8,sub) + v0 + E(0,8,10,sub) + pvlo(0, b) + E(0,10,12,sub) + v1 + E(0,12,14,sub) + q2b(2, sg) + E(0,14,16,sub) + k2
    L += P((sg, 1))
    L += E(1,0,6,sub) + pvhi(0, b) + E(1,6,9,sub) + w + qk1(0, nb) + E(1,9,12,sub) + pvlo(1, b) + E(1,12,16,sub)
    L += P((sg, 2))
    L += E(2,0,2,sub) + pvhi(1, b) + E(2,2,5,sub) + qk1(1, nb) + E(2,5,10,sub) + pvlo(2, b) + E(2,10,14,sub) + q2b(0, (sg+1) & 3) + E(2,14,16,sub)
    L += P((sg, 3))
    L += E(3,0,6,sub) + pvhi(2, b) + E(3,6,9,sub) + qk1(2, nb) + E(3,9,12,sub) + pvlo(3, b) + E(3,12,16,sub)
    return L

def first_k(): return [f"ds_read_b128 {v(K1[0],4)}, {v(AK1)} offset:512"]
def first_k2(): return [f"ds_read2_b32 {v(K2,2)}, {v(AK2)} offset0:0 offset1:32"]
def first_v(): return [f"ds_read_b128 {v(V[0][0],4)}, {v(AV)} offset:{512+1024}", f"ds_read_b128 {v(V[0][1],4)}, {v(AV)} offset:{512+1024+2*VH}"]

def attn_loop(a, uid, sub, prio=None, events={}, with_q=True, pre=None):
    if with_q:
        a(first_k(), q_tile(0), q_tile(1), first_k2(), q_extra(0, 0), q_tile(2), q_tile(3), q_extra(0, 1), q_extra(1, 0), q_extra(1, 1))
        if pre: pre(a)
        a("s_waitcnt lgkmcnt(11)", qk1(0, 0), "s_waitcnt lgkmcnt(9)", qk1(1, 0), first_v(), "s_waitcnt lgkmcnt(7)", qk1(2, 0), "s_nop 5")
    else:
        a(first_k(), first_k2(), first_v(), "s_waitcnt lgkmcnt(0)", qk1(0, 0), qk1(1, 0), qk1(2, 0), "s_nop 7", "s_nop 0")
    a(q2b(0, 0), f"s_mov_b32 {s(SIT)}, 0", "s_waitcnt lgkmcnt(0)", "s_nop 15", "s_nop 1")
    a(".p2align 6")
    a.label(f"L_att{uid}")
    for sg in range(4): a(attn_step(sg, sub, prio))
    mask = sum(1 << (i+1) for i in events) | (1 << 8)
    a(f"v_add_u32 {v(AK1)}, {BLK}, {v(AK1)}", f"v_add_u32 {v(AV)}, {BLK}, {v(AV)}")
    a(f"s_add_u32 {s(SIT)}, {s(SIT)}, 1", f"s_bitcmp0_b32 {mask}, {s(SIT)}", f"s_cbranch_scc1 L_att{uid}")
    for i in events:
        if DIAG and f"it{i}" in STAMPS and uid != "S":
            a(f"s_cmp_eq_u32 {s(SIT)}, {i+1}", f"s_cbranch_scc0 L_st{uid}{i}"); stamp(a, f"it{i}"); a.label(f"L_st{uid}{i}")
    for i, ev in events.items():
        a(f"s_cmp_eq_u32 {s(SIT)}, {i+1}", f"s_cbranch_scc0 L_ev{uid}{i}")
        ev(a)
        a(f"s_branch L_att{uid}")
        a.label(f"L_ev{uid}{i}")
    a(pvhi(3, 1))

def zero_acc(a):
    for r in range(64): a(f"v_mov_b32 {v(O[0]+r)}, 0")
    for r in range(8): a(f"v_mov_b32 {v(S[3]+8+r)}, 0")
    for r in range(4): a(f"v_mov_b32 {v(V[1][1]+r)}, 0")

def max_pass(a):
    for t in range(4): a(f"v_mov_b32 {v(MX+t)}, 0xff800000")
    a(f"s_mov_b32 {s(SIT)}, 0")
    a.label("L_mx")
    a(f"ds_read2_b32 {v(K2,2)}, {v(AK2)} offset0:0 offset1:32", f"ds_read2_b32 {v(K2+2,2)}, {v(AK2)} offset0:64 offset1:96")
    for sg in range(4):
        a(f"ds_read_b128 {v(K1[0],4)}, {v(AK1)} offset:{512 + sg*STEPB}", "s_waitcnt lgkmcnt(0)")
        for t in range(4): a(qk1(t, 0))
        a("s_nop 9", q2b(0, sg), q2b(2, sg), "s_nop 15", "s_nop 3")
        for t in range(4):
            for r in range(8): a(f"v_max3_f32 {v(MX+t)}, {v(S[t]+2*r)}, {v(S[t]+2*r+1)}, {v(MX+t)}")
    a(f"v_add_u32 {v(AK1)}, {BLK}, {v(AK1)}", f"v_add_u32 {v(AK2)}, {BLK}, {v(AK2)}")
    a(f"s_add_u32 {s(SIT)}, {s(SIT)}, 1", f"s_cmp_lt_u32 {s(SIT)}, 8", "s_cbranch_scc1 L_mx")
    a(f"v_subrev_u32 {v(AK1)}, {8*BLK}, {v(AK1)}", f"v_subrev_u32 {v(AK2)}, {8*BLK}, {v(AK2)}")
    a(f"v_lshlrev_b32 v11, 4, v0", f"v_add_u32 v11, {KVB + 2048}, v11", f"ds_write_b128 v11, {v(MX,4)}", "s_waitcnt lgkmcnt(0)", "s_barrier")
    a(f"v_xor_b32 v12, 32, v0", "v_xor_b32 v13, 0x100, v0", "v_xor_b32 v14, 0x120, v0")
    for i in range(3): a(f"v_lshlrev_b32 {v(12+i)}, 4, {v(12+i)}", f"v_add_u32 {v(12+i)}, {KVB + 2048}, {v(12+i)}", f"ds_read_b128 {v(S[0]+4*i,4)}, {v(12+i)}")
    a("s_waitcnt lgkmcnt(0)")
    for t in range(4): a(f"v_max3_f32 {v(MX+t)}, {v(MX+t)}, {v(S[0]+t)}, {v(S[0]+4+t)}", f"v_max_f32 {v(MX+t)}, {v(MX+t)}, {v(S[0]+8+t)}")

FLAGA = KVB + 10240
def scr_addr(a, dst, w_s, n0, stride):
    a(f"s_mul_i32 s3, {s(w_s)}, {stride}", f"s_cmp_ge_u32 {s(w_s)}, {n0}", f"s_cselect_b32 {s(ST+9)}, {SCR1 - n0*stride}, 0", f"s_cselect_b32 {s(ST+8)}, 0, {SCR0}", f"s_add_u32 s3, s3, {s(ST+9)}", f"s_add_u32 s3, s3, {s(ST+8)}",
      f"v_lshl_add_u32 {v(dst)}, {v(LANE)}, 4, s3")
def attn_epilogue(a, uid, check_range, oflags, after_barrier=None):
    L = v(LANE)
    scr_addr(a, 13, SW, 3, 6144)
    a(f"s_xor_b32 {s(ST+1)}, {s(SW)}, 4")
    scr_addr(a, 14, ST+1, 3, 6144)
    stamp(a, "e0" + uid)
    a("s_barrier")
    stamp(a, "e1" + uid)
    if after_barrier: after_barrier(a)
    a(f"s_cmp_ge_u32 {s(SW)}, 4", f"s_cbranch_scc1 L_ep1{uid}")
    for kh in (0, 1):
        if kh: a.label(f"L_ep1{uid}")
        for hh in range(2):
            T = O[2*(1-kh)+hh]
            a(f"ds_write_b128 v13, {v(T,4)} offset:{hh*3072}", f"ds_write_b128 v13, {v(T+4,4)} offset:{hh*3072 + 1024}", f"ds_write_b64 v13, {v(T+8,2)} offset:{hh*3072 + 2048}")
        if check_range:
            a(f"s_mov_b32 {s(ST)}, 0x21800000", f"s_mov_b32 {s(ST+1)}, 0x5d800000", f"s_mov_b32 {s(ST+2)}, 0x7e800000")
            a(f"v_minimum3_f32 v11, {v(O[0]+9)}, {v(O[1]+9)}, {v(O[2]+9)}", f"v_maximum3_f32 v12, {v(O[0]+9)}, {v(O[1]+9)}, {v(O[2]+9)}",
              f"v_minimum3_f32 v11, v11, {v(O[3]+9)}, {v(O[3]+9)}", f"v_maximum3_f32 v12, v12, {v(O[3]+9)}, {v(O[3]+9)}")
            regs = [O[t]+r for t in range(4) for r in range(9)]
            a(f"v_maximum3_f32 v15, abs({v(regs[0])}), abs({v(regs[1])}), abs({v(regs[2])})")
            for i in range(3, 36, 2): a(f"v_maximum3_f32 v15, abs({v(regs[i])}), abs({v(regs[min(i+1, 35)])}), v15")
            a(f"v_cmp_nle_f32 vcc, {s(ST)}, v11", f"v_cmp_nge_f32 {s(ST+4,2)}, {s(ST+1)}, v12", f"v_cmp_nge_f32 {s(ST+6,2)}, {s(ST+2)}, v15", f"s_lshl_b32 {s(ST+1)}, {s(SW)}, 2",
              f"s_or_b64 vcc, vcc, {s(ST+4,2)}", f"s_or_b64 vcc, vcc, {s(ST+6,2)}", "s_cmp_lg_u64 vcc, 0", f"s_cselect_b32 {s(ST)}, 1, 0", f"v_mov_b32 v11, {s(ST)}",
              f"s_add_u32 {s(ST+1)}, {s(ST+1)}, {FLAGA}", f"v_mov_b32 v12, {s(ST+1)}", "ds_write_b32 v12, v11", f"v_mov_b32 v12, {FLAGA}")
        a(f"s_and_b32 {s(ST)}, {s(SQB)}, 1", f"s_lshl_b32 {s(ST)}, {s(ST)}, 1", f"s_add_u32 {s(ST)}, {s(ST)}, {kh}",
          f"s_lshl_b32 {s(ST+1)}, {s(SGRP)}, 2", f"s_add_u32 {s(ST)}, {s(ST)}, {s(ST+1)}", f"s_mul_i32 {s(ST)}, {s(ST)}, 36", f"s_mul_i32 {s(ST+1)}, {s(SHG)}, 9", f"s_add_u32 {s(ST)}, {s(ST)}, {s(ST+1)}",
          f"s_lshl_b32 {s(ST)}, {s(ST)}, 10", f"s_and_b32 {s(ST+1)}, {s(SW)}, 3", f"s_lshl_b32 {s(ST+2)}, {s(ST+1)}, 8", f"s_add_u32 {s(ST+2)}, {s(ST+2)}, {s(ST)}", f"s_add_u32 {s(ST+2)}, {s(ST+2)}, 8192",
          f"s_lshl_b32 {s(ST+1)}, {s(ST+1)}, 11", f"s_add_u32 {s(ST)}, {s(ST)}, {s(ST+1)}", f"v_lshlrev_b32 v15, 4, {L}", f"v_lshlrev_b32 v13, 2, {L}")
        stamp(a, "e2" + uid)
        a("s_waitcnt lgkmcnt(0)", "s_barrier")
        stamp(a, "e3" + uid)
        if check_range: a(f"ds_read_b128 {v(S[3],4)}, v12", f"ds_read_b128 {v(S[3]+4,4)}, v12 offset:16")
        for hh in range(2):
            a(f"ds_read_b64 {v(S[hh]+8,2)}, v14 offset:{hh*3072 + 2048}", f"ds_read_b128 {v(S[hh],4)}, v14 offset:{hh*3072}", f"ds_read_b128 {v(S[hh]+4,4)}, v14 offset:{hh*3072 + 1024}")
        if check_range:
            F = S[3]
            a("s_waitcnt lgkmcnt(6)", f"v_or3_b32 v11, {v(F)}, {v(F+1)}, {v(F+2)}", f"v_or3_b32 v11, v11, {v(F+3)}, {v(F+4)}", f"v_or3_b32 v11, v11, {v(F+5)}, {v(F+6)}", f"v_or_b32 v11, v11, {v(F+7)}",
              "s_nop 0", f"v_readfirstlane_b32 s3, v11", "s_nop 0", "s_cmp_lg_u32 s3, 0", "s_cbranch_scc1 L_fallback")
        for hh in range(2):
            T = O[2*kh+hh]; P = S[hh]
            a(f"s_waitcnt lgkmcnt({5-3*hh})", f"v_add_f32 {v(T+9)}, {v(T+9)}, {v(P+9)}", f"v_add_f32 {v(T+8)}, {v(T+8)}, {v(P+8)}", f"v_rcp_f32 {v(T+9)}, {v(T+9)}", f"s_waitcnt lgkmcnt({3-3*hh})")
            for r in range(0, 8, 2): a(f"v_pk_add_f32 {v(T+r,2)}, {v(T+r,2)}, {v(P+r,2)}")
            for r in range(0, 8, 2): a(f"v_pk_mul_f32 {v(T+r,2)}, {v(T+r,2)}, {v(T+8,2)} op_sel:[0,1] op_sel_hi:[1,1]")
            a(f"v_mul_f32 {v(T+8)}, {v(T+8)}, {v(T+9)}")
            for r in range(4): a(f"v_cvt_pk_bf16_f32 {v(S[2]+4*hh+r)}, {v(T+2*r)}, {v(T+2*r+1)}")
            if hh == 0: stamp(a, "e4" + uid)
            a(f"buffer_store_dwordx4 {v(S[2]+4*hh,4)}, v15, {s(RO,4)}, {s(ST)} offen offset:{1024*hh}{oflags}")
        a(f"v_cvt_pk_bf16_f32 {v(S[2]+8)}, {v(O[2*kh]+8)}, {v(O[2*kh+1]+8)}", f"buffer_store_dword {v(S[2]+8)}, v13, {s(RO,4)}, {s(ST+2)} offen{oflags}")
        if kh == 0: a(f"s_branch L_ep2{uid}")
    a.label(f"L_ep2{uid}")

def attention(a, oflags, prio):
    stamp(a, "qdone")
    attn_addr(a); q_addr(a); zero_acc(a)
    wait_kv(a)
    a("s_waitcnt vmcnt(0) lgkmcnt(0)", "s_barrier")
    stamp(a, "kv1")
    bar = lambda a: a("s_waitcnt vmcnt(0)", "s_barrier")
    def evA5(a): bar(a); wo_dma(a)
    def evB0(a): bar(a); kv_stage3(a); wo_touch(a)
    a(f"s_cmp_ge_u32 {s(SW)}, 4", "s_cbranch_scc1 L_roleB")
    srd(a, RW, PWO, 576*1152)
    attn_loop(a, "A", False, prio[0], {0: bar, 5: evA5}); a("s_setprio 0", "s_branch L_attD")
    a.label("L_roleB"); a("s_setprio 1")
    attn_loop(a, "B", False, prio[1], {0: evB0, 5: bar, 6: wo_dma}, pre=kv_stage2); a("s_setprio 0")
    a.label("L_attD")
    stamp(a, "loop")
    attn_epilogue(a, "", True, oflags)
    stamp(a, "epi")

def fallback(a, oflags, back):
    a.label("L_fallback")
    a(f"v_subrev_u32 {v(AK1)}, {HB}, {v(AK1)}", f"v_subrev_u32 {v(AK2)}, {HB}, {v(AK2)}", f"v_subrev_u32 {v(AV)}, {HB}, {v(AV)}")
    a(f"s_lshr_b32 {s(ST)}, {s(SW)}, 2", f"s_mul_i32 {s(ST)}, {s(ST)}, {HB}", f"s_and_b32 s3, {s(SW)}, 3", "s_lshl_b32 s3, s3, 10", f"s_add_u32 {s(ST)}, {s(ST)}, s3")
    a("s_waitcnt vmcnt(0) lgkmcnt(0)", "s_barrier")
    for i in range(19): a(kv_piece(a, ST, i))
    a("s_waitcnt vmcnt(0)", "s_barrier")
    max_pass(a)
    zero_acc(a)
    attn_loop(a, "S", True, with_q=False)
    attn_epilogue(a, "s", False, oflags, wo_dma)
    a(f"s_branch {back}")

BF, AF, D0, DX = 16, 88, 136, 168
A0, A1, AXT = 2, 3, 4
def wo_dma(a):
    L = v(LANE)
    a(f"v_lshrrev_b32 v200, 3, {L}", f"v_and_b32 v201, 7, {L}", f"v_bfe_u32 v202, {L}, 4, 1", "v_lshlrev_b32 v202, 2, v202", "v_xor_b32 v201, v201, v202", "v_lshlrev_b32 v201, 4, v201",
      f"s_movk_i32 {s(ST+4)}, 1152", f"s_movk_i32 {s(ST+5)}, {18*1152}", f"v_mad_u32_u24 v202, v200, {s(ST+5)}, v201", f"v_mad_u32_u24 v201, v200, {s(ST+4)}, v201")
    a(f"s_lshr_b32 {s(ST+2)}, {s(SW)}, 1", f"s_and_b32 {s(ST+3)}, {s(SW)}, 1", f"s_mul_i32 {s(ST+6)}, {s(ST+2)}, {144*1152}", f"s_lshl_b32 {s(ST)}, {s(SJJ)}, 7", f"s_add_u32 {s(ST+7)}, {s(ST+6)}, {s(ST)}",
      f"s_mul_i32 {s(ST)}, {s(ST+3)}, {8*1152}", f"s_add_u32 {s(ST)}, {s(ST)}, {s(ST+7)}",
      f"s_and_b32 {s(ST+9)}, {s(ST+2)}, 1", f"s_mul_i32 {s(ST+1)}, {s(ST+9)}, {9*2048}", f"s_lshl_b32 {s(ST+8)}, {s(ST+3)}, 10", f"s_add_u32 {s(ST+1)}, {s(ST+1)}, {s(ST+8)}",
      f"s_lshr_b32 {s(ST+2)}, {s(ST+2)}, 1", f"s_mul_i32 {s(ST+2)}, {s(ST+2)}, {HB}", f"s_add_u32 {s(ST+1)}, {s(ST+1)}, {s(ST+2)}")
    for ff in range(8):
        dma(a, 201, RW, s(ST), ldsaddr_s=ST+1)
        a(f"s_add_u32 {s(ST)}, {s(ST)}, {18*1152}", f"s_add_u32 {s(ST+1)}, {s(ST+1)}, 2048")
    a(f"s_mul_i32 {s(ST)}, {s(ST+3)}, 1152", f"s_add_u32 {s(ST)}, {s(ST)}, {s(ST+7)}", f"s_add_u32 {s(ST)}, {s(ST)}, {16*1152}")
    dma(a, 202, RW, s(ST), ldsaddr_s=ST+1)
    a(f"v_lshrrev_b32 v200, 2, {L}", f"v_and_b32 v201, 3, {L}", "v_lshlrev_b32 v201, 4, v201", "v_and_b32 v202, 7, v200", f"v_mad_u32_u24 v202, v202, {s(ST+5)}, v201", f"v_lshrrev_b32 v203, 5, {L}",
      f"v_mad_u32_u24 v202, v203, {s(ST+4)}, v202", f"v_mad_u32_u24 v201, v200, {s(ST+4)}, v201")
    a(f"s_lshr_b32 {s(ST)}, {s(SJJ)}, 2", f"s_lshl_b32 {s(ST)}, {s(ST)}, 6", f"s_add_u32 {s(ST+6)}, {s(ST+6)}, {s(ST)}", f"s_add_u32 {s(ST+6)}, {s(ST+6)}, 1024",
      f"s_mul_i32 {s(ST)}, {s(ST+3)}, {18*1152}", f"s_add_u32 {s(ST)}, {s(ST)}, {s(ST+6)}",
      f"s_mul_i32 {s(ST+7)}, {s(ST+9)}, {9*1024}", f"s_add_u32 {s(ST+7)}, {s(ST+7)}, {s(ST+2)}", f"s_add_u32 {s(ST+7)}, {s(ST+7)}, {WOX}", f"s_add_u32 {s(ST+1)}, {s(ST+7)}, {s(ST+8)}")
    for n in range(4):
        dma(a, 201, RW, s(ST), ldsaddr_s=ST+1)
        if n < 3: a(f"s_add_u32 {s(ST)}, {s(ST)}, {36*1152}", f"s_add_u32 {s(ST+1)}, {s(ST+1)}, 2048")
    a(f"s_cmp_eq_u32 {s(ST+3)}, 0", f"s_cbranch_scc0 L_wox{a.uid}", f"s_add_u32 {s(ST)}, {s(ST+6)}, {16*1152}", f"s_add_u32 {s(ST+1)}, {s(ST+7)}, 8192")
    dma(a, 202, RW, s(ST), ldsaddr_s=ST+1)
    a.label(f"L_wox{a.uid}"); a.uid += 1

OUTF = os.environ.get("OUTF", "")
OROT = int(os.environ.get("OROT", 1)); OTOUCH = int(os.environ.get("OTOUCH", 0))
def oproj(a, oflags, wait_o=None):
    L = v(LANE)
    a(f"s_add_u32 {s(SJ)}, {s(SW)}, {s(SJJ)}" if OROT else f"s_mov_b32 {s(SJ)}, {s(SW)}", f"s_and_b32 {s(SJ)}, {s(SJ)}, 7", f"s_lshr_b32 {s(ST+2)}, {s(SJ)}, 1", f"s_and_b32 {s(ST+3)}, {s(SJ)}, 1")
    a(f"s_lshl_b32 {s(ST)}, {s(SGRP)}, 2", f"s_add_u32 {s(ST)}, {s(ST)}, {s(ST+2)}", f"s_mul_i32 {s(ST)}, {s(ST)}, 36", f"s_mul_i32 {s(ST+1)}, {s(ST+3)}, 18", f"s_add_u32 {s(ST)}, {s(ST)}, {s(ST+1)}",
      f"s_lshl_b32 {s(ST)}, {s(ST)}, 10", f"v_lshlrev_b32 v15, 4, {L}")
    a(f"s_mov_b32 {s(SXB)}, {s(ST)}")
    lane_fields(a)
    a("v_and_b32 v11, 1, v9", "v_lshlrev_b32 v11, 5, v11", "v_lshl_add_u32 v11, v7, 4, v11", "v_lshrrev_b32 v12, 1, v9", "v_lshl_add_u32 v11, v12, 3, v11", "v_lshl_add_u32 v12, v6, 3, v8")
    a(f"s_mul_i32 {s(ST)}, {s(ST+3)}, {HB}", f"s_add_u32 {s(ST+1)}, {s(ST)}, {WOX}", f"v_lshl_add_u32 v13, v12, 6, v11", f"v_add_u32 {v(AXT)}, {s(ST+1)}, v13",
      "v_lshl_add_u32 v13, v12, 7, v11", f"v_add_u32 v13, {s(ST)}, v13",
      "v_lshrrev_b32 v12, 1, v8", f"v_lshl_add_u32 {v(A0)}, v12, 6, v13", "v_xor_b32 v12, 1, v12", f"v_lshl_add_u32 {v(A1)}, v12, 6, v13")
    scr_addr(a, 13, SJ, 5, 4096)
    a(f"s_xor_b32 {s(ST)}, {s(SJ)}, 1")
    scr_addr(a, 14, ST, 5, 4096)
    a(f"v_add_u32 v11, {SCR1 + 3*4096}, v15")
    a(f"s_and_b32 {s(ST)}, {s(SGRP)}, 15", f"s_lshl_b32 {s(ST)}, {s(ST)}, 2", f"s_add_u32 {s(ST)}, {s(ST)}, {s(ST+2)}", f"s_mul_i32 {s(ST)}, {s(ST)}, {32*2304}", f"s_mul_i32 {s(ST+1)}, {s(SB)}, 1152",
      f"s_add_u32 {s(ST+4)}, {s(ST)}, {s(ST+1)}", f"s_movk_i32 {s(ST+1)}, 2304", "v_lshlrev_b32 v12, 5, v6", f"v_mad_u32_u24 v12, v10, {s(ST+1)}, v12",
      f"s_lshr_b32 {s(ST)}, {s(SJJ)}, 2", f"s_lshl_b32 {s(ST)}, {s(ST)}, 6", f"s_add_u32 {s(ST+5)}, {s(ST+4)}, {s(ST)}", f"s_add_u32 {s(ST+5)}, {s(ST+5)}, 1024",
      f"s_lshl_b32 {s(ST)}, {s(SJJ)}, 7", f"s_add_u32 {s(ST+4)}, {s(ST+4)}, {s(ST)}", f"s_lshl_b32 {s(ST)}, {s(ST+3)}, 6", f"s_add_u32 {s(ST+4)}, {s(ST+4)}, {s(ST)}")
    a(f"v_lshlrev_b32 v5, 2, {L}")
    wait_o(a)
    stamp(a, "oseen")
    for fi in range(18):
        if fi % 9 == 8:
            for c in range(4): a(f"buffer_load_dword {v(BF+4*fi+c)}, v5, {s(RO,4)}, {s(SXB)} offen offset:{1024*(fi&3) + 256*c}{oflags}")
        else: a(f"buffer_load_dwordx4 {v(BF+4*fi,4)}, v15, {s(RO,4)}, {s(SXB)} offen offset:{1024*(fi&3)}{oflags}")
        if fi & 3 == 3: a(f"s_add_u32 {s(SXB)}, {s(SXB)}, 4096")
    a(f"s_and_b32 {s(ST)}, {s(SJJ)}, 3", f"s_cmp_eq_u32 {s(ST)}, {s(ST+2)}", "s_cbranch_scc1 L_opx")
    for ext in (0, 1):
        if ext: a.label("L_opx")
        nt = 3 if ext else 2; depth = 2 if ext else 3
        def reads(fi):
            bb = AF + 12*(fi % depth if ext else fi % depth)
            for c in range(2):
                a(f"ds_read_b64_tr_b16 {v(bb+4*c,2)}, {v(A0+c)} offset:{fi*2048}", f"ds_read_b64_tr_b16 {v(bb+4*c+2,2)}, {v(A0+c)} offset:{fi*2048+512}")
            if ext: a(f"ds_read_b64_tr_b16 {v(bb+8,2)}, {v(AXT)} offset:{fi*1024}", f"ds_read_b64_tr_b16 {v(bb+10,2)}, {v(AXT)} offset:{fi*1024+256}")
        for fi in range(depth): reads(fi)
        for fi in range(18):
            bb = AF + 12*(fi % depth)
            later = min(17, fi+depth-1) - fi
            a(f"s_waitcnt vmcnt({sum(4 if x % 9 == 8 else 1 for x in range(fi+1, 18))}) lgkmcnt({2*nt*later})")
            for c in range(nt):
                D = D0 + 16*c
                a(f"v_mfma_f32_32x32x16_bf16 {v(D,16)}, {v(bb+4*c,4)}, {v(BF+4*fi,4)}, {'0' if fi == 0 else v(D,16)}")
            if fi + depth < 18: reads(fi+depth)
        stamp(a, "omfma")
        a("s_nop 7", "s_nop 3")
        a(f"s_cmp_eq_u32 {s(ST+3)}, 0", f"s_cbranch_scc0 L_op1{ext}")
        for kh in (0, 1):
            if kh: a.label(f"L_op1{ext}")
            for q in range(4): a(f"ds_write_b128 v13, {v(D0+16*(1-kh)+4*q,4)} offset:{q*1024}")
            if ext and kh == 1:
                for q in range(4): a(f"ds_write_b128 v11, {v(DX+4*q,4)} offset:{q*1024}")
            a("s_waitcnt lgkmcnt(0)", "s_barrier")
            jobs = [(D0+16*kh, "v14", 0, ST+4)] + ([(DX, "v11", 0, ST+5)] if (ext and kh == 0) else [])
            for n, (D, ad, of, so) in enumerate(jobs):
                for q in range(4): a(f"ds_read_b128 {v(BF+16*n+4*q,4)}, {ad} offset:{of + q*1024}")
            for n, (D, ad, of, so) in enumerate(jobs):
                for q in range(4):
                    a(f"s_waitcnt lgkmcnt({4*(len(jobs)-1-n) + 3 - q})")
                    for r in range(4): a(f"v_add_f32 {v(D+4*q+r)}, {v(D+4*q+r)}, {v(BF+16*n+4*q+r)}")
                    for r in range(2): a(f"v_cvt_pk_bf16_f32 {v(AF+8*n+2*q+r)}, {v(D+4*q+2*r)}, {v(D+4*q+2*r+1)}")
                    if q & 1: a(f"buffer_store_dwordx4 {v(AF+8*n+2*q-2,4)}, v12, {s(ROUT,4)}, {s(so)} offen offset:{16*(q>>1)}{OUTF}")
            if DIAG: a("s_waitcnt vmcnt(0)")
            stamp_out(a, a.kidx); a("s_endpgm")

def kernel(name, body, nvgpr=256):
    a = Asm(); a.uid = 0
    a.label(name)
    setup(a, f"L_end_{name}")
    body(a)
    a.label(f"L_end_{name}")
    a("s_endpgm")
    a.label("L_code_end")
    lines = []
    import re
    for l in a.lines:
        lines.append(re.sub(r"\bL_(\w+)", lambda m: f"L_{name[:3]}_{m.group(1)}", l))
    a.lines = lines
    n = check(a.lines)
    if n: print(f"{name}: {n} hazards"); sys.exit(1)
    head = f".globl {name}\n.p2align 8\n.type {name},@function\n"
    kd = f""".amdhsa_kernel {name}
  .amdhsa_next_free_vgpr {nvgpr}
  .amdhsa_next_free_sgpr 96
  .amdhsa_accum_offset {(nvgpr+3)//4*4}
  .amdhsa_group_segment_fixed_size 0
  .amdhsa_kernarg_size 104
  .amdhsa_user_sgpr_count 2
  .amdhsa_user_sgpr_kernarg_segment_ptr 1
  .amdhsa_system_sgpr_workgroup_id_x 1
.end_amdhsa_kernel
"""
    return head + a.text(), kd

def publish_o(a):
    if OTOUCH:
        a(f"s_and_b32 {s(ST+3)}, {s(SQB)}, 1", f"s_lshl_b32 {s(ST+3)}, {s(ST+3)}, 1", f"s_lshl_b32 s3, {s(SGRP)}, 2", f"s_add_u32 {s(ST+3)}, {s(ST+3)}, s3", f"s_mul_i32 {s(ST+3)}, {s(ST+3)}, 36", f"s_mul_i32 s3, {s(SHG)}, 9",
          f"s_add_u32 {s(ST+3)}, {s(ST+3)}, s3", f"s_lshl_b32 {s(ST+3)}, {s(ST+3)}, 10", f"s_mul_i32 s3, {s(SW)}, 21", "s_sub_u32 s3, s3, 21", f"v_add_u32 v14, s3, {v(LANE)}", "v_min_u32 v14, 0x8f, v14",
          "v_cmp_lt_u32 vcc, 0x47, v14", f"v_mov_b32 v12, {36*8 - 72}", "v_lshlrev_b32 v14, 7, v14", "v_lshlrev_b32 v12, 7, v12", "v_cndmask_b32 v12, 0, v12, vcc", "v_add_u32 v14, v14, v12")
    stamp(a, "p0")
    a("s_waitcnt vmcnt(0)")
    stamp(a, "p1")
    a("s_barrier")
    if OTOUCH:
        a(f"s_cmp_eq_u32 {s(SW)}, 0", "s_cbranch_scc1 L_notch", "s_mov_b32 exec_lo, 0x1fffff", "s_mov_b32 exec_hi, 0", f"buffer_load_dword {v(JUNK)}, v14, {s(RO,4)}, {s(ST+3)} offen sc1", "s_mov_b64 exec, -1")
        a.label("L_notch")
    a(f"s_cmp_eq_u32 {s(SW)}, 0", "s_cbranch_scc0 L_noof", f"s_lshl_b32 s3, {s(SGRP)}, 3", f"s_add_u32 s3, s3, {s(SJJ)}", f"s_lshl_b32 {s(ST)}, s3, 7", f"s_add_u32 {s(ST)}, {s(ST)}, {FO}")
    flag_store(a, ST)
    a.label("L_noof")
def wait_o(a):
    a(f"s_cmp_eq_u32 {s(SW)}, 0", "s_cbranch_scc0 L_oseen", f"s_lshl_b32 {s(ST+7)}, {s(SGRP)}, 10", f"s_add_u32 {s(ST+7)}, {s(ST+7)}, {FO}",
      "v_mov_b32 v200, v11", "v_mov_b32 v201, v12", "v_mov_b32 v202, v13")
    poll(a, "o", ST+7, 1, mask=0xff)
    a("v_mov_b32 v11, v200", "v_mov_b32 v12, v201", "v_mov_b32 v13, v202")
    a.label("L_oseen")
    a("s_barrier")

def build(mode, prio=None):
    def k1(a):
        a.kidx = 0
        prologue(a); attention(a, " sc1", prio); a.label("L_fin")
        publish_o(a); oproj(a, " sc1", wait_o); fallback(a, " sc1", "L_fin")
    ks = [(NAME + "_kernel", k1)]
    hdr = open(os.path.join(os.path.dirname(os.path.abspath(__file__)), "header.txt")).read()
    out = hdr
    out += f"; @launch grid=(256,1,1) block=(512,1,1) lds={LDS_TOTAL}\n"
    out += '.amdgcn_target "amdgcn-amd-amdhsa--gfx950"\n.text\n'
    kds = ""
    for n, f in ks:
        t, kd = kernel(n, f)
        out += t; kds += ".p2align 6\n" + kd
    out += '.section .rodata,"a"\n' + kds
    return out

if __name__ == "__main__":
    if "diag" in sys.argv: DIAG = 1; sys.argv.remove("diag")
    if "diag2" in sys.argv: DIAG = 2; sys.argv.remove("diag2")
    mode = sys.argv[1] if len(sys.argv) > 1 else "one"
    dst = sys.argv[2] if len(sys.argv) > 2 else f"cdna_kernels/{NAME}.s"
    lo, hi = [int(x) for x in os.environ.get("PRIO", "13,0").split(",")]
    prio = [{(lo >> 2, lo & 3): 0, (hi >> 2, hi & 3): 2}, {}]
    open(dst, "w").write(build(mode, prio))
    print("wrote", dst)
```

```python
import sys, os, struct, math
from asmlib import Asm, v, s, check

NAME = "concat_heads__grouped_kv_mqa__grouped_kv_mqa__prompt"
VH = 304
STEPB = 1024 + 4*VH
BLK = 512 + 4*STEPB
KVB = 16*BLK
KVSTRIDE = 0x40000
OOFF = 0x100000
OBYTES = 2*2048*576*2
LDS_TOTAL = 163840
HB = 8*BLK
XKB = 12288; SLOT = 22528; SLOTA = [49152, 91136, 113664, 136192]; QS = 296; QX = LDS_TOTAL - 64*QS
WKVP = [HB + 6144, 0, 6144, HB]
SEENA = 71680
FOFF = 0x80000
FKV, FO, FEP = 0, 0x8000, 0x10000
TAGC = 0x9E3779B1
SPIN = 1 << 20
WOX = 36864
SCR0, SCR1 = 55296, 131072
SCALE = 18 ** -0.5 * math.log2(math.e)
def fbits(x): return struct.unpack("<I", struct.pack("<f", x))[0]
RX, RW, RKW, RKV, RO, ROUT, RDBG = 4, 8, 12, 16, 20, 24, 28
SB, SQB, SHG, SW = 32, 33, 34, 35
ST = 36
SEX = 48
SIT = 50; SFLAG = 51; SJJ = 52; SGRP = 53
PWO = 54
STAG = 74; SJ = 75; SWB, SXB, SLB, EXM = 56, 57, 58, 46
JUNK = 204
LANE = 1

DIAG = False
STAMP0 = 76
TIMER = "s_memtime" if os.environ.get("CLK") else "s_memrealtime"
STAMPS = {"start": 0, "issued": 1, "b0": 2, "qdone": 3, "kv1": 4, "loop": 5, "epi": 6, "oseen": 7, "omfma": 8}
if os.environ.get("STAMPS"):
    STAMPS = {"start": 0}
    for i, n in enumerate(os.environ["STAMPS"].split(",")): STAMPS[n] = i + 1
def stamp(a, n):
    if DIAG and n in STAMPS: a(f"{TIMER} {s(STAMP0 + 2*STAMPS[n], 2)}")
def stamp_out(a, kidx):
    if not DIAG: return
    a(f"{TIMER} s[94:95]", "s_waitcnt lgkmcnt(0)", "s_mov_b64 exec, -1")
    if DIAG == 2:
        srd(a, RDBG, 68, 256)
        a(f"v_lshlrev_b32 v6, 2, {v(LANE)}", f"s_not_b32 s3, {s(STAMP0)}", "v_mov_b32 v7, s3")
        for i in range(10): a(f"v_writelane_b32 v7, {s(STAMP0 + 2*i)}, {i+1}")
        for n, i in enumerate((2, 3, 4, 5, 7)): a(f"s_not_b32 s3, {s(STAMP0 + 2*i)}", f"v_writelane_b32 v7, s3, {11+n}")
        a(f"s_and_b32 s3, {s(SW)}, 3", "s_cmp_eq_u32 s3, 0", f"s_cbranch_scc0 L_dg{a.uid}", "s_mov_b32 exec_lo, 0xffff", "s_mov_b32 exec_hi, 0", f"buffer_atomic_umax v7, v6, {s(RDBG,4)}, 0 offen sc1")
        a.label(f"L_dg{a.uid}"); a.uid += 1
        return
    a(f"s_add_u32 s72, s70, {0x800000 + kidx*0x40000}", "s_addc_u32 s73, s71, 0")
    srd(a, RDBG, 72, 0x40000)
    a("s_lshl_b32 s3, s2, 3", f"s_add_u32 s3, s3, {s(SW)}", "s_lshl_b32 s3, s3, 6", "v_mov_b32 v6, 0")
    for i in range(10):
        a(f"v_mov_b32 v7, {s(STAMP0 + 2*i)}", f"buffer_store_dword v7, v6, {s(RDBG,4)}, s3 offen offset:{4*i}")

def srd(a, r, ptr, size):
    a(f"s_mov_b32 {s(r)}, {s(ptr)}", f"s_mov_b32 {s(r+1)}, {s(ptr+1)}", f"s_mov_b32 {s(r+2)}, {size}", f"s_mov_b32 {s(r+3)}, 0x20000")

CODE_LINES = 6
def setup(a, endlabel):
    a(f"s_cmp_ge_u32 s2, 256", f"s_cbranch_scc1 {endlabel}")
    if DIAG:
        for i in range(1, 10): a(f"s_mov_b32 {s(STAMP0+2*i)}, 0")
    stamp(a, "start")
    a(f"s_and_b32 {s(SB)}, s2, 1", f"s_mul_i32 s3, {s(SB)}, 40", "s_add_u32 s56, s0, s3", "s_addc_u32 s57, s1, 0")
    a("s_load_dwordx4 s[60:63], s[56:57], 0", "s_load_dwordx2 s[70:71], s[0:1], 96", "s_load_dwordx4 s[64:67], s[56:57], 16", f"s_load_dwordx2 {s(PWO,2)}, s[56:57], 32",
      "s_load_dwordx2 s[72:73], s[0:1], 80")
    if DIAG: a("s_load_dwordx2 s[68:69], s[0:1], 88")
    a(f"v_lshrrev_b32 v2, 6, v0", f"v_and_b32 {v(LANE)}, 63, v0")
    if CODE_LINES:
        a(f"s_getpc_b64 {s(ROUT,2)}")
        a.label("L_pc")
        a(f"s_mov_b32 {s(ROUT+2)}, L_code_end-L_pc", f"s_mov_b32 {s(ROUT+3)}, 0x20000", "s_lshr_b32 s3, s2, 3", f"s_mul_i32 s3, s3, {CODE_LINES*128}", "v_lshlrev_b32 v3, 7, v0",
          f"v_cmp_gt_u32 vcc, {CODE_LINES}, v0", f"v_readfirstlane_b32 {s(SW)}, v2", f"s_and_saveexec_b64 {s(SEX,2)}, vcc", "s_cbranch_execz L_nocode",
          f"buffer_load_dword {v(JUNK+1)}, v3, {s(ROUT,4)}, s3 offen")
        a.label("L_nocode")
        a("s_mov_b64 exec, -1")
    else: a("s_nop 0", f"v_readfirstlane_b32 {s(SW)}, v2")
    a(f"s_bfe_u32 s3, s2, 0x20001", f"s_lshl_b32 s3, s3, 3", f"s_lshr_b32 {s(SQB)}, s2, 5", f"s_add_u32 {s(SQB)}, {s(SQB)}, s3", f"s_bfe_u32 {s(SHG)}, s2, 0x20003")

def setup_srd_early(a):
    a("s_waitcnt lgkmcnt(0)")
    stamp(a, "args")
    srd(a, RX, 60, 2048*1152)
    a(f"s_add_u32 {s(RDBG)}, s70, {FOFF}", f"s_addc_u32 {s(RDBG+1)}, s71, 0", f"s_mov_b32 {s(RDBG+2)}, 0x10100", f"s_mov_b32 {s(RDBG+3)}, 0x20000")
def setup_srd_mid(a):
    srd(a, RW, 62, 576*1152)
    a(f"s_bitcmp1_b32 {s(SHG)}, 0", f"s_cselect_b64 {s(RKW,2)}, s[66:67], s[64:65]", f"s_mov_b32 {s(RKW+2)}, {576*36}", f"s_mov_b32 {s(RKW+3)}, 0x20000")
def setup_late(a):
    a(f"s_and_b32 s3, {s(SQB)}, 1", f"s_lshl_b32 s3, s3, 2", f"s_add_u32 {s(SJJ)}, s3, {s(SHG)}")
    a(f"s_lshr_b32 s3, {s(SQB)}, 1", f"s_lshl_b32 {s(SGRP)}, {s(SB)}, 4", f"s_add_u32 {s(SGRP)}, {s(SGRP)}, s3")
    a(f"s_lshl_b32 s3, {s(SB)}, 18", f"s_add_u32 {s(RKV)}, s70, s3", f"s_addc_u32 {s(RKV+1)}, s71, 0", f"s_mov_b32 {s(RKV+2)}, {KVB}", f"s_mov_b32 {s(RKV+3)}, 0x20000")
    a(f"s_add_u32 {s(RO)}, s70, {OOFF}", f"s_addc_u32 {s(RO+1)}, s71, 0", f"s_mov_b32 {s(RO+2)}, {OBYTES}", f"s_mov_b32 {s(RO+3)}, 0x20000")
    srd(a, ROUT, 72, OBYTES)

def dma(a, vaddr, r, soff, ldsaddr_s=None, ldsaddr=None, flags=""):
    if ldsaddr_s is not None: a(f"s_mov_b32 m0, {s(ldsaddr_s)}")
    else: a(f"s_mov_b32 m0, {ldsaddr}")
    a("s_nop 0", f"buffer_load_dwordx4 {v(vaddr)}, {s(r,4)}, {soff} offen{flags} lds")

ACA, ACB, ACC2 = 16, 32, 48
FR = [64, 112]
XF, WF = 64, 80
X16, W16 = [96, 112], [104, 120]
AX, AXB, AW, AX16, AX16T, AWR, AWK, APT, DW, DX3, TAGV = 160, 164, 168, 169, 171, 173, 174, 175, 176, 179, 180
AXH, AWH, AWRH, AXK = 184, 188, 189, 192

def swz_row(a, dst, row, sel, tmp):
    a(f"v_bfe_u32 {v(tmp)}, {v(row)}, 1, 3", f"v_xor_b32 {v(tmp)}, {v(tmp)}, {v(sel)}", f"v_lshlrev_b32 {v(tmp)}, 4, {v(tmp)}",
      f"v_lshl_add_u32 {v(dst)}, {v(row)}, 7, {v(tmp)}")

def wrap9(a, r):
    a(f"s_cmp_ge_u32 {s(r)}, 9", f"s_cselect_b32 s3, 9, 0", f"s_sub_u32 {s(r)}, {s(r)}, s3")

def chunk_dma(a, n):
    sl = SLOTA[n & 3]
    ld = lambda vr, R, so: f"buffer_load_dwordx4 {v(vr)}, {s(R,4)}, {s(so)} offen lds"
    a(f"s_mul_i32 {s(ST+8)}, {s(SJ)}, {64*1152}", f"s_add_u32 m0, {s(SLB)}, {sl}", f"s_add_u32 {s(ST+8)}, {s(ST+8)}, {s(SWB)}", ld(DW, RW, ST+8))
    a(f"s_add_u32 m0, {s(SLB)}, {sl + 4096}", f"s_add_u32 {s(ST+9)}, {s(ST+8)}, {32*1152}", ld(DW+1, RW, ST+8))
    a(f"s_add_u32 m0, {s(SLB+1)}, {sl}", f"s_mov_b64 exec, {s(EXM,2)}", ld(DW+2, RW, ST+8), "s_mov_b64 exec, -1")
    a(f"s_add_u32 m0, {s(SLB)}, {sl + 9216}", f"s_lshl_b32 {s(ST+8)}, {s(SJ)}, 7", ld(DW, RW, ST+9))
    a(f"s_add_u32 m0, {s(SLB)}, {sl + 13312}", f"s_add_u32 {s(ST+8)}, {s(ST+8)}, {s(SXB)}", ld(DW+1, RW, ST+9))
    a(f"s_add_u32 m0, {s(SLB)}, {sl + 18432}", f"s_add_u32 {s(SJ)}, {s(SJ)}, 1", ld(DX3, RX, ST+8))
    a(f"s_cmp_ge_u32 {s(SJ)}, 9", f"s_cselect_b32 {s(SJ)}, 0, {s(SJ)}")

def w_pattern(a, dst, base_s):
    a(f"v_add_u32 v3, {s(base_s)}, {v(LANE)}", f"v_mul_u32_u24 v4, 3641, v3", "v_lshrrev_b32 v4, 16, v4", "v_mad_i32_i24 v3, v4, -16, v3", "v_mad_i32_i24 v3, v4, -2, v3",
      "v_bfe_u32 v5, v4, 1, 2", "v_and_or_b32 v5, v4, 56, v5", "v_and_b32 v4, 1, v4", "v_lshl_or_b32 v5, v4, 2, v5", "v_lshlrev_b32 v3, 4, v3", f"v_mad_u32_u24 {v(dst)}, v5, {s(ST+7)}, v3")

def x_pattern(a, dst, par):
    L = v(LANE)
    a(f"v_lshrrev_b32 v3, 3, {L}", f"v_lshrrev_b32 v4, 4, {L}", f"v_xor_b32 v4, {par}, v4", f"v_xor_b32 v4, v4, {L}", "v_and_b32 v4, 7, v4", "v_lshlrev_b32 v4, 4, v4", f"v_mad_u32_u24 {v(dst)}, v3, {s(ST+7)}, v4")

def rotation(a):
    a(f"s_and_b32 {s(SJ)}, {s(SQB)}, 7", f"s_and_b32 s3, {s(SHG)}, 1", "s_lshl_b32 s3, s3, 2", f"s_add_u32 {s(SJ)}, {s(SJ)}, s3"); wrap9(a, SJ)
    if os.environ.get("NOROT"): a(f"s_mov_b32 {s(SJ)}, 0")
    a(f"s_movk_i32 {s(ST+7)}, 1152", f"s_lshl_b32 {s(ST)}, {s(SB)}, 7", f"s_add_u32 {s(ST)}, {s(ST)}, {FEP}", f"v_mov_b32 {v(TAGV)}, 0")

def issue_role0(a):
    L = v(LANE)
    a("s_setprio 1")
    rotation(a)
    x_pattern(a, 14, "0"); a("v_xor_b32 v15, 64, v14")
    for i in range(3):
        a(f"v_add_u32 v3, {64*i}, {L}" if i else f"v_mov_b32 v3, {L}")
        a("v_mul_u32_u24 v4, 0x5556, v3", "v_lshrrev_b32 v4, 16, v4", "v_lshlrev_b32 v3, 4, v3", f"v_mad_i32_i24 {v(11+i)}, v4, -12, v3")
    a(f"s_lshr_b32 s3, {s(SHG)}, 1", f"s_lshl_b32 {s(ST+1)}, {s(SQB)}, 1", f"s_add_u32 {s(ST+1)}, {s(ST+1)}, s3", f"s_mul_i32 {s(ST+1)}, {s(ST+1)}, {32*1152}",
      f"s_add_u32 s3, {s(SW)}, 3", f"s_and_b32 {s(ST+5)}, s3, 1", f"s_mul_i32 {s(ST+5)}, {s(ST+5)}, 6144", "s_bitcmp1_b32 s3, 1", f"s_cselect_b32 s3, {HB}, 0",
      f"s_add_u32 {s(ST+5)}, {s(ST+5)}, s3", f"s_lshl_b32 {s(ST+6)}, {s(SW)}, 12")
    if TOUCH:
        a(f"s_lshl_b32 {s(ST+2)}, {s(SQB)}, 2", f"s_add_u32 {s(ST+2)}, {s(ST+2)}, {s(SHG)}", f"s_lshl_b32 {s(ST+2)}, {s(ST+2)}, 2", f"s_add_u32 {s(ST+2)}, {s(ST+2)}, {s(SW)}", f"s_mul_i32 {s(ST+2)}, {s(ST+2)}, {36*128}", f"v_lshlrev_b32 v2, 7, {L}")
    setup_srd_early(a)
    if TOUCH: a("s_mov_b32 exec_hi, 0xf", f"buffer_load_dword {v(JUNK)}, v2, {s(RX,4)}, {s(ST+2)} offen", "s_mov_b32 exec_hi, -1")
    setup_srd_mid(a)
    def pos(dn, xl, wl):
        a(f"s_add_u32 {s(ST+2)}, {s(SJ)}, {dn}"); wrap9(a, ST+2)
        a(f"s_lshl_b32 {s(ST+3)}, {s(ST+2)}, 7", f"s_add_u32 {s(ST+3)}, {s(ST+3)}, {s(ST+1)}", f"s_mul_i32 {s(ST+4)}, {s(ST+2)}, {64*36}")
        for g in range(4):
            a(f"s_add_u32 m0, {s(ST+6)}, {XKB + xl + g*1024}", f"s_add_u32 s3, {s(ST+3)}, {g*8*1152}", f"buffer_load_dwordx4 {v(14 + (g & 1))}, {s(RX,4)}, s3 offen lds")
        for i in range(3):
            a(f"s_add_u32 m0, {s(ST+5)}, {wl + i*1024}", "s_nop 0", f"buffer_load_dwordx4 {v(11+i)}, {s(RKW,4)}, {s(ST+4)} offen lds")
    a(f"buffer_load_dword {v(TAGV)}, {v(TAGV)}, {s(RDBG,4)}, {s(ST)} offen sc1")
    a(f"s_cmp_eq_u32 {s(SW)}, 0", "s_cbranch_scc0 L_nop8")
    pos(8, 8*4096, 6144)
    a.label("L_nop8")
    a(f"s_add_u32 {s(SJ)}, {s(SJ)}, {s(SW)}"); wrap9(a, SJ)
    pos(0, 0, 0); pos(4, 4*4096, 3072)
    a("s_setprio 0")

TOUCH = int(os.environ.get("TOUCH", 0)); PRE = int(os.environ.get("PRE", 2))
def issue_role1(a):
    rotation(a)
    if TOUCH:
        a(f"s_lshr_b32 {s(ST+2)}, s2, 3", f"s_mul_i32 {s(ST+2)}, {s(ST+2)}, 162", f"s_and_b32 s3, {s(SW)}, 3", "s_mul_i32 s3, s3, 41", f"s_add_u32 {s(ST+2)}, {s(ST+2)}, s3", f"s_lshl_b32 {s(ST+2)}, {s(ST+2)}, 7", f"v_lshlrev_b32 v2, 7, {v(LANE)}")
        setup_srd_early(a); setup_srd_mid(a)
        a("s_mov_b32 exec_hi, 0x1ff", f"buffer_load_dword {v(JUNK)}, v2, {s(RW,4)}, {s(ST+2)} offen", "s_mov_b32 exec_hi, -1")
    a(f"s_and_b32 {s(ST+6)}, {s(SW)}, 3", f"s_and_b32 {s(ST+5)}, {s(SW)}, 1", f"s_lshl_b32 {s(ST+4)}, {s(ST+5)}, 2")
    x_pattern(a, DX3, s(ST+4))
    a(f"s_lshr_b32 s3, {s(SHG)}, 1", "s_xor_b32 s3, s3, 1", f"s_lshl_b32 {s(ST+1)}, {s(SQB)}, 1", f"s_add_u32 {s(ST+1)}, {s(ST+1)}, s3", f"s_lshl_b32 {s(ST+1)}, {s(ST+1)}, 2",
      f"s_add_u32 {s(ST+1)}, {s(ST+1)}, {s(ST+6)}", f"s_lshl_b32 {s(ST+2)}, {s(ST+6)}, 6")
    w_pattern(a, DW, ST+2)
    a(f"s_add_u32 {s(ST+2)}, {s(ST+2)}, 256")
    w_pattern(a, DW+1, ST+2)
    a(f"s_mul_i32 {s(ST+2)}, {s(ST+5)}, 576", f"s_add_u32 {s(ST+2)}, {s(ST+2)}, 512")
    w_pattern(a, DW+2, ST+2)
    if not TOUCH: setup_srd_early(a); setup_srd_mid(a)
    a(f"s_mul_i32 {s(SXB)}, {s(ST+1)}, {8*1152}", f"s_mul_i32 {s(SWB)}, {s(SHG)}, 288", f"s_lshl_b32 {s(SLB)}, {s(ST+6)}, 10", f"s_lshl_b32 {s(SLB+1)}, {s(ST+2)}, 4",
      f"s_cmp_ge_u32 {s(SW)}, 6", f"s_cselect_b64 {s(EXM,2)}, 1, -1")
    a(f"buffer_load_dword {v(TAGV)}, {v(TAGV)}, {s(RDBG,4)}, {s(ST)} offen sc1")
    for n in range(PRE): chunk_dma(a, n)

def lane_fields(a):
    L = v(LANE)
    a(f"v_lshrrev_b32 v6, 5, {L}", f"v_bfe_u32 v7, {L}, 4, 1", f"v_bfe_u32 v8, {L}, 2, 2", f"v_and_b32 v9, 3, {L}", f"v_and_b32 v10, 31, {L}")

def addr_main(a):
    a(f"s_lshl_b32 {s(ST)}, {s(SW)}, 12")
    for r in range(4):
        a(f"v_add_u32 v11, {2*r}, v6")
        swz_row(a, AX+r, 10, 11, 12)
        a(f"v_add_u32 {v(AXK+r)}, {s(ST)}, {v(AX+r)}")
    a("v_lshlrev_b32 v11, 3, v9", "v_and_b32 v12, 1, v9", "v_lshlrev_b32 v12, 4, v12", "v_lshrrev_b32 v13, 1, v9", "v_lshl_add_u32 v12, v13, 3, v12")
    a(f"s_bitcmp1_b32 {s(SHG)}, 0", "s_cselect_b64 vcc, -1, 0", "v_cndmask_b32 v11, v12, v11, vcc")
    a("v_cmp_eq_u32 vcc, 1, v7", "v_lshl_add_u32 v12, v6, 3, v8", f"v_lshl_add_u32 {v(APT)}, {v(LANE)}, 4, {s(ST+5)}", "v_cndmask_b32 v11, v11, 32, vcc")
    a("v_mad_u32_u24 v11, v12, 48, v11", f"v_add_u32 {v(AWK)}, {s(ST+5)}, v11")
    for r in range(16): a(f"v_mov_b32 {v(ACA+r)}, 0")
def addr_main2(a):
    for r in range(4): a(f"v_add_u32 {v(AXB+r)}, {SLOTA[0] + 18432}, {v(AX+r)}", f"v_add_u32 {v(AXH+r)}, {SLOTA[3] + 18432}, {v(AX+r)}")
    a(f"s_lshl_b32 s3, {s(SW)}, 6", f"s_add_u32 s3, s3, {SLOTA[0]}", "v_lshl_add_u32 v11, v7, 5, s3", "v_lshl_add_u32 v11, v9, 3, v11",
      "v_lshl_add_u32 v12, v6, 2, v8", f"s_movk_i32 s3, 576", f"v_mad_u32_u24 {v(AW)}, v12, s3, v11", f"v_add_u32 {v(AWH)}, {SLOTA[2] - SLOTA[0]}, {v(AW)}")

def addr_rem(a):
    L = v(LANE)
    a(f"v_and_b32 v11, 15, {L}", f"s_and_b32 {s(ST)}, {s(SW)}, 1", f"s_lshl_b32 {s(ST)}, {s(ST)}, 4", f"v_add_u32 v11, {s(ST)}, v11", f"v_lshrrev_b32 v13, 4, {L}")
    for s2 in range(2):
        a(f"v_add_u32 v14, {4*s2}, v13")
        swz_row(a, AX16+s2, 11, 14, 12)
    a("v_lshl_add_u32 v12, v13, 2, v8", "v_lshlrev_b32 v14, 3, v9", f"v_add_u32 v14, {SLOTA[0] + 256}, v14", f"s_movk_i32 s3, 576", f"v_mad_u32_u24 {v(AWR)}, v12, s3, v14",
      f"v_add_u32 {v(AWRH)}, {SLOTA[2] - SLOTA[0]}, {v(AWR)}")

def kv_compute(a):
    def block(typ, xl, wl, cnt, F):
        a(f"s_waitcnt vmcnt({cnt})")
        for st in range(4):
            a(f"ds_read_b128 {v(F+XF+4*st,4)}, {v(AXK+st)} offset:{XKB + xl}",
              f"ds_read_b64_tr_b16 {v(F+WF+4*st,2)}, {v(AWK)} offset:{wl + st*768}", f"ds_read_b64_tr_b16 {v(F+WF+4*st+2,2)}, {v(AWK)} offset:{wl + st*768 + 192}")
        for st in range(4):
            A, B = (F+WF+4*st, F+XF+4*st) if typ == "K" else (F+XF+4*st, F+WF+4*st)
            a(f"s_waitcnt lgkmcnt({9-3*st})", f"v_mfma_f32_32x32x16_bf16 {v(ACA,16)}, {v(A,4)}, {v(B,4)}, {v(ACA,16)}")
    for typ in ("K", "V"):
        if typ == "K": a(f"s_bitcmp1_b32 {s(SHG)}, 0", "s_cbranch_scc1 L_kvV")
        else: a.label("L_kvV")
        a(f"s_cmp_eq_u32 {s(SW)}, 0", f"s_cbranch_scc0 L_kv2{typ}")
        block(typ, 8*4096, 6144, 14, 64)
        a.label(f"L_kv2{typ}")
        block(typ, 0, 0, 7, 0); block(typ, 4*4096, 3072, 0, 32)
        if typ == "K": a("s_branch L_kvD")
    a.label("L_kvD")

def kv_finalize(a):
    L = v(LANE); T = FR[1]
    a(f"s_cmp_ge_u32 {s(SW)}, 2", "s_cbranch_scc1 L_kvF")
    a(f"s_lshl_b32 {s(ST)}, {s(SW)}, 11", f"v_lshl_add_u32 v11, {L}, 4, {s(ST)}", f"v_add_u32 v12, {HB}, v11")
    for q in range(2):
        for p in range(4): a(f"ds_read_b128 {v(T+16*q+4*p,4)}, {'v12' if WKVP[p] >= HB else 'v11'} offset:{WKVP[p] % HB + q*1024}")
    a(f"s_lshr_b32 {s(ST)}, {s(SHG)}, 1", f"s_lshl_b32 {s(ST+1)}, {s(SQB)}, 1", f"s_add_u32 {s(ST)}, {s(ST)}, {s(ST+1)}",
      f"s_lshr_b32 {s(ST+1)}, {s(ST)}, 2", f"s_mul_i32 {s(ST+1)}, {s(ST+1)}, {BLK}", f"s_and_b32 {s(ST)}, {s(ST)}, 3",
      f"s_mul_i32 {s(ST+3)}, {s(ST)}, {STEPB}", f"s_add_u32 {s(ST+3)}, {s(ST+3)}, {s(ST+1)}", f"s_add_u32 {s(ST+3)}, {s(ST+3)}, 512")
    a(f"s_bitcmp1_b32 {s(SHG)}, 0", "s_cbranch_scc1 L_kvFV")
    def red(scale):
        for q in range(2):
            B = T + 16*q
            a(f"s_waitcnt lgkmcnt({6-4*q})")
            for r in (0, 2): a(f"v_pk_add_f32 {v(B+r,2)}, {v(B+r,2)}, {v(B+4+r,2)}")
            a(f"s_waitcnt lgkmcnt({4-4*q})")
            for r in (0, 2): a(f"v_pk_add_f32 {v(B+8+r,2)}, {v(B+8+r,2)}, {v(B+12+r,2)}")
            for r in (0, 2): a(f"v_pk_add_f32 {v(B+r,2)}, {v(B+r,2)}, {v(B+8+r,2)}")
            if scale:
                for r in range(4): a(f"v_mul_f32 {v(B+r)}, {s(ST+4)}, {v(B+r)}")
            for r in range(2): a(f"v_cvt_pk_bf16_f32 {v(T+32+2*q+r)}, {v(B+2*r)}, {v(B+2*r+1)}")
    a("v_and_b32 v11, 0x13, v10", "v_bfe_u32 v12, v10, 2, 1", "v_lshl_or_b32 v11, v12, 3, v11", "v_bfe_u32 v12, v10, 3, 1", "v_lshl_or_b32 v11, v12, 2, v11", f"s_mov_b32 {s(ST+4)}, {fbits(SCALE)}")
    red(True)
    a(f"s_cmp_eq_u32 {s(SW)}, 1", "s_cbranch_scc1 L_kvK2")
    a("v_lshl_add_u32 v11, v6, 5, v11", "v_lshlrev_b32 v11, 4, v11", f"buffer_store_dwordx4 {v(T+32,4)}, v11, {s(RKV,4)}, {s(ST+3)} offen sc1", "s_branch L_kvF")
    a.label("L_kvK2")
    a("v_lshlrev_b32 v11, 2, v11", f"s_lshl_b32 {s(ST)}, {s(ST)}, 7", f"s_add_u32 {s(ST+1)}, {s(ST+1)}, {s(ST)}",
      "s_mov_b32 exec_hi, 0", f"buffer_store_dword {v(T+32)}, v11, {s(RKV,4)}, {s(ST+1)} offen sc1", "s_mov_b64 exec, -1", "s_branch L_kvF")
    a.label("L_kvFV")
    a("v_cmp_eq_u32 vcc, 18, v10", "v_mov_b32 v12, 0x3f803f80", f"s_movk_i32 {s(ST)}, {VH}", "v_lshlrev_b32 v11, 4, v10", f"v_mad_u32_u24 v11, v6, {s(ST)}, v11",
      f"s_mul_i32 {s(ST+2)}, {s(SW)}, {2*VH}", f"s_add_u32 {s(ST+3)}, {s(ST+3)}, {s(ST+2)}")
    red(False)
    for r in range(4): a(f"v_cndmask_b32 {v(T+32+r)}, {v(T+32+r)}, v12, vcc")
    a("s_mov_b32 exec_lo, 0x7ffff", "s_mov_b32 exec_hi, 0x7ffff", f"buffer_store_dwordx4 {v(T+32,4)}, v11, {s(RKV,4)}, {s(ST+3)} offen offset:1024 sc1", "s_mov_b64 exec, -1")
    a.label("L_kvF")

def main_reads(n, st):
    F = FR[n & 1] + 12*st; sl = (n & 3)
    aw, o = (AW, SLOTA[sl] - SLOTA[0] + st*4608) if sl < 2 else (AWH, SLOTA[sl] - SLOTA[2] + st*4608)
    return [f"ds_read_b64_tr_b16 {v(F+8,2)}, {v(aw)} offset:{o}", f"ds_read_b64_tr_b16 {v(F+10,2)}, {v(aw)} offset:{o+288}",
            f"ds_read_b128 {v(F,4)}, {v(AX+st)} offset:{XKB + n*4096}",
            f"ds_read_b128 {v(F+4,4)}, {v(AXB+st)} offset:{SLOTA[sl] - SLOTA[0]}" if sl < 3 else f"ds_read_b128 {v(F+4,4)}, {v(AXH+st)}"]
def main_mfma(n, st):
    F = FR[n & 1] + 12*st; z = (n == 0 and st == 0)
    return [f"v_mfma_f32_32x32x16_bf16 {v(ACA,16)}, {v(F+8,4)}, {v(F,4)}, {'0' if z else v(ACA,16)}", f"v_mfma_f32_32x32x16_bf16 {v(ACB,16)}, {v(F+8,4)}, {v(F+4,4)}, {'0' if z else v(ACB,16)}"]
def rem_reads(a, n):
    sl = n & 3
    a(f"s_mov_b32 s3, {XKB + n*4096}", f"s_cmp_ge_u32 {s(SW)}, 6", f"s_cselect_b32 s3, {SLOTA[sl] + 18432}, s3")
    for s2 in range(2): a(f"v_add_u32 {v(AX16T+s2)}, s3, {v(AX16+s2)}")
    aw, o = (AWR, SLOTA[sl] - SLOTA[0]) if sl < 2 else (AWRH, SLOTA[sl] - SLOTA[2])
    for s2 in range(2):
        a(f"ds_read_b128 {v(X16[n&1]+4*s2,4)}, {v(AX16T+s2)}",
          f"ds_read_b64_tr_b16 {v(W16[n&1]+4*s2,2)}, {v(aw)} offset:{o + s2*9216}", f"ds_read_b64_tr_b16 {v(W16[n&1]+4*s2+2,2)}, {v(aw)} offset:{o + s2*9216 + 288}")
def rem_mfma(a, n):
    for s2 in range(2):
        a(f"v_mfma_f32_16x16x32_bf16 {v(ACC2,4)}, {v(W16[n&1]+4*s2,4)}, {v(X16[n&1]+4*s2,4)}, {'0' if (n == 0 and s2 == 0) else v(ACC2,4)}")

def flag_store(a, base_s):
    a(f"v_mov_b32 v11, {s(STAG)}", "v_mov_b32 v12, 0", "s_mov_b32 exec_lo, 1", "s_mov_b32 exec_hi, 0", f"buffer_store_dword v11, v12, {s(RDBG,4)}, {s(base_s)} offen sc1", "s_mov_b64 exec, -1")

def poll(a, uid, base_s, nloads, mask=None):
    a(f"v_lshlrev_b32 v11, 7, {v(LANE)}", "v_add_u32 v12, 0x2000, v11", f"s_mov_b32 {s(SIT)}, 0")
    if mask: a(f"s_mov_b32 exec_lo, {mask}", "s_mov_b32 exec_hi, 0")
    a.label(f"L_poll{uid}")
    for i in range(nloads): a(f"buffer_load_dword {v(13+i)}, {v(11+i)}, {s(RDBG,4)}, {s(base_s)} offen sc1")
    a(f"s_add_u32 {s(SIT)}, {s(SIT)}, 1", f"s_cmp_gt_u32 {s(SIT)}, {SPIN}", f"s_cbranch_scc1 L_polld{uid}", "s_waitcnt vmcnt(0)")
    a(f"v_cmp_ne_u32 vcc, {s(STAG)}, v13")
    if nloads == 2: a(f"v_cmp_ne_u32 {s(SEX,2)}, {s(STAG)}, v14", "s_nop 0", f"s_or_b64 vcc, vcc, {s(SEX,2)}")
    else: a("s_nop 4")
    a(f"s_cbranch_vccnz L_poll{uid}")
    a.label(f"L_polld{uid}")
    a("s_waitcnt vmcnt(0)", "s_mov_b64 exec, -1")

KVFLAG_AT = int(os.environ.get("KVF", 2))
SEENV = 196
def seen_to_sgpr(a):
    a(f"v_and_b32 {v(SEENV)}, {v(SEENV)}, {v(SEENV+1)}", f"v_and_b32 {v(SEENV+2)}, {v(SEENV+2)}, {v(SEENV+3)}", f"v_and_b32 {v(SEENV)}, {v(SEENV)}, {v(SEENV+2)}", "s_nop 0",
      f"v_readfirstlane_b32 {s(SFLAG)}, {v(SEENV)}", "s_nop 0")
def kv_stage1(a):
    a(f"v_lshlrev_b32 v15, 4, {v(LANE)}")
    for hh in range(2):
        for i in range(3): a(f"s_add_u32 s3, {s(SLB)}, {hh*HB + i*4096}", "s_mov_b32 m0, s3", "s_nop 0", f"buffer_load_dwordx4 v15, {s(RKV,4)}, s3 offen sc1 lds")

def prologue(a):
    a(f"s_cmp_ge_u32 {s(SW)}, 4", "s_cbranch_scc1 L_role1")
    for role in (0, 1):
        if role == 1: a.label("L_role1")
        (issue_role0 if role == 0 else issue_role1)(a)
        stamp(a, "issued")
        lane_fields(a)
        if role == 0:
            addr_main(a)
            kv_compute(a)
            stamp(a, "kvc")
            setup_late(a)
            for qd in range(4): a(f"ds_write_b128 {v(APT)}, {v(ACA+4*qd,4)} offset:{qd*1024}")
            a(f"v_readfirstlane_b32 {s(STAG)}, {v(TAGV)}", "s_waitcnt lgkmcnt(0)", "s_barrier")
            stamp(a, "bk")
            kv_finalize(a)
            stamp(a, "kvst")
            addr_main2(a)
            a("s_barrier")
        else:
            setup_late(a); addr_rem(a)
            a("s_barrier")
            stamp(a, "bk")
            for m in range(PRE, 3): chunk_dma(a, m)
            a(f"s_waitcnt vmcnt(12)", f"v_readfirstlane_b32 {s(STAG)}, {v(TAGV)}", "s_barrier")
        a(f"s_add_u32 {s(STAG)}, {s(STAG)}, {TAGC}")
        stamp(a, "b0")
        for n in range(9):
            if role == 0:
                if n == KVFLAG_AT:
                    a(f"s_cmp_eq_u32 {s(SW)}, 0", "s_cbranch_scc0 L_nokvf", f"s_lshl_b32 {s(ST)}, {s(SQB)}, 2", f"s_add_u32 {s(ST)}, {s(ST)}, {s(SHG)}", f"s_lshl_b32 s3, {s(SB)}, 7", f"s_add_u32 {s(ST)}, {s(ST)}, s3", f"s_lshl_b32 {s(ST)}, {s(ST)}, 7")
                    flag_store(a, ST)
                    a.label("L_nokvf")
                    stamp(a, "kvflag")
                if n == 8: a(f"v_mov_b32 v13, {SEENA}", f"ds_read_b128 {v(SEENV,4)}, v13")
                if n == 0:
                    for st in range(4):
                        if st == 3: a("s_waitcnt lgkmcnt(8)")
                        a(main_reads(n, st))
                else:
                    M = sum((main_mfma(n-1, st) for st in range(4)), [])
                    R = sum((main_reads(n, st) for st in range(4)), [])
                    a(M[0], R[0:3], M[1], R[3:6], M[2], R[6:9], M[3], R[9:12], M[4], "s_waitcnt lgkmcnt(8)", R[12:16], M[5], M[6], M[7])
                    if n == 8: seen_to_sgpr(a)
                if n < 8:
                    stamp(a, f"w{n+1}")
                    a("s_waitcnt vmcnt(0) lgkmcnt(0)" if n == KVFLAG_AT - 1 else "s_waitcnt lgkmcnt(0)")
            else:
                if n <= 5: chunk_dma(a, n+3)
                if n == 7:
                    a(f"s_lshl_b32 {s(ST+5)}, {s(SB)}, 2", f"s_add_u32 {s(ST+5)}, {s(ST+5)}, {s(SW)}", f"s_sub_u32 {s(ST+5)}, {s(ST+5)}, 4", f"s_lshl_b32 {s(ST+5)}, {s(ST+5)}, 12",
                      "v_lshlrev_b32 v11, 7, v10", f"buffer_load_dword v13, v11, {s(RDBG,4)}, {s(ST+5)} offen sc1")
                if n == 8:
                    a(f"v_mov_b32 v13, {SEENA}", f"ds_read_b128 {v(SEENV,4)}, v13", "s_waitcnt lgkmcnt(0)")
                    seen_to_sgpr(a)
                    a(f"s_cmp_eq_u32 {s(SFLAG)}, 0", "s_cbranch_scc1 L_nost1")
                    kv_stage1(a)
                    a.label("L_nost1")
                rem_reads(a, n)
                if n: rem_mfma(a, n-1)
                if n < 8:
                    stamp(a, f"w{n+1}")
                    a(f"s_waitcnt vmcnt({ {7: 0, 6: 6}.get(n, 12) }) lgkmcnt(0)")
                if n == 7:
                    a(f"v_cmp_ne_u32 vcc, {s(STAG)}, v13", f"s_lshl_b32 s3, {s(SW)}, 2", f"s_add_u32 s3, s3, {SEENA - 16}", "v_mov_b32 v12, s3", "s_cmp_eq_u64 vcc, 0", "s_cselect_b32 s3, 1, 0",
                      "v_mov_b32 v13, s3", "ds_write_b32 v12, v13", "s_waitcnt lgkmcnt(0)")
            if n < 8:
                stamp(a, f"x{n+1}")
                a("s_barrier")
                stamp(a, f"b{n+1}")
        a(f"s_movk_i32 {s(ST+2)}, {QS}", f"s_lshr_b32 {s(ST)}, {s(SHG)}, 1")
        if role == 0:
            for st in range(4): a(f"s_waitcnt lgkmcnt({12-4*st})" if st else "s_waitcnt lgkmcnt(8)", main_mfma(8, st))
            a(f"s_mul_i32 {s(ST)}, {s(ST)}, {32*QS}", f"s_lshl_b32 {s(ST+1)}, {s(SW)}, 6", f"s_add_u32 {s(ST+1)}, {s(ST+1)}, {QX}", f"v_lshl_add_u32 v11, v6, 3, {s(ST+1)}", f"v_mad_u32_u24 v11, v10, {s(ST+2)}, v11",
              f"s_sub_u32 {s(ST+1)}, {32*QS}, {s(ST)}", f"v_add_u32 v12, {s(ST+1)}, v11", f"v_add_u32 v11, {s(ST)}, v11", "s_nop 2")
            for t, (acc, ad) in enumerate(((ACA, 11), (ACB, 12))):
                for q in range(4):
                    for r in (2*q, 2*q+1): a(f"v_cvt_pk_bf16_f32 {v(FR[1]+8*t+r)}, {v(acc+2*r)}, {v(acc+2*r+1)}")
                    a(f"ds_write_b64 {v(ad)}, {v(FR[1]+8*t+2*q,2)} offset:{16*q}")
        else:
            a("s_waitcnt lgkmcnt(0)")
            rem_mfma(a, 8)
            a(f"s_bfe_u32 {s(ST+1)}, {s(SW)}, 0x10001", f"s_xor_b32 {s(ST)}, {s(ST)}, {s(ST+1)}", f"s_lshl_b32 {s(ST)}, {s(ST)}, 1", f"s_and_b32 {s(ST+1)}, {s(SW)}, 1", f"s_add_u32 {s(ST)}, {s(ST)}, {s(ST+1)}",
              f"s_mul_i32 {s(ST)}, {s(ST)}, {16*QS}", f"s_add_u32 {s(ST)}, {s(ST)}, {QX + 256}", f"v_lshrrev_b32 v12, 4, {v(LANE)}", f"v_lshl_add_u32 v12, v12, 3, {s(ST)}",
              f"v_and_b32 v13, 15, {v(LANE)}", f"v_mad_u32_u24 v12, v13, {s(ST+2)}, v12")
            for r in range(2): a(f"v_cvt_pk_bf16_f32 {v(XF+r)}, {v(ACC2+2*r)}, {v(ACC2+2*r+1)}")
            a(f"ds_write_b64 v12, {v(XF,2)}")
        if role == 0: a("s_branch L_pro_done")
    a.label("L_pro_done")

def wait_kv(a):
    a(f"s_cmp_eq_u32 {s(SFLAG)}, 0", "s_cbranch_scc0 L_kvfast")
    a(f"s_cmp_ge_u32 {s(SW)}, 4", "s_cbranch_scc0 L_kvw0")
    poll(a, "kv", ST+5, 1, mask=0xffffffff)
    a("s_barrier")
    kv_stage1(a)
    a("s_branch L_kvfast")
    a.label("L_kvw0")
    a("s_barrier")
    a.label("L_kvfast")
    a(f"s_or_b32 s3, {s(SQB)}, {s(SHG)}", f"s_xor_b32 {s(ST+5)}, {s(SW)}, 3", f"s_or_b32 s3, s3, {s(ST+5)}", "s_cmp_eq_u32 s3, 0", "s_cbranch_scc0 L_kvseen", f"s_lshl_b32 {s(ST+5)}, {s(SB)}, 7", f"s_add_u32 {s(ST+5)}, {s(ST+5)}, {FEP}")
    flag_store(a, ST+5)
    a.label("L_kvseen")

IDX, AK1, AK2, AV = 2, 3, 4, 5
S = [16, 32, 48, 64]; O = [80, 96, 112, 128]; Q1 = [144, 148, 152, 156]; Q2 = [160, 164]
K1 = [168, 172]; K2 = 176; V = [[180, 184], [188, 192]]; MX = 196

def kv_piece(a, base, i):
    return [f"s_add_u32 s3, {s(base)}, {i*4096}", "s_mov_b32 m0, s3", "s_nop 0", f"buffer_load_dwordx4 v15, {s(RKV,4)}, s3 offen sc1 lds"]
def kv_stage2(a):
    a(f"s_lshr_b32 {s(ST+1)}, s2, 3", f"s_add_u32 {s(ST)}, {s(SLB)}, 12288", f"s_add_u32 {s(ST+2)}, {s(ST)}, {HB}")
    for i in range(16):
        a(f"s_and_b32 {s(ST+1)}, {s(ST+1)}, 15", f"s_lshl_b32 {s(ST+3)}, {s(ST+1)}, 12", f"s_add_u32 s3, {s(ST+3)}, {s(ST)}", "s_mov_b32 m0, s3", f"s_cmp_ge_u32 {s(ST+1)}, 13",
          f"buffer_load_dwordx4 v15, {s(RKV,4)}, s3 offen sc1 lds", f"s_cbranch_scc1 L_s2{i}", f"s_add_u32 s3, {s(ST+3)}, {s(ST+2)}", "s_mov_b32 m0, s3", "s_nop 0",
          f"buffer_load_dwordx4 v15, {s(RKV,4)}, s3 offen sc1 lds")
        a.label(f"L_s2{i}")
        a(f"s_add_u32 {s(ST+1)}, {s(ST+1)}, 1")
def kv_stage3(a):
    a(f"s_add_u32 {s(ST)}, {s(SLB)}, {HB}")
    for i in (16, 17, 18): a(kv_piece(a, ST, i))
def wo_touch(a):
    srd(a, RW, PWO, 576*1152)
    a(f"s_lshr_b32 s3, s2, 3", "s_mul_i32 s3, s3, 162", f"s_mul_i32 {s(ST+1)}, {s(SW)}, 21", f"s_add_u32 s3, s3, {s(ST+1)}", "s_lshl_b32 s3, s3, 7", f"v_lshlrev_b32 v14, 7, {v(LANE)}",
      "s_mov_b32 exec_lo, 0x1fffff", "s_mov_b32 exec_hi, 0", f"buffer_load_dword {v(JUNK)}, v14, {s(RW,4)}, s3 offen", "s_mov_b64 exec, -1")

TLBW = int(os.environ.get("TLBW", 0))
def tlb_touch(a):
    if not TLBW: return
    a(f"v_and_b32 v14, 1, {v(LANE)}", f"s_mov_b32 s3, {144*1024 - 128}", "v_mul_lo_u32 v13, v14, s3", f"s_mov_b32 s3, {128*2304 - 1152 - 128}", "v_mul_lo_u32 v14, v14, s3",
      f"s_mul_i32 {s(ST)}, {s(SGRP)}, {144*1024}", f"s_and_b32 s3, {s(SGRP)}, 15", f"s_mul_i32 s3, s3, {128*2304}",
      "s_mov_b32 exec_lo, 3", "s_mov_b32 exec_hi, 0", f"buffer_load_dword {v(JUNK+1)}, v13, {s(RO,4)}, {s(ST)} offen sc1", f"buffer_load_dword {v(JUNK+2)}, v14, {s(ROUT,4)}, s3 offen", "s_mov_b64 exec, -1")

def attn_addr(a):
    L = v(LANE)
    a(f"s_lshr_b32 {s(ST+2)}, {s(SW)}, 2", f"s_mul_i32 {s(ST+2)}, {s(ST+2)}, {8*BLK}")
    a(f"v_lshl_add_u32 {v(AK1)}, {L}, 4, {s(ST+2)}", f"v_lshl_add_u32 {v(AK2)}, v10, 2, {s(ST+2)}")
    a("v_and_b32 v11, 0x13, v10", "v_bfe_u32 v12, v10, 2, 1", "v_lshl_or_b32 v11, v12, 3, v11", "v_bfe_u32 v12, v10, 3, 1", "v_lshl_or_b32 v11, v12, 2, v11")
    a("v_mov_b32 v12, 0x4000", "v_cmp_lt_u32 vcc, 16, v10", "s_nop 1", "v_cndmask_b32 v11, v11, v12, vcc")
    a("v_cmp_eq_u32 vcc, 20, v10", "s_nop 1", "v_cndmask_b32 v11, v11, 17, vcc")
    a("v_and_b32 v12, 0x1b, v10", "v_cmp_eq_u32 vcc, 17, v12", "s_nop 1", "v_cndmask_b32 v11, v11, 18, vcc")
    a(f"s_movk_i32 {s(ST+3)}, {VH}", f"v_lshl_add_u32 v11, v11, 4, {s(ST+2)}", f"v_mad_u32_u24 {v(AV)}, v6, {s(ST+3)}, v11", f"v_mov_b32 {v(IDX)}, 0xdddddddd", f"v_lshlrev_b32 v15, 4, {L}")

QA = 196
def q_addr(a):
    a(f"s_and_b32 {s(ST+3)}, {s(SW)}, 3", f"s_mul_i32 {s(ST+3)}, {s(ST+3)}, 72", f"s_add_u32 {s(ST+3)}, {s(ST+3)}, {QX}", f"s_movk_i32 {s(ST+4)}, {QS}",
      f"v_mov_b32 {v(QA)}, {s(ST+3)}", f"v_mad_u32_u24 {v(QA)}, v10, {s(ST+4)}, {v(QA)}", f"v_lshl_add_u32 {v(QA+1)}, v6, 4, {v(QA)}", f"v_add_u32 {v(QA+2)}, {32*QS}, {v(QA+1)}", f"v_mad_u32_u24 {v(QA)}, v6, 36, {v(QA)}")
    for p in range(2): a(f"v_mov_b32 {v(Q2[p]+1)}, 0", f"v_mov_b32 {v(Q2[p]+2)}, 0")
def q_tile(t):
    base = QA + 1 + (t >> 1); o = 9*(t & 1)
    return [f"ds_read2_b32 {v(Q1[t],2)}, {v(base)} offset0:{o} offset1:{o+1}", f"ds_read2_b32 {v(Q1[t]+2,2)}, {v(base)} offset0:{o+2} offset1:{o+3}"]
def q_extra(p, odd): return [f"ds_read_b32 {v(Q2[p] + 3*odd)}, {v(QA)} offset:{32 + p*32*QS}"]

def E(t, x, y, sub):
    out = []
    for i in range(x, y):
        if sub: out.append(f"v_sub_f32 {v(S[t]+i)}, {v(S[t]+i)}, {v(MX+t)}")
        out.append(f"v_exp_f32 {v(S[t]+i)}, {v(S[t]+i)}")
    return out
pvhi = lambda t, vb: [f"v_smfmac_f32_32x32x32_bf16 {v(O[t],16)}, {v(V[vb][1],4)}, {v(S[t]+8,8)}, {v(IDX)}"]
pvlo = lambda t, vb: [f"v_smfmac_f32_32x32x32_bf16 {v(O[t],16)}, {v(V[vb][0],4)}, {v(S[t],8)}, {v(IDX)}"]
qk1 = lambda t, kb: [f"v_mfma_f32_32x32x16_bf16 {v(S[t],16)}, {v(K1[kb],4)}, {v(Q1[t],4)}, 0"]
q2b = lambda t, sg: [f"v_mfma_f32_32x32x4bf16_1k {v(S[t],32)}, {v(K2 + (sg & 2),2)}, {v(Q2[t>>1] + 2*(sg & 1),2)}, {v(S[t],32)}"]

def attn_step(sg, sub, prio=None):
    b = sg & 1; nb = b ^ 1
    off = 512 + (sg+1)*STEPB if sg < 3 else BLK + 512
    k1 = [f"ds_read_b128 {v(K1[nb],4)}, {v(AK1)} offset:{off}"]
    v0 = [f"ds_read_b128 {v(V[nb][0],4)}, {v(AV)} offset:{off+1024}"]
    v1 = [f"ds_read_b128 {v(V[nb][1],4)}, {v(AV)} offset:{off+1024+2*VH}"]
    k2 = []
    if sg == 0: k2 = [f"ds_read2_b32 {v(K2+2,2)}, {v(AK2)} offset0:64 offset1:96"]
    if sg == 1: k2 = [f"v_add_u32 {v(AK2)}, {BLK}, {v(AK2)}"]
    if sg == 2: k2 = [f"ds_read2_b32 {v(K2,2)}, {v(AK2)} offset0:0 offset1:32"]
    w = ["s_waitcnt lgkmcnt(0)"]
    P = (lambda k: [f"s_setprio {prio[k]}"] if prio and k in prio else [])
    L = P((sg, 0))
    L += E(0,0,2,sub) + pvhi(3, nb) + E(0,2,4,sub) + k1 + E(0,4,5,sub) + qk1(3, b) + E(0,5,8,sub) + v0 + E(0,8,10,sub) + pvlo(0, b) + E(0,10,12,sub) + v1 + E(0,12,14,sub) + q2b(2, sg) + E(0,14,16,sub) + k2
    L += P((sg, 1))
    L += E(1,0,6,sub) + pvhi(0, b) + E(1,6,9,sub) + w + qk1(0, nb) + E(1,9,12,sub) + pvlo(1, b) + E(1,12,16,sub)
    L += P((sg, 2))
    L += E(2,0,2,sub) + pvhi(1, b) + E(2,2,5,sub) + qk1(1, nb) + E(2,5,10,sub) + pvlo(2, b) + E(2,10,14,sub) + q2b(0, (sg+1) & 3) + E(2,14,16,sub)
    L += P((sg, 3))
    L += E(3,0,6,sub) + pvhi(2, b) + E(3,6,9,sub) + qk1(2, nb) + E(3,9,12,sub) + pvlo(3, b) + E(3,12,16,sub)
    return L

def first_k(): return [f"ds_read_b128 {v(K1[0],4)}, {v(AK1)} offset:512"]
def first_k2(): return [f"ds_read2_b32 {v(K2,2)}, {v(AK2)} offset0:0 offset1:32"]
def first_v(): return [f"ds_read_b128 {v(V[0][0],4)}, {v(AV)} offset:{512+1024}", f"ds_read_b128 {v(V[0][1],4)}, {v(AV)} offset:{512+1024+2*VH}"]

def attn_loop(a, uid, sub, prio=None, events={}, with_q=True, pre=None):
    if with_q:
        a(first_k(), q_tile(0), q_tile(1), first_k2(), q_extra(0, 0), q_tile(2), q_tile(3), q_extra(0, 1), q_extra(1, 0), q_extra(1, 1))
        if pre: pre(a)
        a("s_waitcnt lgkmcnt(11)", qk1(0, 0), "s_waitcnt lgkmcnt(9)", qk1(1, 0), first_v(), "s_waitcnt lgkmcnt(7)", qk1(2, 0), "s_nop 5")
    else:
        a(first_k(), first_k2(), first_v(), "s_waitcnt lgkmcnt(0)", qk1(0, 0), qk1(1, 0), qk1(2, 0), "s_nop 7", "s_nop 0")
    a(q2b(0, 0), f"s_mov_b32 {s(SIT)}, 0", "s_waitcnt lgkmcnt(0)", "s_nop 15", "s_nop 1")
    a(".p2align 6")
    a.label(f"L_att{uid}")
    for sg in range(4): a(attn_step(sg, sub, prio))
    mask = sum(1 << (i+1) for i in events) | (1 << 8)
    a(f"v_add_u32 {v(AK1)}, {BLK}, {v(AK1)}", f"v_add_u32 {v(AV)}, {BLK}, {v(AV)}")
    a(f"s_add_u32 {s(SIT)}, {s(SIT)}, 1", f"s_bitcmp0_b32 {mask}, {s(SIT)}", f"s_cbranch_scc1 L_att{uid}")
    for i in events:
        if DIAG and f"it{i}" in STAMPS and uid != "S":
            a(f"s_cmp_eq_u32 {s(SIT)}, {i+1}", f"s_cbranch_scc0 L_st{uid}{i}"); stamp(a, f"it{i}"); a.label(f"L_st{uid}{i}")
    for i, ev in events.items():
        a(f"s_cmp_eq_u32 {s(SIT)}, {i+1}", f"s_cbranch_scc0 L_ev{uid}{i}")
        ev(a)
        a(f"s_branch L_att{uid}")
        a.label(f"L_ev{uid}{i}")
    a(pvhi(3, 1))

def zero_acc(a):
    for r in range(64): a(f"v_mov_b32 {v(O[0]+r)}, 0")
    for r in range(8): a(f"v_mov_b32 {v(S[3]+8+r)}, 0")
    for r in range(4): a(f"v_mov_b32 {v(V[1][1]+r)}, 0")

def max_pass(a):
    for t in range(4): a(f"v_mov_b32 {v(MX+t)}, 0xff800000")
    a(f"s_mov_b32 {s(SIT)}, 0")
    a.label("L_mx")
    a(f"ds_read2_b32 {v(K2,2)}, {v(AK2)} offset0:0 offset1:32", f"ds_read2_b32 {v(K2+2,2)}, {v(AK2)} offset0:64 offset1:96")
    for sg in range(4):
        a(f"ds_read_b128 {v(K1[0],4)}, {v(AK1)} offset:{512 + sg*STEPB}", "s_waitcnt lgkmcnt(0)")
        for t in range(4): a(qk1(t, 0))
        a("s_nop 9", q2b(0, sg), q2b(2, sg), "s_nop 15", "s_nop 3")
        for t in range(4):
            for r in range(8): a(f"v_max3_f32 {v(MX+t)}, {v(S[t]+2*r)}, {v(S[t]+2*r+1)}, {v(MX+t)}")
    a(f"v_add_u32 {v(AK1)}, {BLK}, {v(AK1)}", f"v_add_u32 {v(AK2)}, {BLK}, {v(AK2)}")
    a(f"s_add_u32 {s(SIT)}, {s(SIT)}, 1", f"s_cmp_lt_u32 {s(SIT)}, 8", "s_cbranch_scc1 L_mx")
    a(f"v_subrev_u32 {v(AK1)}, {8*BLK}, {v(AK1)}", f"v_subrev_u32 {v(AK2)}, {8*BLK}, {v(AK2)}")
    a(f"v_lshlrev_b32 v11, 4, v0", f"v_add_u32 v11, {KVB + 2048}, v11", f"ds_write_b128 v11, {v(MX,4)}", "s_waitcnt lgkmcnt(0)", "s_barrier")
    a(f"v_xor_b32 v12, 32, v0", "v_xor_b32 v13, 0x100, v0", "v_xor_b32 v14, 0x120, v0")
    for i in range(3): a(f"v_lshlrev_b32 {v(12+i)}, 4, {v(12+i)}", f"v_add_u32 {v(12+i)}, {KVB + 2048}, {v(12+i)}", f"ds_read_b128 {v(S[0]+4*i,4)}, {v(12+i)}")
    a("s_waitcnt lgkmcnt(0)")
    for t in range(4): a(f"v_max3_f32 {v(MX+t)}, {v(MX+t)}, {v(S[0]+t)}, {v(S[0]+4+t)}", f"v_max_f32 {v(MX+t)}, {v(MX+t)}, {v(S[0]+8+t)}")

FLAGA = KVB + 10240
def scr_addr(a, dst, w_s, n0, stride):
    a(f"s_mul_i32 s3, {s(w_s)}, {stride}", f"s_cmp_ge_u32 {s(w_s)}, {n0}", f"s_cselect_b32 {s(ST+9)}, {SCR1 - n0*stride}, 0", f"s_cselect_b32 {s(ST+8)}, 0, {SCR0}", f"s_add_u32 s3, s3, {s(ST+9)}", f"s_add_u32 s3, s3, {s(ST+8)}",
      f"v_lshl_add_u32 {v(dst)}, {v(LANE)}, 4, s3")
def attn_epilogue(a, uid, check_range, oflags, after_barrier=None):
    L = v(LANE)
    scr_addr(a, 13, SW, 3, 6144)
    a(f"s_xor_b32 {s(ST+1)}, {s(SW)}, 4")
    scr_addr(a, 14, ST+1, 3, 6144)
    stamp(a, "e0" + uid)
    a("s_barrier")
    stamp(a, "e1" + uid)
    if after_barrier: after_barrier(a)
    a(f"s_cmp_ge_u32 {s(SW)}, 4", f"s_cbranch_scc1 L_ep1{uid}")
    for kh in (0, 1):
        if kh: a.label(f"L_ep1{uid}")
        for hh in range(2):
            T = O[2*(1-kh)+hh]
            a(f"ds_write_b128 v13, {v(T,4)} offset:{hh*3072}", f"ds_write_b128 v13, {v(T+4,4)} offset:{hh*3072 + 1024}", f"ds_write_b64 v13, {v(T+8,2)} offset:{hh*3072 + 2048}")
        if check_range:
            a(f"s_mov_b32 {s(ST)}, 0x21800000", f"s_mov_b32 {s(ST+1)}, 0x5d800000", f"s_mov_b32 {s(ST+2)}, 0x7e800000")
            a(f"v_minimum3_f32 v11, {v(O[0]+9)}, {v(O[1]+9)}, {v(O[2]+9)}", f"v_maximum3_f32 v12, {v(O[0]+9)}, {v(O[1]+9)}, {v(O[2]+9)}",
              f"v_minimum3_f32 v11, v11, {v(O[3]+9)}, {v(O[3]+9)}", f"v_maximum3_f32 v12, v12, {v(O[3]+9)}, {v(O[3]+9)}")
            regs = [O[t]+r for t in range(4) for r in range(9)]
            a(f"v_maximum3_f32 v15, abs({v(regs[0])}), abs({v(regs[1])}), abs({v(regs[2])})")
            for i in range(3, 36, 2): a(f"v_maximum3_f32 v15, abs({v(regs[i])}), abs({v(regs[min(i+1, 35)])}), v15")
            a(f"v_cmp_nle_f32 vcc, {s(ST)}, v11", f"v_cmp_nge_f32 {s(ST+4,2)}, {s(ST+1)}, v12", f"v_cmp_nge_f32 {s(ST+6,2)}, {s(ST+2)}, v15", f"s_lshl_b32 {s(ST+1)}, {s(SW)}, 2",
              f"s_or_b64 vcc, vcc, {s(ST+4,2)}", f"s_or_b64 vcc, vcc, {s(ST+6,2)}", "s_cmp_lg_u64 vcc, 0", f"s_cselect_b32 {s(ST)}, 1, 0", f"v_mov_b32 v11, {s(ST)}",
              f"s_add_u32 {s(ST+1)}, {s(ST+1)}, {FLAGA}", f"v_mov_b32 v12, {s(ST+1)}", "ds_write_b32 v12, v11", f"v_mov_b32 v12, {FLAGA}")
        a(f"s_and_b32 {s(ST)}, {s(SQB)}, 1", f"s_lshl_b32 {s(ST)}, {s(ST)}, 1", f"s_add_u32 {s(ST)}, {s(ST)}, {kh}",
          f"s_lshl_b32 {s(ST+1)}, {s(SGRP)}, 2", f"s_add_u32 {s(ST)}, {s(ST)}, {s(ST+1)}", f"s_mul_i32 {s(ST)}, {s(ST)}, 36", f"s_mul_i32 {s(ST+1)}, {s(SHG)}, 9", f"s_add_u32 {s(ST)}, {s(ST)}, {s(ST+1)}",
          f"s_lshl_b32 {s(ST)}, {s(ST)}, 10", f"s_and_b32 {s(ST+1)}, {s(SW)}, 3", f"s_lshl_b32 {s(ST+2)}, {s(ST+1)}, 8", f"s_add_u32 {s(ST+2)}, {s(ST+2)}, {s(ST)}", f"s_add_u32 {s(ST+2)}, {s(ST+2)}, 8192",
          f"s_lshl_b32 {s(ST+1)}, {s(ST+1)}, 11", f"s_add_u32 {s(ST)}, {s(ST)}, {s(ST+1)}", f"v_lshlrev_b32 v15, 4, {L}", f"v_lshlrev_b32 v13, 2, {L}")
        stamp(a, "e2" + uid)
        a("s_waitcnt lgkmcnt(0)", "s_barrier")
        stamp(a, "e3" + uid)
        if check_range: a(f"ds_read_b128 {v(S[3],4)}, v12", f"ds_read_b128 {v(S[3]+4,4)}, v12 offset:16")
        for hh in range(2):
            a(f"ds_read_b64 {v(S[hh]+8,2)}, v14 offset:{hh*3072 + 2048}", f"ds_read_b128 {v(S[hh],4)}, v14 offset:{hh*3072}", f"ds_read_b128 {v(S[hh]+4,4)}, v14 offset:{hh*3072 + 1024}")
        if check_range:
            F = S[3]
            a("s_waitcnt lgkmcnt(6)", f"v_or3_b32 v11, {v(F)}, {v(F+1)}, {v(F+2)}", f"v_or3_b32 v11, v11, {v(F+3)}, {v(F+4)}", f"v_or3_b32 v11, v11, {v(F+5)}, {v(F+6)}", f"v_or_b32 v11, v11, {v(F+7)}",
              "s_nop 0", f"v_readfirstlane_b32 s3, v11", "s_nop 0", "s_cmp_lg_u32 s3, 0", "s_cbranch_scc1 L_fallback")
        for hh in range(2):
            T = O[2*kh+hh]; P = S[hh]
            a(f"s_waitcnt lgkmcnt({5-3*hh})", f"v_add_f32 {v(T+9)}, {v(T+9)}, {v(P+9)}", f"v_add_f32 {v(T+8)}, {v(T+8)}, {v(P+8)}", f"v_rcp_f32 {v(T+9)}, {v(T+9)}", f"s_waitcnt lgkmcnt({3-3*hh})")
            for r in range(0, 8, 2): a(f"v_pk_add_f32 {v(T+r,2)}, {v(T+r,2)}, {v(P+r,2)}")
            for r in range(0, 8, 2): a(f"v_pk_mul_f32 {v(T+r,2)}, {v(T+r,2)}, {v(T+8,2)} op_sel:[0,1] op_sel_hi:[1,1]")
            a(f"v_mul_f32 {v(T+8)}, {v(T+8)}, {v(T+9)}")
            for r in range(4): a(f"v_cvt_pk_bf16_f32 {v(S[2]+4*hh+r)}, {v(T+2*r)}, {v(T+2*r+1)}")
            if hh == 0: stamp(a, "e4" + uid)
            a(f"buffer_store_dwordx4 {v(S[2]+4*hh,4)}, v15, {s(RO,4)}, {s(ST)} offen offset:{1024*hh}{oflags}")
        a(f"v_cvt_pk_bf16_f32 {v(S[2]+8)}, {v(O[2*kh]+8)}, {v(O[2*kh+1]+8)}", f"buffer_store_dword {v(S[2]+8)}, v13, {s(RO,4)}, {s(ST+2)} offen{oflags}")
        if kh == 0: a(f"s_branch L_ep2{uid}")
    a.label(f"L_ep2{uid}")

def attention(a, oflags, prio):
    stamp(a, "qdone")
    attn_addr(a); q_addr(a); zero_acc(a)
    wait_kv(a)
    a("s_waitcnt vmcnt(0) lgkmcnt(0)", "s_barrier")
    stamp(a, "kv1")
    bar = lambda a: a("s_waitcnt vmcnt(0)", "s_barrier")
    def evA5(a): bar(a); wo_dma(a)
    def evB0(a): bar(a); kv_stage3(a); wo_touch(a); tlb_touch(a)
    a(f"s_cmp_ge_u32 {s(SW)}, 4", "s_cbranch_scc1 L_roleB")
    srd(a, RW, PWO, 576*1152)
    attn_loop(a, "A", False, prio[0], {0: bar, 5: evA5}); a("s_setprio 0", "s_branch L_attD")
    a.label("L_roleB"); a("s_setprio 1")
    attn_loop(a, "B", False, prio[1], {0: evB0, 5: bar, 6: wo_dma}, pre=kv_stage2); a("s_setprio 0")
    a.label("L_attD")
    stamp(a, "loop")
    attn_epilogue(a, "", True, oflags)
    stamp(a, "epi")

def fallback(a, oflags, back):
    a.label("L_fallback")
    a(f"v_subrev_u32 {v(AK1)}, {HB}, {v(AK1)}", f"v_subrev_u32 {v(AK2)}, {HB}, {v(AK2)}", f"v_subrev_u32 {v(AV)}, {HB}, {v(AV)}")
    a(f"s_lshr_b32 {s(ST)}, {s(SW)}, 2", f"s_mul_i32 {s(ST)}, {s(ST)}, {HB}", f"s_and_b32 s3, {s(SW)}, 3", "s_lshl_b32 s3, s3, 10", f"s_add_u32 {s(ST)}, {s(ST)}, s3")
    a("s_waitcnt vmcnt(0) lgkmcnt(0)", "s_barrier")
    for i in range(19): a(kv_piece(a, ST, i))
    a("s_waitcnt vmcnt(0)", "s_barrier")
    max_pass(a)
    zero_acc(a)
    attn_loop(a, "S", True, with_q=False)
    attn_epilogue(a, "s", False, oflags, wo_dma)
    a(f"s_branch {back}")

BF, AF, D0, DX = 16, 88, 208, 240
A0, A1, AXT = 2, 3, 4
def wo_dma(a):
    L = v(LANE)
    a(f"v_lshrrev_b32 v200, 3, {L}", f"v_and_b32 v201, 7, {L}", f"v_bfe_u32 v202, {L}, 4, 1", "v_lshlrev_b32 v202, 2, v202", "v_xor_b32 v201, v201, v202", "v_lshlrev_b32 v201, 4, v201",
      f"s_movk_i32 {s(ST+4)}, 1152", f"s_movk_i32 {s(ST+5)}, {18*1152}", f"v_mad_u32_u24 v202, v200, {s(ST+5)}, v201", f"v_mad_u32_u24 v201, v200, {s(ST+4)}, v201")
    a(f"s_lshr_b32 {s(ST+2)}, {s(SW)}, 1", f"s_and_b32 {s(ST+3)}, {s(SW)}, 1", f"s_mul_i32 {s(ST+6)}, {s(ST+2)}, {144*1152}", f"s_lshl_b32 {s(ST)}, {s(SJJ)}, 7", f"s_add_u32 {s(ST+7)}, {s(ST+6)}, {s(ST)}",
      f"s_mul_i32 {s(ST)}, {s(ST+3)}, {8*1152}", f"s_add_u32 {s(ST)}, {s(ST)}, {s(ST+7)}",
      f"s_and_b32 {s(ST+9)}, {s(ST+2)}, 1", f"s_mul_i32 {s(ST+1)}, {s(ST+9)}, {9*2048}", f"s_lshl_b32 {s(ST+8)}, {s(ST+3)}, 10", f"s_add_u32 {s(ST+1)}, {s(ST+1)}, {s(ST+8)}",
      f"s_lshr_b32 {s(ST+2)}, {s(ST+2)}, 1", f"s_mul_i32 {s(ST+2)}, {s(ST+2)}, {HB}", f"s_add_u32 {s(ST+1)}, {s(ST+1)}, {s(ST+2)}")
    for ff in range(8):
        dma(a, 201, RW, s(ST), ldsaddr_s=ST+1)
        a(f"s_add_u32 {s(ST)}, {s(ST)}, {18*1152}", f"s_add_u32 {s(ST+1)}, {s(ST+1)}, 2048")
    a(f"s_mul_i32 {s(ST)}, {s(ST+3)}, 1152", f"s_add_u32 {s(ST)}, {s(ST)}, {s(ST+7)}", f"s_add_u32 {s(ST)}, {s(ST)}, {16*1152}")
    dma(a, 202, RW, s(ST), ldsaddr_s=ST+1)
    a(f"v_lshrrev_b32 v200, 2, {L}", f"v_and_b32 v201, 3, {L}", "v_lshlrev_b32 v201, 4, v201", "v_and_b32 v202, 7, v200", f"v_mad_u32_u24 v202, v202, {s(ST+5)}, v201", f"v_lshrrev_b32 v203, 5, {L}",
      f"v_mad_u32_u24 v202, v203, {s(ST+4)}, v202", f"v_mad_u32_u24 v201, v200, {s(ST+4)}, v201")
    a(f"s_lshr_b32 {s(ST)}, {s(SJJ)}, 2", f"s_lshl_b32 {s(ST)}, {s(ST)}, 6", f"s_add_u32 {s(ST+6)}, {s(ST+6)}, {s(ST)}", f"s_add_u32 {s(ST+6)}, {s(ST+6)}, 1024",
      f"s_mul_i32 {s(ST)}, {s(ST+3)}, {18*1152}", f"s_add_u32 {s(ST)}, {s(ST)}, {s(ST+6)}",
      f"s_mul_i32 {s(ST+7)}, {s(ST+9)}, {9*1024}", f"s_add_u32 {s(ST+7)}, {s(ST+7)}, {s(ST+2)}", f"s_add_u32 {s(ST+7)}, {s(ST+7)}, {WOX}", f"s_add_u32 {s(ST+1)}, {s(ST+7)}, {s(ST+8)}")
    for n in range(4):
        dma(a, 201, RW, s(ST), ldsaddr_s=ST+1)
        if n < 3: a(f"s_add_u32 {s(ST)}, {s(ST)}, {36*1152}", f"s_add_u32 {s(ST+1)}, {s(ST+1)}, 2048")
    a(f"s_cmp_eq_u32 {s(ST+3)}, 0", f"s_cbranch_scc0 L_wox{a.uid}", f"s_add_u32 {s(ST)}, {s(ST+6)}, {16*1152}", f"s_add_u32 {s(ST+1)}, {s(ST+7)}, 8192")
    dma(a, 202, RW, s(ST), ldsaddr_s=ST+1)
    a.label(f"L_wox{a.uid}"); a.uid += 1

OUTF = os.environ.get("OUTF", "")
OLA = int(os.environ.get("OLA", 5))
APRE = int(os.environ.get("APRE", 1))
OROT = int(os.environ.get("OROT", 1)); OTOUCH = int(os.environ.get("OTOUCH", 0))
def oproj(a, oflags, wait_o=None):
    L = v(LANE)
    a(f"s_add_u32 {s(SJ)}, {s(SW)}, {s(SJJ)}" if OROT else f"s_mov_b32 {s(SJ)}, {s(SW)}", f"s_and_b32 {s(SJ)}, {s(SJ)}, 7", f"s_lshr_b32 {s(ST+2)}, {s(SJ)}, 1", f"s_and_b32 {s(ST+3)}, {s(SJ)}, 1")
    a(f"s_lshl_b32 {s(ST)}, {s(SGRP)}, 2", f"s_add_u32 {s(ST)}, {s(ST)}, {s(ST+2)}", f"s_mul_i32 {s(ST)}, {s(ST)}, 36", f"s_mul_i32 {s(ST+1)}, {s(ST+3)}, 18", f"s_add_u32 {s(ST)}, {s(ST)}, {s(ST+1)}",
      f"s_lshl_b32 {s(ST)}, {s(ST)}, 10", f"v_lshlrev_b32 v15, 4, {L}")
    a(f"s_mov_b32 {s(SXB)}, {s(ST)}")
    lane_fields(a)
    a("v_and_b32 v11, 1, v9", "v_lshlrev_b32 v11, 5, v11", "v_lshl_add_u32 v11, v7, 4, v11", "v_lshrrev_b32 v12, 1, v9", "v_lshl_add_u32 v11, v12, 3, v11", "v_lshl_add_u32 v12, v6, 3, v8")
    a(f"s_mul_i32 {s(ST)}, {s(ST+3)}, {HB}", f"s_add_u32 {s(ST+1)}, {s(ST)}, {WOX}", f"v_lshl_add_u32 v13, v12, 6, v11", f"v_add_u32 {v(AXT)}, {s(ST+1)}, v13",
      "v_lshl_add_u32 v13, v12, 7, v11", f"v_add_u32 v13, {s(ST)}, v13",
      "v_lshrrev_b32 v12, 1, v8", f"v_lshl_add_u32 {v(A0)}, v12, 6, v13", "v_xor_b32 v12, 1, v12", f"v_lshl_add_u32 {v(A1)}, v12, 6, v13")
    scr_addr(a, 13, SJ, 5, 4096)
    a(f"s_xor_b32 {s(ST)}, {s(SJ)}, 1")
    scr_addr(a, 14, ST, 5, 4096)
    a(f"v_add_u32 v11, {SCR1 + 3*4096}, v15")
    a(f"s_and_b32 {s(ST)}, {s(SGRP)}, 15", f"s_lshl_b32 {s(ST)}, {s(ST)}, 2", f"s_add_u32 {s(ST)}, {s(ST)}, {s(ST+2)}", f"s_mul_i32 {s(ST)}, {s(ST)}, {32*2304}", f"s_mul_i32 {s(ST+1)}, {s(SB)}, 1152",
      f"s_add_u32 {s(ST+4)}, {s(ST)}, {s(ST+1)}", f"s_movk_i32 {s(ST+1)}, 2304", "v_lshlrev_b32 v12, 5, v6",
      f"v_lshl_add_u32 v9, v7, 4, v12", f"v_and_b32 v8, 15, {L}", f"v_mad_u32_u24 v9, v8, {s(ST+1)}, v9",
      f"v_lshl_add_u32 v12, v7, 6, v12", f"v_bfe_u32 v8, {L}, 3, 1", "v_lshl_add_u32 v12, v8, 4, v12", f"v_and_b32 v8, 7, {L}", f"v_mad_u32_u24 v12, v8, {s(ST+1)}, v12",
      f"s_lshr_b32 {s(ST)}, {s(SJJ)}, 2", f"s_lshl_b32 {s(ST)}, {s(ST)}, 6", f"s_add_u32 {s(ST+5)}, {s(ST+4)}, {s(ST)}", f"s_add_u32 {s(ST+5)}, {s(ST+5)}, 1024",
      f"s_lshl_b32 {s(ST)}, {s(SJJ)}, 7", f"s_add_u32 {s(ST+4)}, {s(ST+4)}, {s(ST)}", f"s_mul_i32 {s(ST)}, {s(ST+3)}, {16*2304}", f"s_add_u32 {s(ST+4)}, {s(ST+4)}, {s(ST)}",
      f"s_add_u32 {s(SWB)}, {s(ST+4)}, {8*2304}", f"s_add_u32 {s(ST+6)}, {s(ST+5)}, {16*2304}")
    a(f"v_lshlrev_b32 v5, 2, {L}")
    a(f"s_and_b32 {s(ST)}, {s(SJJ)}, 3", f"s_cmp_eq_u32 {s(ST)}, {s(ST+2)}", "s_cbranch_scc1 L_opx")
    for ext in (0, 1):
        if ext: a.label("L_opx")
        nt = 3 if ext else 2; depth = (9 if ext else 14) if APRE else (2 if ext else 3)
        def reads(fi):
            bb = AF + 4*nt*(fi % depth)
            for c in range(2):
                a(f"ds_read_b64_tr_b16 {v(bb+4*c,2)}, {v(A0+c)} offset:{fi*2048}", f"ds_read_b64_tr_b16 {v(bb+4*c+2,2)}, {v(A0+c)} offset:{fi*2048+512}")
            if ext: a(f"ds_read_b64_tr_b16 {v(bb+8,2)}, {v(AXT)} offset:{fi*1024}", f"ds_read_b64_tr_b16 {v(bb+10,2)}, {v(AXT)} offset:{fi*1024+256}")
        def preload(a):
            for fi in range(depth):
                if fi >= 2: a(f"s_waitcnt lgkmcnt({2*nt})")
                reads(fi)
        wait_o(a, ext, preload)
        stamp(a, "oseen")
        def oload(fi):
            if fi % 9 == 8:
                for c in range(4): a(f"buffer_load_dword {v(BF+4*fi+c)}, v5, {s(RO,4)}, {s(SXB)} offen offset:{1024*(fi&3) + 256*c}{oflags}")
            else: a(f"buffer_load_dwordx4 {v(BF+4*fi,4)}, v15, {s(RO,4)}, {s(SXB)} offen offset:{1024*(fi&3)}{oflags}")
            if fi & 3 == 3: a(f"s_add_u32 {s(SXB)}, {s(SXB)}, 4096")
        for fi in range(OLA): oload(fi)
        a(f"s_cmp_eq_u32 {s(SW)}, 0", f"s_cbranch_scc0 L_pre{ext}")
        preload(a)
        a.label(f"L_pre{ext}")
        stamp(a, "oiss")
        issued = depth
        for fi in range(18):
            bb = AF + 4*nt*(fi % depth)
            lg = min(2*nt*(issued - 1 - fi), 12)
            a(f"s_waitcnt vmcnt({sum(4 if x % 9 == 8 else 1 for x in range(fi+1, min(18, fi+OLA)))}) lgkmcnt({lg})")
            if fi == 0: stamp(a, "ofirst")
            for c in range(nt):
                D = D0 + 16*c
                a(f"v_mfma_f32_32x32x16_bf16 {v(D,16)}, {v(bb+4*c,4)}, {v(BF+4*fi,4)}, {'0' if fi == 0 else v(D,16)}")
                if c == nt-1 and fi + OLA < 18: oload(fi + OLA)
            if fi + depth < 18:
                if depth > 3: a(f"s_waitcnt lgkmcnt({2*nt})")
                reads(fi+depth); issued += 1
        stamp(a, "omfma")
        a("s_nop 7", "s_nop 2" if ext else "s_nop 3")
        for r in range(16): a(f"v_permlane16_swap_b32 {v(D0+r)}, {v(D0+16+r)}")
        if ext:
            for r in range(8): a(f"v_permlane16_swap_b32 {v(DX+r)}, {v(DX+8+r)}")
        a(f"s_cmp_eq_u32 {s(ST+3)}, 0", f"s_cbranch_scc0 L_op1{ext}")
        for kh in (0, 1):
            if kh: a.label(f"L_op1{ext}")
            for q in range(4): a(f"ds_write_b128 v13, {v(D0+16*(1-kh)+4*q,4)} offset:{q*1024}")
            if ext:
                for q in range(2): a(f"ds_write_b128 v11, {v(DX+8*(1-kh)+4*q,4)} offset:{kh*2048 + q*1024}")
            stamp(a, "f0")
            a("s_waitcnt lgkmcnt(0)", "s_barrier")
            stamp(a, "f1")
            D = D0 + 16*kh; P = AF; nx = 2 if ext else 0
            for q in range(4): a(f"ds_read_b128 {v(BF+4*q,4)}, v14 offset:{q*1024}")
            for q in range(nx): a(f"ds_read_b128 {v(BF+16+4*q,4)}, v11 offset:{(1-kh)*2048 + q*1024}")
            for q in range(4):
                a(f"s_waitcnt lgkmcnt({nx + 3 - q})")
                for r in (0, 2): a(f"v_pk_add_f32 {v(D+4*q+r,2)}, {v(D+4*q+r,2)}, {v(BF+4*q+r,2)}")
                for r in range(2): a(f"v_cvt_pk_bf16_f32 {v(P+2*q+r)}, {v(D+4*q+2*r)}, {v(D+4*q+2*r+1)}")
                if q < 2:
                    for r in range(2): a(f"v_cvt_pk_bf16_f32 {v(P+8+2*q+r)}, {v(D+4*q+2*r)}, {v(D+4*q+2*r+1)}")
            a("s_nop 0")
            for i in range(4): a(f"v_mov_b32_dpp {v(P+i)}, {v(P+4+i)} row_ror:8 row_mask:0xf bank_mask:0xc")
            a(f"buffer_store_dwordx4 {v(P,4)}, v12, {s(ROUT,4)}, {s(ST+4)} offen{OUTF}")
            for i in range(4): a(f"v_mov_b32_dpp {v(P+4+i)}, {v(P+8+i)} row_ror:8 row_mask:0xf bank_mask:0x3")
            a(f"buffer_store_dwordx4 {v(P+4,4)}, v12, {s(ROUT,4)}, {s(SWB)} offen{OUTF}")
            if ext:
                X = DX + 8*kh
                a("s_waitcnt lgkmcnt(0)")
                for r in range(0, 8, 2): a(f"v_pk_add_f32 {v(X+r,2)}, {v(X+r,2)}, {v(BF+16+r,2)}")
                for r in range(4): a(f"v_cvt_pk_bf16_f32 {v(P+12+r)}, {v(X+2*r)}, {v(X+2*r+1)}")
                a(f"buffer_store_dwordx4 {v(P+12,4)}, v9, {s(ROUT,4)}, {s(ST+5+kh)} offen{OUTF}")
            stamp(a, "f2")
            if DIAG: a("s_waitcnt vmcnt(0)")
            stamp_out(a, a.kidx); a("s_endpgm")

def kernel(name, body, nvgpr=256):
    a = Asm(); a.uid = 0
    a.label(name)
    setup(a, f"L_end_{name}")
    body(a)
    a.label(f"L_end_{name}")
    a("s_endpgm")
    a.label("L_code_end")
    lines = []
    import re
    for l in a.lines:
        lines.append(re.sub(r"\bL_(\w+)", lambda m: f"L_{name[:3]}_{m.group(1)}", l))
    a.lines = lines
    n = check(a.lines)
    if n: print(f"{name}: {n} hazards"); sys.exit(1)
    head = f".globl {name}\n.p2align 8\n.type {name},@function\n"
    kd = f""".amdhsa_kernel {name}
  .amdhsa_next_free_vgpr {nvgpr}
  .amdhsa_next_free_sgpr 96
  .amdhsa_accum_offset {(nvgpr+3)//4*4}
  .amdhsa_group_segment_fixed_size 0
  .amdhsa_kernarg_size 104
  .amdhsa_user_sgpr_count 2
  .amdhsa_user_sgpr_kernarg_segment_ptr 1
  .amdhsa_system_sgpr_workgroup_id_x 1
.end_amdhsa_kernel
"""
    return head + a.text(), kd

def publish_o(a):
    if OTOUCH:
        a(f"s_and_b32 {s(ST+3)}, {s(SQB)}, 1", f"s_lshl_b32 {s(ST+3)}, {s(ST+3)}, 1", f"s_lshl_b32 s3, {s(SGRP)}, 2", f"s_add_u32 {s(ST+3)}, {s(ST+3)}, s3", f"s_mul_i32 {s(ST+3)}, {s(ST+3)}, 36", f"s_mul_i32 s3, {s(SHG)}, 9",
          f"s_add_u32 {s(ST+3)}, {s(ST+3)}, s3", f"s_lshl_b32 {s(ST+3)}, {s(ST+3)}, 10", f"s_mul_i32 s3, {s(SW)}, 21", "s_sub_u32 s3, s3, 21", f"v_add_u32 v14, s3, {v(LANE)}", "v_min_u32 v14, 0x8f, v14",
          "v_cmp_lt_u32 vcc, 0x47, v14", f"v_mov_b32 v12, {36*8 - 72}", "v_lshlrev_b32 v14, 7, v14", "v_lshlrev_b32 v12, 7, v12", "v_cndmask_b32 v12, 0, v12, vcc", "v_add_u32 v14, v14, v12")
    stamp(a, "p0")
    a("s_waitcnt vmcnt(0)")
    stamp(a, "p1")
    a("s_barrier")
    if OTOUCH:
        a(f"s_cmp_eq_u32 {s(SW)}, 0", "s_cbranch_scc1 L_notch", "s_mov_b32 exec_lo, 0x1fffff", "s_mov_b32 exec_hi, 0", f"buffer_load_dword {v(JUNK)}, v14, {s(RO,4)}, {s(ST+3)} offen sc1", "s_mov_b64 exec, -1")
        a.label("L_notch")
    a(f"s_cmp_eq_u32 {s(SW)}, 0", "s_cbranch_scc0 L_noof", f"s_lshl_b32 s3, {s(SGRP)}, 3", f"s_add_u32 s3, s3, {s(SJJ)}", f"s_lshl_b32 {s(ST)}, s3, 7", f"s_add_u32 {s(ST)}, {s(ST)}, {FO}")
    flag_store(a, ST)
    a.label("L_noof")
def wait_o(a, u, other):
    a(f"s_cmp_eq_u32 {s(SW)}, 0", f"s_cbranch_scc0 L_onp{u}", f"s_lshl_b32 {s(ST+7)}, {s(SGRP)}, 10", f"s_add_u32 {s(ST+7)}, {s(ST+7)}, {FO}",
      "v_mov_b32 v200, v11", "v_mov_b32 v201, v12", "v_mov_b32 v202, v13")
    poll(a, f"o{u}", ST+7, 1, mask=0xff)
    a("v_mov_b32 v11, v200", "v_mov_b32 v12, v201", "v_mov_b32 v13, v202", f"s_branch L_oseen{u}")
    a.label(f"L_onp{u}")
    other(a)
    a.label(f"L_oseen{u}")
    a("s_barrier")

def build(mode, prio=None):
    def k1(a):
        a.kidx = 0
        prologue(a); attention(a, " sc1", prio); a.label("L_fin")
        publish_o(a); oproj(a, " sc1", wait_o); fallback(a, " sc1", "L_fin")
    ks = [(NAME + "_kernel", k1)]
    hdr = open(os.path.join(os.path.dirname(os.path.abspath(__file__)), "header.txt")).read()
    out = hdr
    out += f"; @launch grid=(256,1,1) block=(512,1,1) lds={LDS_TOTAL}\n"
    out += '.amdgcn_target "amdgcn-amd-amdhsa--gfx950"\n.text\n'
    kds = ""
    for n, f in ks:
        t, kd = kernel(n, f)
        out += t; kds += ".p2align 6\n" + kd
    out += '.section .rodata,"a"\n' + kds
    return out

if __name__ == "__main__":
    if "diag" in sys.argv: DIAG = 1; sys.argv.remove("diag")
    if "diag2" in sys.argv: DIAG = 2; sys.argv.remove("diag2")
    mode = sys.argv[1] if len(sys.argv) > 1 else "one"
    dst = sys.argv[2] if len(sys.argv) > 2 else f"cdna_kernels/{NAME}.s"
    lo, hi = [int(x) for x in os.environ.get("PRIO", "13,0").split(",")]
    prio = [{(lo >> 2, lo & 3): 0, (hi >> 2, hi & 3): 2}, {}]
    open(dst, "w").write(build(mode, prio))
    print("wrote", dst)
```
